```python
import torch

def _softmax(x, axis=-1):
    return torch.softmax(x, dim=axis)
def _gelu(x):
    return torch.nn.functional.gelu(x, approximate="tanh")
def _silu(x):
    return torch.nn.functional.silu(x)
def _sigmoid(x):
    return torch.sigmoid(x)
def _layernorm(x, axis=-1, eps=1e-5):
    m = x.mean(dim=axis, keepdim=True)
    v = x.var(dim=axis, keepdim=True, unbiased=False)
    return (x - m) / torch.sqrt(v + eps)
def _scatter_add(tgt, idx, src, axis=0):
    return tgt.clone().index_add_(axis, idx, src)
def _segment_sum(src, seg, n):
    out = torch.zeros((n,) + src.shape[1:], dtype=src.dtype)
    return out.index_add_(0, seg, src)
def _pad(x, pw):
    flat = tuple(v for pair in reversed(pw) for v in pair)
    return torch.nn.functional.pad(x, flat)

kernel_name = 'gated_mix__mha_block__ssm_conv_h3__prompt'

def setup_inputs():

    _w = (lambda a: (lambda t: t.to(torch.bfloat16) if t.is_floating_point() else t)(torch.as_tensor(a)))
    def _A_setup():
        B, S, D, H = 1, 2048, 576, 32
        return {
            "x": _w((lambda *s: torch.randn(*s, dtype=torch.bfloat16) * 0.05)(B, S, D)),
            "wqkv": _w((lambda *s: torch.randn(*s, dtype=torch.bfloat16) * 0.8)(D, 3 * D)),
            "wo": _w((lambda *s: torch.randn(*s, dtype=torch.bfloat16) * 0.05)(D, D)),
        }
    _A_in = _A_setup()

    def _B_setup():
        B, S, D = 1, 2048, 576
        ks = 4
        return {
            "q": _w((lambda *s: torch.randn(*s, dtype=torch.bfloat16) * 0.05)(B, S, D)),
            "k": _w((lambda *s: torch.randn(*s, dtype=torch.bfloat16) * 0.4)(B, S, D)),
            "v": _w((lambda *s: torch.randn(*s, dtype=torch.bfloat16) * 0.4)(B, S, D)),
            "shift_k": _w((lambda *s: torch.randn(*s, dtype=torch.bfloat16) * 0.4)(D, ks) * 0.5),
            "ssm_k": _w((lambda *s: torch.randn(*s, dtype=torch.bfloat16) * 1.6)(D, S) * (1.0 / S ** 0.5)),
            "ssm_D": _w((lambda *s: torch.randn(*s, dtype=torch.bfloat16) * 0.4)(D)),
        }
    _B_in = _B_setup()

    return {
        "A_x": _A_in["x"],
        "A_wqkv": _A_in["wqkv"],
        "A_wo": _A_in["wo"],
        "B_q": _B_in["q"],
        "B_k": _B_in["k"],
        "B_v": _B_in["v"],
        "B_shift_k": _B_in["shift_k"],
        "B_ssm_k": _B_in["ssm_k"],
        "B_ssm_D": _B_in["ssm_D"],
        "gate_w": _w((lambda *s: torch.randn(*s, dtype=torch.bfloat16) * 0.05)(576) * 16.0),
    }

def reference(A_x, A_wqkv, A_wo, B_q, B_k, B_v, B_shift_k, B_ssm_k, B_ssm_D, gate_w):
    def _A_ref(x, wqkv, wo):
        B, S, D = x.shape
        H = 32
        Dh = D // H
        qkv = (lambda x, *d: x.permute(*d))((x @ wqkv).reshape(B, S, 3, H, Dh), 2, 0, 3, 1, 4)
        q, k, v = qkv[0], qkv[1], qkv[2]
        scores = torch.einsum("bhqd,bhkd->bhqk", q, k) * (Dh ** -0.5)
        p = _softmax(scores, axis=-1)
        o = torch.einsum("bhqk,bhkd->bhqd", p, v)
        return (lambda x, *d: x.permute(*d))(o, 0, 2, 1, 3).reshape(B, S, D) @ wo

    def _B_ref(q, k, v, shift_k, ssm_k, ssm_D):
        B, S, D = q.shape
        ks = shift_k.shape[-1]
        k_pad = _pad(k, ((0, 0), (ks - 1, 0), (0, 0)))
        k_shift = torch.zeros_like(k)
        for t in range(ks):
            k_shift = k_shift + k_pad[:, t:t + S, :] * shift_k[:, ks - 1 - t][None, None, :]
        kv = k_shift * v
        L = 2 * S
        kv_pad = _pad(kv, ((0, 0), (0, S), (0, 0)))
        kf_pad = _pad(ssm_k, ((0, 0), (0, S)))
        kv_f = (lambda x, axes=(-2,-1): torch.fft.rfft2(x.float(), dim=axes))(kv_pad[:, None, :, :], axes=(1, 2))
        kf_f = (lambda x, axes=(-2,-1): torch.fft.rfft2(x.float(), dim=axes))(kf_pad[:, None, :], axes=(1, 2))
        kf_f = (lambda x, *d: x.permute(*d))(kf_f, 1, 2, 0)
        y_f = kv_f * kf_f[None, :, :, :]
        y = (lambda x, s, axes=(-2,-1): torch.fft.irfft2(x, s=s, dim=axes).to(torch.bfloat16))(y_f, (1, L), axes=(1, 2))[:, 0, :S, :]
        y = y + kv * ssm_D[None, None, :]
        return q * y

    x = A_x
    g = _sigmoid((x * gate_w).sum(-1, keepdims=True))
    a = _A_ref(x, A_wqkv, A_wo)
    b = _B_ref(x, B_k, B_v, B_shift_k, B_ssm_k, B_ssm_D)
    return g * a + (1 - g) * b
```

```python
import re

class Asm:
    def __init__(self):
        self.lines = []
        self._uid = 0
    def __call__(self, s):
        for l in s.split("\n"):
            l = l.strip()
            if l:
                self.lines.append("  " + l)
    def label(self, name):
        self.lines.append(name + ":")
    def raw(self, s):
        self.lines.append(s)
    def comment(self, s):
        self.lines.append("  ; " + s)
    def uid(self, p="L"):
        self._uid += 1
        return "%s_%d" % (p, self._uid)
    def text(self):
        return "\n".join(self.lines) + "\n"

def v(a, n=1):
    return "v%d" % a if n == 1 else "v[%d:%d]" % (a, a + n - 1)
def s(a, n=1):
    return "s%d" % a if n == 1 else "s[%d:%d]" % (a, a + n - 1)
def acc(a, n=1):
    return "a%d" % a if n == 1 else "a[%d:%d]" % (a, a + n - 1)

_REG = re.compile(r"\b([vas])(\d+)\b|\b([vas])\[(\d+):(\d+)\]")
def regs_of(op):
    out = set()
    for m in _REG.finditer(op):
        if m.group(1):
            out.add((m.group(1), int(m.group(2))))
        else:
            for i in range(int(m.group(4)), int(m.group(5)) + 1):
                out.add((m.group(3), i))
    if re.search(r"\bvcc\b", op): out.add(("s", "vcc"))
    if re.search(r"\bexec\b", op): out.add(("s", "exec"))
    if re.search(r"\bm0\b", op): out.add(("s", "m0"))
    return out

TRANS = ("v_exp_f32", "v_log_f32", "v_rcp_f32", "v_rsq_f32", "v_sqrt_f32", "v_sin_f32", "v_cos_f32", "v_exp_f16", "v_rcp_iflag_f32")
def mfma_passes(mn):
    if "32x32x16" in mn or "32x32x8" in mn: return 8
    if "16x16x32" in mn or "16x16x16" in mn: return 4
    raise ValueError(mn)

class Ins:
    def __init__(self, text):
        self.text = text
        t = text.split(";")[0].strip()
        parts = t.split(None, 1)
        self.mn = parts[0]
        ops = parts[1] if len(parts) > 1 else ""
        self.ops = [o.strip() for o in re.split(r",(?![^\[]*\])", ops)] if ops else []
        mn = self.mn
        self.is_mfma = mn.startswith("v_mfma") or mn.startswith("v_smfmac")
        self.is_valu = mn.startswith("v_") and not self.is_mfma
        self.is_trans = any(mn.startswith(x) for x in TRANS)
        self.is_ds = mn.startswith("ds_")
        self.is_vmem = mn.startswith("buffer_") or mn.startswith("global_") or mn.startswith("flat_")
        self.is_salu = mn.startswith("s_")
        self.nstates = 1
        if mn == "s_nop":
            self.nstates = int(self.ops[0], 0) + 1
        self.dst = set(); self.src = set()
        o = self.ops
        if self.is_mfma:
            self.dst = regs_of(o[0]); self.srcA = regs_of(o[1]); self.srcB = regs_of(o[2]); self.srcC = regs_of(o[3]) if len(o) > 3 else set()
            self.src = self.srcA | self.srcB | self.srcC
        elif self.is_valu:
            if mn.startswith("v_cmpx"):
                self.dst = regs_of(o[0]) | {("s", "exec")}; self.src = set().union(*[regs_of(x) for x in o[1:]])
            elif mn.startswith("v_cmp"):
                self.dst = regs_of(o[0]); self.src = set().union(*[regs_of(x) for x in o[1:]])
            elif mn.startswith("v_readfirstlane") or mn.startswith("v_readlane"):
                self.dst = regs_of(o[0]); self.src = set().union(*[regs_of(x) for x in o[1:]])
            elif mn.startswith("v_permlane") and "swap" in mn:
                self.dst = regs_of(o[0]) | regs_of(o[1]); self.src = set(self.dst)
            elif mn.startswith("v_add_co") or mn.startswith("v_sub_co") or mn.startswith("v_addc_co") or mn.startswith("v_subb_co"):
                self.dst = regs_of(o[0]) | regs_of(o[1]); self.src = set().union(*[regs_of(x) for x in o[2:]])
            else:
                self.dst = regs_of(o[0]); self.src = set().union(*[regs_of(x) for x in o[1:]]) if len(o) > 1 else set()
                if mn.startswith("v_fmac") or mn.startswith("v_dot2c") or "UNUSED_PRESERVE" in t or mn.startswith("v_writelane") or mn.startswith("v_mov_b32_dpp") or "_dpp" in mn or "row_" in t or "quad_perm" in t:
                    self.src |= self.dst
                if mn.startswith("v_cndmask") and len(o) == 3:
                    self.src.add(("s", "vcc"))
        elif self.is_ds:
            if mn.startswith("ds_read") or mn.startswith("ds_bpermute") or mn.startswith("ds_swizzle") or "_rtn" in mn:
                self.dst = regs_of(o[0]); self.src = set().union(*[regs_of(x) for x in o[1:]])
            else:
                self.src = set().union(*[regs_of(x) for x in o])
        elif self.is_vmem:
            isload = "_load" in mn
            islds = " lds" in (" " + t) and t.rstrip().endswith("lds") or "_lds_" in mn
            allr = set().union(*[regs_of(x) for x in o]) if o else set()
            if isload and not islds:
                self.dst = regs_of(o[0]); self.src = set().union(*[regs_of(x) for x in o[1:]])
                if "d16" in mn: self.src |= self.dst
            elif "atomic" in mn and ("sc0" in t):
                self.dst = regs_of(o[0]); self.src = set().union(*[regs_of(x) for x in o[1:]])
            else:
                self.src = allr
                if islds: self.src.add(("s", "m0"))
            self.wide_store = ("store" in mn) and ("x4" in mn or "x3" in mn)
            if self.wide_store:
                self.sdata = regs_of(o[0]) if mn.startswith("buffer") else regs_of(o[1])
        elif self.is_salu:
            if mn.startswith("s_cmp") or mn.startswith("s_cbranch") or mn in ("s_branch", "s_barrier", "s_waitcnt", "s_nop", "s_endpgm", "s_setprio", "s_sleep") or mn.startswith("s_bitcmp"):
                self.src = set().union(*[regs_of(x) for x in o]) if o else set()
            else:
                self.dst = regs_of(o[0]) if o else set(); self.src = set().union(*[regs_of(x) for x in o[1:]]) if len(o) > 1 else set()
                if "saveexec" in mn: self.dst.add(("s", "exec")); self.src.add(("s", "exec"))

def vset(x): return {r for r in x if r[0] in "va"}
def sset(x): return {r for r in x if r[0] == "s"}

def check_seq(texts, name=""):
    ins = []
    for t in texts:
        t0 = t.split(";")[0].strip()
        if not t0 or t0.endswith(":") or t0.startswith("."):
            continue
        ins.append(Ins(t0))
    probs = []
    for j, c in enumerate(ins):
        dist = 0
        for i in range(j - 1, max(-1, j - 40), -1):
            p = ins[i]
            need = 0; why = ""
            def upd(n, w):
                nonlocal need, why
                if n > need: need, why = n, w
            pv = vset(p.dst)
            if p.is_valu:
                if c.is_mfma and pv & vset(c.src): upd(2, "VALU write -> MFMA read")
                if p.is_trans and c.is_valu and not c.is_trans and pv & vset(c.src): upd(1, "trans -> VALU")
                if p.is_trans and (c.is_mfma) and pv & vset(c.src): upd(2, "trans -> MFMA")
                if (c.mn.startswith("v_readfirstlane") or c.mn.startswith("v_readlane")) and pv & vset(c.src): upd(1, "VALU -> readlane")
                if c.mn.startswith("v_permlane") and pv & vset(c.src): upd(2, "VALU -> permlane")
                if c.is_valu and ("dpp" in c.text or "row_" in c.text or "quad_perm" in c.text) and pv & vset(c.src): upd(2, "VALU -> DPP")
                ps = sset(p.dst)
                if ps:
                    if c.is_vmem and ps & sset(c.src): upd(5, "VALU sgpr write -> VMEM read")
                    if c.is_valu and ps & sset(c.src): upd(2, "VALU sgpr write -> VALU read")
                    if (c.mn.startswith("v_readlane") or c.mn.startswith("v_writelane")) and ps & sset(c.src): upd(4, "VALU sgpr -> lane select")
                    if ("s", "exec") in ps and c.is_mfma: upd(4, "VALU exec write -> MFMA")
                    if ("s", "exec") in ps and c.is_valu and ("dpp" in c.text): upd(5, "VALU exec -> DPP")
            if p.mn.startswith("v_dot") and not (c.mn == p.mn and pv & vset(c.dst) and not (pv & (regs_of(c.ops[1]) | regs_of(c.ops[2])))):
                if pv & (vset(c.src) | vset(c.dst)): upd(3, "DLop result -> other")
            if p.is_mfma:
                n = mfma_passes(p.mn)
                big = {4: 8, 8: 12}[n]; ovl = {4: 6, 8: 10}[n]; war = {4: 3, 8: 7}[n]
                if c.is_mfma:
                    if pv & vset(c.srcC):
                        same = (vset(c.srcC) == pv) and mfma_passes(c.mn) == n
                        if not same: upd(ovl, "MFMA D -> MFMA C overlap")
                    if pv & (vset(c.srcA) | vset(c.srcB)): upd(big, "MFMA D -> MFMA A/B")
                    if pv & vset(c.dst) and not (vset(c.srcC) == pv) and not (pv & vset(c.srcC)):
                        upd(big, "MFMA D -> MFMA D WAW (check)")
                else:
                    if pv & (vset(c.src) | vset(c.dst)): upd(big, "MFMA D -> VALU/mem access")
                    if c.is_valu and vset(p.srcC) & vset(c.dst): upd(war, "MFMA C read -> VALU write WAR")
            if p.is_vmem and getattr(p, "wide_store", False):
                if c.is_valu and p.sdata & vset(c.dst): upd(2, "wide store data WAR")
                elif (c.is_vmem or c.is_ds) and p.sdata & vset(c.dst): upd(1, "wide store data WAR(load)")
            if p.is_salu and ("s", "m0") in p.dst and c.is_vmem and ("s", "m0") in c.src: upd(1, "m0 write -> lds dma")
            if need > dist:
                probs.append("%s: need %d have %d (%s): [%s] -> [%s]" % (name, need, dist, why, p.text, c.text))
            dist += p.nstates
            if dist >= 20: break
    return probs
```

```python
import sys
from asmlib import *

S_LEN, D, H, DH = 2048, 576, 32, 18
KV_HEAD = 147456
Q_HEAD  = 73728
OFF_KV  = 0
OFF_Q   = OFF_KV + 32 * KV_HEAD
URT_ROW = 2304 * 2
OFF_URT = OFF_Q + 32 * Q_HEAD
HP_ROW  = 5120
OFF_HP  = OFF_URT + 576 * URT_ROW
OFF_YT  = OFF_HP + 576 * 2 * HP_ROW
OFF_O   = OFF_YT + 576 * 4096
OFF_G   = OFF_O + 2048 * 1152
OFF_WOF = OFF_G + 2048 * 4
OFF_MX  = OFF_WOF + 648 * 1024
WS_USED = OFF_MX + 256 * 8 * 512
WS_SRD_SIZE = 0x2000000
assert WS_USED <= WS_SRD_SIZE
QSCALE = 1.4426950408889634 / (18.0 ** 0.5)
import struct
def f32bits(x): return struct.unpack("<I", struct.pack("<f", x))[0]
OOB = 0x80000000

def srd(a, dst, ptr, size):
    a("s_mov_b32 s%d, s%d" % (dst, ptr))
    a("s_and_b32 s%d, s%d, 0xffff" % (dst + 1, ptr + 1))
    a("s_mov_b32 s%d, 0x%x" % (dst + 2, size))
    a("s_mov_b32 s%d, 0x20000" % (dst + 3))

DIAG = False
EXP = set()
def stamp(a, i):
    if not DIAG: return
    a("s_memtime s[76:77]")
    a("s_waitcnt lgkmcnt(0)")
    a("s_mov_b32 s%d, s76" % (80 + i))
def stamp_init(a, n=12):
    if not DIAG: return
    for i in range(n): a("s_mov_b32 s%d, 0" % (80 + i))
def stamp_store(a, n=12):
    if not DIAG: return
    a("s_mov_b32 s38, 0x4000000")
    a("v_lshrrev_b32 v1, 6, v0")
    a("s_lshl_b32 s78, s2, 4")
    a("v_add_u32 v1, s78, v1")
    a("v_lshlrev_b32 v1, 6, v1")
    a("v_add_u32 v1, 0x3000000, v1")
    for i in range(n):
        a("v_mov_b32 v2, s%d" % (80 + i))
        a("buffer_store_dword v2, v1, s[36:39], 0 offen offset:%d" % (4 * i))

def kernel_header(a, name):
    a.raw(".globl %s" % name)
    a.raw(".p2align 8")
    a.raw(".type %s,@function" % name)
    a.label(name)

def descriptor(name, nvgpr, nsgpr=96, accum=None):
    if accum is None: accum = (nvgpr + 3) // 4 * 4
    return """.p2align 6
.amdhsa_kernel %s
  .amdhsa_next_free_vgpr %d
  .amdhsa_next_free_sgpr %d
  .amdhsa_accum_offset %d
  .amdhsa_group_segment_fixed_size 0
  .amdhsa_kernarg_size 104
  .amdhsa_user_sgpr_count 2
  .amdhsa_user_sgpr_kernarg_segment_ptr 1
  .amdhsa_system_sgpr_workgroup_id_x 1
  .amdhsa_float_denorm_mode_32 3
.end_amdhsa_kernel
""" % (name, nvgpr, nsgpr, accum)

def gen_qkv(a):
    name = "qkv_proj_kernel"
    kernel_header(a, name)
    FB, TB, WV = 40, 41, 42
    a("s_cmp_ge_u32 s2, 256")
    a("s_cbranch_scc1 L1_end")
    a("s_load_dwordx4 s[4:7], s[0:1], 0")
    a("s_load_dwordx4 s[8:11], s[0:1], 32")
    a("s_load_dwordx2 s[12:13], s[0:1], 48")
    a("s_load_dwordx2 s[14:15], s[0:1], 96")
    a("s_and_b32 s40, s2, 1")
    a("s_lshl_b32 s40, s40, 3")
    a("s_lshr_b32 s43, s2, 3")
    a("s_and_b32 s43, s43, 7")
    a("s_add_u32 s40, s40, s43")
    a("s_lshr_b32 s41, s2, 1")
    a("s_and_b32 s41, s41, 3")
    a("s_lshl_b32 s41, s41, 2")
    a("s_lshr_b32 s43, s2, 6")
    a("s_add_u32 s41, s41, s43")
    a("v_lshrrev_b32 v1, 6, v0")
    a("v_and_b32 v2, 63, v0")
    a("v_readfirstlane_b32 s42, v1")
    a("v_and_b32 v3, 15, v2")
    a("v_lshrrev_b32 v4, 4, v2")
    a("s_waitcnt lgkmcnt(0)")
    srd(a, 16, 4, 2048 * 1152)
    srd(a, 20, 6, 576 * 3456)
    srd(a, 24, 8, 2048 * 1152)
    srd(a, 28, 10, 2048 * 1152)
    srd(a, 32, 12, 576 * 8)
    srd(a, 36, 14, WS_SRD_SIZE)
    stamp_init(a); stamp(a, 0)
    a("s_cmp_ge_u32 s42, 8")
    a("s_cbranch_scc1 L1_side")

    a("v_lshrrev_b32 v5, 3, v2")
    a("v_and_b32 v6, 7, v2")
    a("s_lshl_b32 s43, s41, 7")
    a("s_lshl_b32 s44, s42, 4")
    a("s_add_u32 s43, s43, s44")
    a("v_add_u32 v5, s43, v5")
    a("s_movk_i32 s44, 1152")
    a("v_mul_lo_u32 v5, v5, s44")
    a("v_xor_b32 v7, v6, v4")
    a("v_lshl_add_u32 v8, v7, 4, v5")
    a("v_xor_b32 v7, 4, v7")
    a("v_lshl_add_u32 v9, v7, 4, v5")
    a("v_add_u32 v9, 9216, v9")
    a("s_and_b32 s44, s42, 1")
    a("s_lshl_b32 s44, s44, 3")
    a("v_lshlrev_b32 v5, 1, v4")
    a("v_add_u32 v5, s44, v5")
    a("v_xor_b32 v5, v5, v3")
    a("v_min_u32 v5, 13, v5")
    a("s_movk_i32 s44, 3456")
    a("v_mul_lo_u32 v6, v4, s44")
    a("v_lshl_add_u32 v10, v5, 4, v6")
    a("s_mul_i32 s45, s40, 216")
    a("s_mul_i32 s46, s42, 8*3456")
    a("s_add_u32 s46, s46, s45")
    a("s_mov_b32 s47, 0")
    a("s_lshl_b32 s48, s42, 11")
    def dma_groups():
        g0 = ["s_mov_b32 m0, s48", "s_add_u32 s49, s48, 1024", "buffer_load_dwordx4 v8, s[16:19], s47 offen lds"]
        g1 = ["s_mov_b32 m0, s49", "s_add_u32 s49, s48, 16384", "buffer_load_dwordx4 v9, s[16:19], s47 offen lds"]
        g2 = ["s_mov_b32 m0, s49", "s_add_u32 s49, s48, 17408", "buffer_load_dwordx4 v10, s[20:23], s46 offen lds"]
        g3 = ["s_mov_b32 m0, s49", "s_add_u32 s50, s46, 4*3456", "buffer_load_dwordx4 v10, s[20:23], s50 offen lds",
              "s_add_u32 s46, s46, 64*3456", "s_add_u32 s47, s47, 128", "s_add_u32 s48, s48, 32768", "s_and_b32 s48, s48, 0x1ffff"]
        return [g0, g1, g2, g3]
    def dma_stage():
        for g in dma_groups():
            for x in g: a(x)
    for st in range(3):
        dma_stage()
    a("s_and_b32 s51, s42, 3")
    a("s_lshr_b32 s52, s42, 2")
    a("s_lshl_b32 s44, s51, 5")
    a("v_add_u32 v5, s44, v3")
    a("v_lshlrev_b32 v5, 7, v5")
    a("v_lshrrev_b32 v6, 1, v3")
    a("v_xor_b32 v6, v6, v4")
    a("v_lshl_add_u32 v11, v6, 4, v5")
    a("v_xor_b32 v12, 64, v11")
    a("v_add_u32 v13, 0x10000, v11")
    a("v_add_u32 v14, 0x10000, v12")
    AW = 16
    a("v_lshrrev_b32 v6, 2, v2")
    a("v_and_b32 v6, 3, v6")
    a("v_and_b32 v7, 3, v2")
    a("v_lshl_add_u32 v1, v4, 3, v6")
    a("v_lshlrev_b32 v1, 8, v1")
    a("v_and_b32 v5, 1, v7")
    a("v_lshl_add_u32 v1, v5, 3, v1")
    a("v_lshrrev_b32 v7, 1, v7")
    a("v_lshl_add_u32 v1, v7, 4, v1")
    a("v_add_u32 v1, 16384, v1")
    a("v_and_b32 v5, 1, v4")
    a("v_lshlrev_b32 v5, 3, v5")
    a("v_lshl_add_u32 v5, v6, 1, v5")
    a("s_lshl_b32 s44, s52, 3")
    for i in range(4):
        a("s_add_u32 s45, s44, %d" % (2 * i))
        a("v_xor_b32 v6, s45, v5")
        a("v_lshl_add_u32 v%d, v6, 4, v1" % (AW + i))
        a("v_add_u32 v%d, 0x10000, v%d" % (AW + 4 + i, AW + i))
    ACC, AF, BF = 32, 64, 96
    TA_, TS_ = 112, 120
    a("s_lshl_b32 s44, s51, 5")
    a("v_add_u32 v5, s44, v3")
    a("s_movk_i32 s44, 304")
    a("v_mul_lo_u32 v5, v5, s44")
    a("s_mul_i32 s44, s40, 6")
    a("s_sub_i32 s44, 32, s44")
    a("s_max_i32 s44, s44, 0")
    a("s_min_i32 s44, s44, 6")
    a("s_mul_i32 s54, s44, 18")
    a("s_lshl_b32 s55, s52, 6")
    a("v_lshl_add_u32 v6, v4, 2, s55")
    a("s_movk_i32 s56, 3641")
    a("v_mov_b32 v24, 1.0")
    a("v_mov_b32 v25, 0x%x" % f32bits(QSCALE))
    for i in range(4):
        for p in range(2):
            k = 2 * i + p
            a("v_add_u32 v26, %d, v6" % (16 * i + 2 * p))
            a("v_min_u32 v26, 110, v26")
            a("v_mul_u32_u24 v27, s56, v26")
            a("v_cmp_gt_u32 vcc, s54, v26")
            a("v_lshrrev_b32 v27, 16, v27")
            a("v_mul_u32_u24 v27, 12, v27")
            a("v_cndmask_b32 v%d, v24, v25, vcc" % (TS_ + k))
            a("v_lshl_add_u32 v27, v26, 1, v27")
            a("v_add_u32 v%d, v27, v5" % (TA_ + k))
    def reads(u):
        st, kk = divmod(u, 2)
        slot = st & 3
        hi = slot >> 1
        off = (slot & 1) * 32768
        buf = u & 1
        out = []
        bb = (13 if hi else 11) + kk
        out.append("ds_read_b128 %s, v%d offset:%d" % (v(BF + 8 * buf, 4), bb, off))
        out.append("ds_read_b128 %s, v%d offset:%d" % (v(BF + 8 * buf + 4, 4), bb, off + 2048))
        for i in range(4):
            ar = AW + 4 * hi + i
            out.append("ds_read_b64_tr_b16 %s, v%d offset:%d" % (v(AF + 16 * buf + 4 * i, 2), ar, off + kk * 8192))
            out.append("ds_read_b64_tr_b16 %s, v%d offset:%d" % (v(AF + 16 * buf + 4 * i + 2, 2), ar, off + kk * 8192 + 1024))
        if "noread" in EXP: out = ["s_nop 0"] * len(out)
        return out
    def mf(u, j):
        buf = u & 1
        i, n = j >> 1, j & 1
        if "nomfma" in EXP: return
        c = "0" if u == 0 else v(ACC + 8 * i + 4 * n, 4)
        a("v_mfma_f32_16x16x32_bf16 %s, %s, %s, %s" % (v(ACC + 8 * i + 4 * n, 4), v(AF + 16 * buf + 4 * i, 4), v(BF + 8 * buf + 4 * n, 4), c))
    stamp(a, 1)
    a("s_waitcnt vmcnt(8)")
    a("s_barrier")
    stamp(a, 2)
    for x in reads(0): a(x)
    NU = 18
    for u in range(NU):
        st, kk = divmod(u, 2)
        last = (u == NU - 1)
        dg = []
        if kk == 1 and not last:
            a("s_waitcnt vmcnt(%d)" % (4 if st <= 6 else 0))
            a("s_barrier")
            if st + 3 <= 8 and "nodma" not in EXP: dg = dma_groups()
        nr = [] if last else reads(u + 1)
        waits = {0: 6, 2: 8, 4: 10, 6: 10} if not last else {0: 6, 2: 4, 4: 2, 6: 0}
        for j in range(8):
            if j in waits: a("s_waitcnt lgkmcnt(%d)" % waits[j])
            mf(u, j)
            if j < 5 and nr:
                a(nr[2 * j]); a(nr[2 * j + 1])
            if dg and j >= 4:
                for x in dg[j - 4]: a(x)
    stamp(a, 3)
    a("s_barrier")
    stamp(a, 4)
    for i in range(4):
        for p in range(2):
            k = 2 * i + p
            for n in range(2):
                r0 = ACC + 8 * i + 4 * n + 2 * p
                t = 24 + 3 * ((2 * k + n) % 2)
                a("v_mul_f32 v%d, v%d, v%d" % (t, TS_ + k, r0))
                a("v_mul_f32 v%d, v%d, v%d" % (t + 1, TS_ + k, r0 + 1))
                a("v_cvt_pk_bf16_f32 v%d, v%d, v%d" % (t + 2, t, t + 1))
                a("ds_write_b32 v%d, v%d offset:%d" % (TA_ + k, t + 2, n * 16 * 304))
    a("s_waitcnt lgkmcnt(0)")
    stamp(a, 5)
    a("s_branch L1_out")

    a.label("L1_side")
    if "prio" in EXP: a("s_setprio 3")
    a("s_mul_hi_u32 s44, s2, 0x%x" % ((1 << 32) // 9 + 1))
    a("s_mul_i32 s45, s44, 9")
    a("s_sub_u32 s45, s2, s45")
    a("s_sub_u32 s43, s42, 8")
    a("v_and_b32 v10, 31, v2")
    a("v_lshrrev_b32 v9, 5, v2")
    a("s_lshl_b32 s46, s43, 1")
    a("v_add_u32 v9, s46, v9")
    a("s_lshl_b32 s46, s44, 7")
    a("v_lshl_add_u32 v11, v9, 4, s46")
    a("s_lshl_b32 s46, s45, 7")
    a("v_lshl_add_u32 v12, v10, 2, s46")
    a("s_movk_i32 s46, 1152")
    a("v_mul_lo_u32 v13, v11, s46")
    a("v_add_u32 v13, v13, v12")
    a("v_subrev_u32 v14, 3456, v13")
    a("v_mov_b32 v15, 0x%x" % OOB)
    a("v_cmp_eq_u32 vcc, 0, v11")
    a("s_lshl_b32 s46, s45, 6")
    a("v_lshl_add_u32 v17, v10, 1, s46")
    a("v_cndmask_b32 v14, v14, v15, vcc")
    a("v_lshlrev_b32 v16, 3, v17")
    a("s_movk_i32 s46, %d" % URT_ROW)
    a("v_mul_lo_u32 v17, v17, s46")
    a("v_lshlrev_b32 v18, 1, v11")
    a("v_sub_u32 v17, v17, v18")
    a("v_add_u32 v17, 0x%x, v17" % (OFF_URT + 4064))
    a("s_cmp_lt_u32 s2, 144")
    a("s_cbranch_scc1 L1_side_act")
    a("v_mov_b32 v13, v15"); a("v_mov_b32 v14, v15"); a("v_mov_b32 v16, v15"); a("v_mov_b32 v17, v15")
    a.label("L1_side_act")
    KR, VR, WR = 32, 52, 68
    a("s_movk_i32 s48, 4608")
    a("s_movk_i32 s49, 9216")
    a("s_movk_i32 s50, 13824")
    soffs = ["0", "s48", "s49", "s50"]
    a("s_barrier")
    for i in range(3):
        a("buffer_load_dword v%d, v14, s[24:27], 0 offen offset:%d" % (KR + i, 1152 * i))
    for i in range(16):
        a("buffer_load_dword v%d, v13, s[24:27], %s offen offset:%d" % (KR + 3 + i, soffs[i // 4], 1152 * (i % 4)))
    a("buffer_load_dwordx4 %s, v16, s[32:35], 0 offen" % v(WR, 4))
    for i in range(16):
        a("buffer_load_dword v%d, v13, s[28:31], %s offen offset:%d" % (VR + i, soffs[i // 4], 1152 * (i % 4)))
    stamp(a, 1)
    a("s_barrier")
    a("s_barrier")
    a("s_waitcnt vmcnt(0)")
    stamp(a, 2)
    WF = 72
    for c in range(2):
        for p in range(2):
            src = WR + 2 * c + p
            a("v_lshlrev_b32 v%d, 16, v%d" % (WF + 4 * c + 2 * p, src))
            a("v_and_b32 v%d, 0xffff0000, v%d" % (WF + 4 * c + 2 * p + 1, src))
    KL, KH = 80, 100
    for i in range(19):
        a("v_lshlrev_b32 v%d, 16, v%d" % (KL + i, KR + i))
        a("v_and_b32 v%d, 0xffff0000, v%d" % (KH + i, KR + i))
    a("s_barrier")
    stamp(a, 9)
    RES = 120
    for c in range(2):
        KX = KL if c == 0 else KH
        for i in range(16):
            r = RES + 16 * c + i
            if "noside" in EXP:
                if i % 8 == 7: a("s_barrier")
                continue
            a("v_mul_f32 v%d, v%d, v%d" % (r, KX + i, WF + 4 * c + 3))
            a("v_fmac_f32 v%d, v%d, v%d" % (r, KX + i + 1, WF + 4 * c + 2))
            a("v_fmac_f32 v%d, v%d, v%d" % (r, KX + i + 2, WF + 4 * c + 1))
            a("v_fmac_f32 v%d, v%d, v%d" % (r, KX + i + 3, WF + 4 * c + 0))
            if c == 0:
                a("v_lshlrev_b32 v20, 16, v%d" % (VR + i))
            else:
                a("v_and_b32 v20, 0xffff0000, v%d" % (VR + i))
            a("v_mul_f32 v%d, v%d, v20" % (r, r))
            if i % 8 == 7:
                a("s_barrier")
    for c in range(2):
        PK = 152 + 8 * c
        for e in range(8):
            a("v_cvt_pk_bf16_f32 v%d, v%d, v%d" % (PK + e, RES + 16 * c + 15 - 2 * e, RES + 16 * c + 14 - 2 * e))
    a("s_movk_i32 s46, %d" % URT_ROW)
    a("buffer_store_dwordx4 v[152:155], v17, s[36:39], 0 offen offset:0")
    a("buffer_store_dwordx4 v[156:159], v17, s[36:39], 0 offen offset:16")
    a("buffer_store_dwordx4 v[160:163], v17, s[36:39], s46 offen offset:0")
    a("buffer_store_dwordx4 v[164:167], v17, s[36:39], s46 offen offset:16")
    stamp(a, 10)
    a("s_barrier")
    stamp(a, 11)
    a("s_sub_u32 s46, s2, 144")
    a("s_cmp_lt_u32 s46, 4")
    a("s_cbranch_scc0 L1_nopad")
    a("v_mov_b32 v20, 0"); a("v_mov_b32 v21, 0"); a("v_mov_b32 v22, 0"); a("v_mov_b32 v23, 0")
    a("s_lshl_b32 s46, s46, 8")
    a("s_lshl_b32 s47, s43, 6")
    a("s_add_u32 s46, s46, s47")
    a("v_add_u32 v24, s46, v2")
    a("s_movk_i32 s47, %d" % URT_ROW)
    for j in range(18):
        a("v_add_u32 v25, %d, v24" % (1024 * j))
        a("v_and_b32 v26, 31, v25")
        a("v_lshrrev_b32 v25, 5, v25")
        a("v_mul_lo_u32 v25, v25, s47")
        a("v_lshl_add_u32 v25, v26, 4, v25")
        a("v_add_u32 v25, 0x%x, v25" % (OFF_URT + 4096))
        a("buffer_store_dwordx4 v[20:23], v25, s[36:39], 0 offen")
    a.label("L1_nopad")
    stamp(a, 5)
    a("s_barrier")
    a.label("L1_out")
    a("s_barrier")
    stamp(a, 6)
    a("s_cmp_ge_u32 s42, 6")
    a("s_cbranch_scc1 L1_fin")
    a("s_mul_i32 s53, s40, 6")
    a("s_add_u32 s53, s53, s42")
    a("s_lshr_b32 s54, s53, 5")
    a("s_and_b32 s56, s53, 31")
    a("s_mul_i32 s57, s42, 48")
    a("s_lshr_b32 s50, s41, 3")
    a("s_mul_i32 s50, s50, 18432")
    a("s_and_b32 s51, s41, 7")
    a("s_lshr_b32 s51, s51, 1")
    a("s_mul_i32 s51, s51, 36864")
    a("s_add_u32 s50, s50, s51")
    a("s_mul_i32 s51, s56, %d" % KV_HEAD)
    a("s_add_u32 s50, s50, s51")
    a("s_and_b32 s52, s41, 1")
    a("s_movk_i32 s61, 304")
    a("s_cmp_eq_u32 s54, 2")
    a("s_cbranch_scc1 L1_vout")
    a("s_cmp_eq_u32 s54, 0")
    a("s_cbranch_scc0 L1_kdest")
    a("s_mul_i32 s58, s56, %d" % Q_HEAD)
    a("s_add_u32 s58, s58, 0x%x" % OFF_Q)
    a("s_lshl_b32 s60, s41, 9")
    a("s_add_u32 s59, s58, s60")
    a("s_add_u32 s59, s59, 65536")
    a("s_lshl_b32 s60, s41, 12")
    a("s_add_u32 s58, s58, s60")
    a("s_branch L1_destdone")
    a.label("L1_kdest")
    a("s_lshl_b32 s60, s52, 9")
    a("s_add_u32 s59, s50, s60")
    a("s_add_u32 s59, s59, 8192")
    a("s_lshl_b32 s60, s52, 12")
    a("s_add_u32 s58, s50, s60")
    a.label("L1_destdone")
    a("v_and_b32 v5, 31, v2")
    a("v_lshrrev_b32 v6, 5, v2")
    a("v_mul_lo_u32 v7, v5, s61")
    a("v_lshl_add_u32 v7, v6, 4, v7")
    a("v_add_u32 v7, s57, v7")
    for i in range(4):
        a("ds_read_b128 %s, v7 offset:%d" % (v(24 + 4 * i, 4), i * 32 * 304))
    a("v_mul_lo_u32 v8, v2, s61")
    a("v_add_u32 v8, s57, v8")
    a("ds_read_b32 v40, v8 offset:32")
    a("ds_read_b32 v41, v8 offset:%d" % (64 * 304 + 32))
    a("v_lshlrev_b32 v11, 4, v2")
    a("v_lshlrev_b32 v12, 2, v2")
    for i in range(4):
        a("s_waitcnt lgkmcnt(%d)" % (5 - i))
        a("buffer_store_dwordx4 %s, v11, s[36:39], s58 offen offset:%d" % (v(24 + 4 * i, 4), 1024 * i))
    a("s_waitcnt lgkmcnt(0)")
    a("buffer_store_dword v40, v12, s[36:39], s59 offen")
    a("buffer_store_dword v41, v12, s[36:39], s59 offen offset:256")
    a("s_branch L1_fin")
    a.label("L1_vout")
    a("v_lshrrev_b32 v9, 2, v2")
    a("v_and_b32 v9, 3, v9")
    a("v_lshl_add_u32 v9, v4, 2, v9")
    a("v_mul_lo_u32 v9, v9, s61")
    a("v_and_b32 v10, 3, v2")
    a("v_lshl_add_u32 v9, v10, 3, v9")
    a("v_add_u32 v9, s57, v9")
    a("s_mul_i32 s60, s52, 8*576")
    a("s_add_u32 s63, s50, s60")
    a("s_add_u32 s63, s63, 9216")
    a("v_and_b32 v13, 1, v4")
    a("v_mul_u32_u24 v13, 288, v13")
    a("v_lshl_add_u32 v13, v3, 4, v13")
    a("v_lshrrev_b32 v14, 1, v4")
    a("v_lshl_add_u32 v13, v14, 3, v13")
    a("v_add_u32 v14, 256, v13")
    a("v_mov_b32 v15, 0x%x" % OOB)
    a("v_cmp_le_u32 vcc, 2, v3")
    a("s_nop 1")
    a("v_cndmask_b32 v14, v14, v15, vcc")
    for half in range(2):
        for b in range(4):
            beta = 4 * half + b
            a("ds_read_b64_tr_b16 %s, v9 offset:%d" % (v(24 + 4 * b, 2), beta * 16 * 304))
            a("ds_read_b64_tr_b16 %s, v9 offset:%d" % (v(26 + 4 * b, 2), beta * 16 * 304 + 32))
        for b in range(4):
            beta = 4 * half + b
            a("s_waitcnt lgkmcnt(%d)" % (6 - 2 * b))
            a("buffer_store_dwordx2 %s, v13, s[36:39], s63 offen offset:%d" % (v(24 + 4 * b, 2), beta * 576))
            a("buffer_store_dwordx2 %s, v14, s[36:39], s63 offen offset:%d" % (v(26 + 4 * b, 2), beta * 576))
        if half == 0:
            a("s_nop 1")
    a.label("L1_fin")
    stamp(a, 7)
    if DIAG:
        a("s_waitcnt vmcnt(0)")
    stamp(a, 8)
    stamp_store(a)
    a.label("L1_end")
    a("s_endpgm")
    return descriptor(name, 168)


LDS_KV = 147456
LDS_UR = LDS_KV
LDS_FLAG = LDS_UR + 3 * 4608
LDS2 = LDS_FLAG + 64
VMASK = 0x0003FFFF

def attn_regs():
    R = {}
    R["QA1"], R["QA2"], R["QB1"], R["QB2"] = 8, 12, 14, 18
    R["SA"], R["SB"] = 20, 36
    R["PA"], R["PB"] = 52, 60
    R["OA"], R["OB"] = 68, 84
    R["K1"] = [100, 104]; R["K2"] = [108, 110]; R["V"] = [112, 120]
    R["NA"], R["NB"] = 128, 144
    return R

def gen_attn(a):
    name = "attn_kernel"
    kernel_header(a, name)
    R = attn_regs()
    a("s_cmp_ge_u32 s2, 256")
    a("s_cbranch_scc1 L2_end")
    a("s_load_dwordx2 s[4:5], s[0:1], 0")
    a("s_load_dwordx2 s[6:7], s[0:1], 16")
    a("s_load_dwordx4 s[8:11], s[0:1], 56")
    a("s_load_dwordx2 s[12:13], s[0:1], 72")
    a("s_load_dwordx2 s[14:15], s[0:1], 96")
    a("s_and_b32 s40, s2, 31")
    a("s_lshr_b32 s41, s2, 5")
    a("v_lshrrev_b32 v1, 6, v0")
    a("v_and_b32 v2, 63, v0")
    a("v_readfirstlane_b32 s42, v1")
    a("s_waitcnt lgkmcnt(0)")
    srd(a, 36, 14, WS_SRD_SIZE)
    stamp_init(a); stamp(a, 0)
    a("s_cmp_ge_u32 s42, 8")
    a("s_cbranch_scc1 L2_aux")
    a("v_lshlrev_b32 v3, 4, v2")
    a("s_mul_i32 s43, s40, %d" % KV_HEAD)
    a("s_lshl_b32 s44, s42, 10")
    a("s_add_u32 s43, s43, s44")
    a("s_and_b32 s45, s42, 3")
    a("s_lshr_b32 s46, s42, 2")
    a("s_lshl_b32 s47, s41, 3")
    a("s_lshl_b32 s48, s45, 1")
    a("s_add_u32 s47, s47, s48")
    a("s_mul_i32 s48, s40, %d" % Q_HEAD)
    a("s_add_u32 s48, s48, 0x%x" % OFF_Q)
    a("s_lshl_b32 s49, s47, 10")
    a("s_add_u32 s49, s49, s48")
    a("s_lshl_b32 s50, s47, 7")
    a("s_add_u32 s50, s50, s48")
    a("s_add_u32 s50, s50, 65536")
    a("v_and_b32 v4, 31, v2")
    a("v_lshrrev_b32 v5, 5, v2")
    a("v_lshlrev_b32 v6, 2, v4")
    a("v_mov_b32 v7, 0x%x" % OOB)
    a("v_cmp_eq_u32 vcc, 0, v5")
    a("buffer_load_dwordx4 %s, v3, s[36:39], s49 offen" % v(R["QA1"], 4))
    a("buffer_load_dwordx4 %s, v3, s[36:39], s49 offen offset:1024" % v(R["QB1"], 4))
    a("v_cndmask_b32 v7, v7, v6, vcc")
    a("buffer_load_dword v%d, v7, s[36:39], s50 offen" % R["QA2"])
    a("buffer_load_dword v%d, v7, s[36:39], s50 offen offset:128" % R["QB2"])
    for q in range(18):
        a("s_mov_b32 m0, s44")
        a("s_add_u32 s44, s44, 8192")
        a("buffer_load_dwordx4 v3, s[36:39], s43 offen lds")
        a("s_add_u32 s43, s43, 8192")
    a("v_mov_b32 v%d, 0" % (R["QA2"] + 1)); a("v_mov_b32 v%d, 0" % (R["QB2"] + 1))
    a("v_mov_b32 v%d, 0" % (R["K2"][0] + 1)); a("v_mov_b32 v%d, 0" % (R["K2"][1] + 1))
    a("v_mov_b32 v1, 0x3f803f80")
    a("v_cmp_eq_u32 vcc, 18, v4")
    a("s_nop 1")
    a("v_mov_b32 v3, 0")
    a("v_cndmask_b32 v1, v3, v1, vcc")
    for b in range(2):
        for r in range(8): a("v_mov_b32 v%d, v1" % (R["V"][b] + r))
    for r in range(16):
        a("v_mov_b32 v%d, 0" % (R["NA"] + r)); a("v_mov_b32 v%d, 0" % (R["NB"] + r))
    a("s_mul_i32 s51, s46, 18432")
    AK1, AK2, AV = 160, 161, 162
    PK1, PK2, PV = 163, 164, 165
    a("v_lshlrev_b32 v%d, 4, v2" % AK1)
    a("v_add_u32 v%d, s51, v%d" % (AK1, AK1))
    a("v_add_u32 v%d, s51, v6" % AK2)
    a("v_add_u32 v%d, 8192, v%d" % (AK2, AK2))
    a("v_mul_u32_u24 v%d, 288, v5" % AV)
    a("v_lshl_add_u32 v%d, v4, 4, v%d" % (AV, AV))
    a("v_add_u32 v%d, s51, v%d" % (AV, AV))
    a("v_add_u32 v%d, 9216, v%d" % (AV, AV))
    a("s_mov_b32 s52, 0x%x" % VMASK)
    a("s_mov_b32 s53, 0x%x" % VMASK)
    a("s_mov_b32 s60, 0")
    stamp(a, 1)
    a("s_waitcnt vmcnt(13)")
    a("s_barrier")
    stamp(a, 2)

    def mS1(S, kb, Q1, N): return "v_mfma_f32_32x32x16_bf16 %s, %s, %s, %s" % (v(S, 16), v(R["K1"][kb], 4), v(Q1, 4), v(N, 16))
    def mS2(S, kb, Q2): return "v_mfma_f32_32x32x8_bf16 %s, %s, %s, %s" % (v(S, 16), v(R["K2"][kb], 2), v(Q2, 2), v(S, 16))
    def mP(O, vb, h, P): return "v_mfma_f32_32x32x16_bf16 %s, %s, %s, %s" % (v(O, 16), v(R["V"][vb] + 4 * h, 4), v(P + 4 * h, 4), v(O, 16))
    def phase(S, P, Sn, Q1, Q2, Nn, kb, On, Pn, vb, loads):
        ex = ["v_exp_f32 v%d, v%d" % (S + i, S + i) for i in range(16)]
        cv = ["v_cvt_pk_bf16_f32 v%d, v%d, v%d" % (P + i, S + 2 * i, S + 2 * i + 1) for i in range(8)]
        l0, l1 = loads
        return ([mS1(Sn, kb, Q1, Nn)] + ex[0:4] + l0 + [mP(On, vb, 0, Pn)] + ex[4:6] + cv[0:1] + ex[6:8] + cv[1:2] + l1 +
                [mS2(Sn, kb, Q2)] + ex[8:10] + cv[2:3] + ex[10:12] + cv[3:4] + [mP(On, vb, 1, Pn)] + ex[12:14] + cv[4:5] + ex[14:16] + cv[5:8])

    a.label("L2_main")
    for r in range(16):
        a("v_mov_b32 v%d, 0" % (R["OA"] + r)); a("v_mov_b32 v%d, 0" % (R["OB"] + r))
    for r in range(8): a("v_mov_b32 v%d, 0" % (R["PB"] + r))
    a("ds_read_b128 %s, v%d" % (v(R["K1"][0], 4), AK1))
    a("ds_read_b32 v%d, v%d" % (R["K2"][0], AK2))
    a("s_waitcnt lgkmcnt(0)")
    a(mS1(R["SA"], 0, R["QA1"], R["NA"]))
    a(mS2(R["SA"], 0, R["QA2"]))
    a("s_mov_b32 s54, 0")
    a("s_nop 7"); a("s_nop 3")
    a.label("L2_stage")
    a("s_cmp_lt_u32 s54, 3")
    a("s_cselect_b32 s55, 36864, 0")
    a("v_add_u32 v%d, s55, v%d" % (PK1, AK1))
    a("v_add_u32 v%d, s55, v%d" % (PK2, AK2))
    body = []
    for i in range(8):
        kb = i & 1; kn = kb ^ 1; vb = i & 1; vp = vb ^ 1
        if i < 7:
            lk = ["ds_read_b128 %s, v%d offset:%d" % (v(R["K1"][kn], 4), AK1, (i + 1) * 1024),
                  "ds_read_b32 v%d, v%d offset:%d" % (R["K2"][kn], AK2, (i + 1) * 128)]
        else:
            lk = ["SYNC",
                  "ds_read_b128 %s, v%d" % (v(R["K1"][kn], 4), PK1),
                  "ds_read_b32 v%d, v%d" % (R["K2"][kn], PK2)]
        lv = ["s_mov_b64 exec, s[52:53]",
              "ds_read_b128 %s, v%d offset:%d" % (v(R["V"][vb], 4), AV, (2 * i) * 576),
              "ds_read_b128 %s, v%d offset:%d" % (v(R["V"][vb] + 4, 4), AV, (2 * i + 1) * 576),
              "s_mov_b64 exec, -1"]
        body += phase(R["SA"], R["PA"], R["SB"], R["QB1"], R["QB2"], R["NB"], kb, R["OB"], R["PB"], vp, (lv, lk))
        body.append("s_waitcnt lgkmcnt(0)")
        body += phase(R["SB"], R["PB"], R["SA"], R["QA1"], R["QA2"], R["NA"], kn, R["OA"], R["PA"], vb, ([], []))
    for x in body:
        if x == "SYNC":
            a("s_cmp_eq_u32 s54, 0")
            a("s_cselect_b32 s56, 1, 0")
            a("s_cmp_eq_u32 s60, 0")
            a("s_cselect_b32 s56, s56, 0")
            a("s_cmp_eq_u32 s56, 0")
            a("s_cbranch_scc1 L2_nosync")
            a("s_waitcnt vmcnt(0)")
            a("s_barrier")
            a.label("L2_nosync")
        else:
            a(x)
    a("v_add_u32 v%d, 36864, v%d" % (AK1, AK1))
    a("v_add_u32 v%d, 36864, v%d" % (AK2, AK2))
    a("v_add_u32 v%d, 36864, v%d" % (AV, AV))
    a("s_add_u32 s54, s54, 1")
    a("s_cmp_lt_u32 s54, 4")
    a("s_cbranch_scc1 L2_stage")
    a(mP(R["OB"], 1, 0, R["PB"]))
    a(mP(R["OB"], 1, 1, R["PB"]))
    stamp(a, 3)
    a("v_subrev_u32 v%d, 147456, v%d" % (AK1, AK1))
    a("v_subrev_u32 v%d, 147456, v%d" % (AK2, AK2))
    a("v_subrev_u32 v%d, 147456, v%d" % (AV, AV))
    a("s_nop 7"); a("s_nop 3")
    a("s_cmp_lg_u32 s60, 0")
    a("s_cbranch_scc1 L2_combine")
    a("v_mov_b32 v1, 0x21800000")
    a("v_mov_b32 v3, 0x5d800000")
    a("v_cmp_le_f32 s[56:57], v1, v%d" % (R["OA"] + 10))
    a("v_cmp_ge_f32 s[58:59], v3, v%d" % (R["OA"] + 10))
    a("s_and_b64 s[56:57], s[56:57], s[58:59]")
    a("v_cmp_le_f32 s[58:59], v1, v%d" % (R["OB"] + 10))
    a("s_and_b64 s[56:57], s[56:57], s[58:59]")
    a("v_cmp_ge_f32 s[58:59], v3, v%d" % (R["OB"] + 10))
    a("s_and_b64 s[56:57], s[56:57], s[58:59]")
    a("s_cmp_eq_u32 s56, -1")
    a("s_cbranch_scc1 L2_ok")
    a("v_mov_b32 v1, %d" % LDS_FLAG)
    a("v_mov_b32 v3, 1")
    a("ds_write_b32 v1, v3")
    a("s_waitcnt lgkmcnt(0)")
    a.label("L2_ok")
    a("s_barrier")
    a("v_mov_b32 v1, %d" % LDS_FLAG)
    a("ds_read_b32 v3, v1")
    a("s_waitcnt lgkmcnt(0)")
    a("v_readfirstlane_b32 s56, v3")
    a("s_cmp_eq_u32 s56, 0")
    a("s_cbranch_scc1 L2_combine")
    a("s_mov_b32 s60, 1")
    MA, MB = 166, 167
    a("v_mov_b32 v%d, 0xff800000" % MA); a("v_mov_b32 v%d, 0xff800000" % MB)
    a("s_mov_b32 s54, 0")
    a("v_mov_b32 v1, v%d" % AK1); a("v_mov_b32 v3, v%d" % AK2)
    a.label("L2_maxstage")
    a("s_mov_b32 s55, 0")
    a.label("L2_maxtile")
    a("ds_read_b128 %s, v1" % v(R["K1"][0], 4))
    a("ds_read_b32 v%d, v3" % R["K2"][0])
    a("s_waitcnt lgkmcnt(0)")
    a("v_mfma_f32_32x32x16_bf16 %s, %s, %s, 0" % (v(R["SA"], 16), v(R["K1"][0], 4), v(R["QA1"], 4)))
    a("v_mfma_f32_32x32x16_bf16 %s, %s, %s, 0" % (v(R["SB"], 16), v(R["K1"][0], 4), v(R["QB1"], 4)))
    a(mS2(R["SA"], 0, R["QA2"]))
    a(mS2(R["SB"], 0, R["QB2"]))
    a("s_nop 7"); a("s_nop 7")
    for r in range(16):
        a("v_max_f32 v%d, v%d, v%d" % (MA, MA, R["SA"] + r))
        a("v_max_f32 v%d, v%d, v%d" % (MB, MB, R["SB"] + r))
    a("v_add_u32 v1, 1024, v1"); a("v_add_u32 v3, 128, v3")
    a("s_add_u32 s55, s55, 1")
    a("s_cmp_lt_u32 s55, 8")
    a("s_cbranch_scc1 L2_maxtile")
    a("v_add_u32 v1, %d, v1" % (36864 - 8192)); a("v_add_u32 v3, %d, v3" % (36864 - 1024))
    a("s_add_u32 s54, s54, 1")
    a("s_cmp_lt_u32 s54, 4")
    a("s_cbranch_scc1 L2_maxstage")
    a("v_xor_b32 v1, 32, v2"); a("v_lshlrev_b32 v1, 2, v1")
    a("ds_bpermute_b32 v3, v1, v%d" % MA)
    a("s_waitcnt lgkmcnt(0)")
    a("v_max_f32 v%d, v%d, v3" % (MA, MA))
    a("ds_bpermute_b32 v3, v1, v%d" % MB)
    a("s_waitcnt lgkmcnt(0)")
    a("v_max_f32 v%d, v%d, v3" % (MB, MB))
    a("s_lshl_b32 s55, s2, 3"); a("s_add_u32 s55, s55, s42"); a("s_lshl_b32 s55, s55, 9")
    a("s_add_u32 s55, s55, 0x%x" % OFF_MX)
    a("v_lshlrev_b32 v1, 3, v2")
    a("buffer_store_dwordx2 v[%d:%d], v1, s[36:39], s55 offen sc0 sc1" % (MA, MB))
    a("s_waitcnt vmcnt(0)")
    a("s_barrier")
    a("s_xor_b32 s56, s42, 4"); a("s_lshl_b32 s57, s2, 3"); a("s_add_u32 s56, s56, s57"); a("s_lshl_b32 s56, s56, 9")
    a("s_add_u32 s56, s56, 0x%x" % OFF_MX)
    a("buffer_load_dwordx2 v[4:5], v1, s[36:39], s56 offen sc0 sc1")
    a("s_waitcnt vmcnt(0)")
    a("v_max_f32 v%d, v%d, v4" % (MA, MA)); a("v_max_f32 v%d, v%d, v5" % (MB, MB))
    for r in range(16):
        a("v_sub_f32 v%d, 0, v%d" % (R["NA"] + r, MA)); a("v_sub_f32 v%d, 0, v%d" % (R["NB"] + r, MB))
    a("v_and_b32 v4, 31, v2"); a("v_lshrrev_b32 v5, 5, v2")
    a("s_branch L2_main")

    a.label("L2_combine")
    a("s_barrier")
    a("s_mul_i32 s55, s45, 6144")
    a("v_lshlrev_b32 v1, 4, v2")
    a("v_add_u32 v1, s55, v1")
    a("s_cmp_eq_u32 s46, 0")
    a("s_cbranch_scc1 L2_recv")
    for t, O in enumerate((R["OA"], R["OB"])):
        for c in range(3):
            a("ds_write_b128 v1, %s offset:%d" % (v(O + 4 * c, 4), (3 * t + c) * 1024))
    a("s_waitcnt lgkmcnt(0)")
    a("s_barrier")
    a("s_barrier")
    a("s_branch L2_ostore")
    a.label("L2_recv")
    a("s_barrier")
    for t in range(2):
        for c in range(3):
            a("ds_read_b128 %s, v1 offset:%d" % (v(R["SA"] + 12 * t + 4 * c, 4), (3 * t + c) * 1024))
    a("s_waitcnt lgkmcnt(0)")
    for t, O in enumerate((R["OA"], R["OB"])):
        for r in range(12):
            a("v_add_f32 v%d, v%d, v%d" % (O + r, O + r, R["SA"] + 12 * t + r))
    for t, O in enumerate((R["OA"], R["OB"])):
        a("v_mov_b32 v%d, v%d" % (52 + 2 * t, O + 10)); a("v_mov_b32 v%d, v%d" % (53 + 2 * t, O + 10))
    a("s_nop 1")
    a("v_permlane32_swap_b32 v52, v53")
    a("v_permlane32_swap_b32 v54, v55")
    a("s_nop 1")
    a("v_rcp_f32 v52, v52"); a("v_rcp_f32 v54, v54")
    a("s_nop 0")
    a("s_lshl_b32 s55, s45, 6")
    a("v_add_u32 v3, s55, v4")
    a("v_mul_u32_u24 v3, 36, v3")
    a("v_lshl_add_u32 v3, v5, 3, v3")
    a("v_add_u32 v3, 32768, v3")
    a("v_cmp_eq_u32 vcc, 0, v5")
    for t, O in enumerate((R["OA"], R["OB"])):
        rc = 52 + 2 * t
        for r in range(10):
            a("v_mul_f32 v%d, v%d, v%d" % (O + r, O + r, rc))
        for c in range(5):
            a("v_cvt_pk_bf16_f32 v%d, v%d, v%d" % (56 + c, O + 2 * c, O + 2 * c + 1))
        off = t * 32 * 36
        a("ds_write_b32 v3, v56 offset:%d" % (off + 0))
        a("ds_write_b32 v3, v57 offset:%d" % (off + 4))
        a("ds_write_b32 v3, v58 offset:%d" % (off + 16))
        a("ds_write_b32 v3, v59 offset:%d" % (off + 20))
        a("s_and_saveexec_b64 s[56:57], vcc")
        a("ds_write_b32 v3, v60 offset:%d" % (off + 32))
        a("s_mov_b64 exec, s[56:57]")
    a("s_waitcnt lgkmcnt(0)")
    a("s_barrier")
    a.label("L2_ostore")
    a("s_lshl_b32 s55, s42, 6")
    a("v_add_u32 v1, s55, v2")
    a("s_movk_i32 s56, 21846")
    for rep in range(2):
        if rep == 1:
            a("s_cmp_ge_u32 s42, 4")
            a("s_cbranch_scc1 L2_done")
            a("v_add_u32 v1, 512, v1")
        a("v_mul_u32_u24 v3, s56, v1")
        a("v_lshrrev_b32 v3, 16, v3")
        a("v_mul_u32_u24 v6, 3, v3")
        a("v_sub_u32 v6, v1, v6")
        a("v_mul_u32_u24 v7, 12, v1")
        a("v_add_u32 v7, 32768, v7")
        a("ds_read_b32 v8, v7"); a("ds_read_b32 v9, v7 offset:4"); a("ds_read_b32 v10, v7 offset:8")
        a("s_lshl_b32 s57, s41, 8")
        a("v_add_u32 v3, s57, v3")
        a("v_mul_u32_u24 v3, 1152, v3")
        a("v_mul_u32_u24 v6, 12, v6")
        a("v_add_u32 v3, v3, v6")
        a("s_mul_i32 s57, s40, 36")
        a("s_add_u32 s57, s57, 0x%x" % OFF_O)
        a("s_waitcnt lgkmcnt(0)")
        a("buffer_store_dwordx3 v[8:10], v3, s[36:39], s57 offen")
    a.label("L2_done")
    stamp(a, 7)
    a("s_branch L2_fin")

    a.label("L2_aux")
    a("s_cmp_eq_u32 s42, 11")
    a("s_cbranch_scc1 L2_gate")
    gen_conv(a)
    a.label("L2_gate")
    gen_gate(a)
    a.label("L2_fin")
    if DIAG:
        a("s_waitcnt vmcnt(0)")
    stamp(a, 8)
    stamp_store(a)
    a.label("L2_end")
    a("s_endpgm")
    assert all((x * 21846 >> 16) == x // 3 for x in range(768))
    return descriptor(name, 168)

def gen_conv(a):
    a("s_sub_u32 s43, s42, 8")
    a("s_lshl_b32 s44, s43, 8")
    a("s_add_u32 s44, s44, s2")
    a("s_cmp_lg_u32 s42, 8")
    a("s_cbranch_scc1 L2c_noflag")
    a("v_mov_b32 v1, %d" % LDS_FLAG); a("v_mov_b32 v3, 0"); a("ds_write_b32 v1, v3")
    a("s_waitcnt lgkmcnt(0)")
    a.label("L2c_noflag")
    a("s_cmp_ge_u32 s44, 576")
    a("s_cbranch_scc1 L2c_idle")
    a("s_lshl_b32 s45, s44, 12")
    a("s_add_u32 s20, s8, s45"); a("s_addc_u32 s21, s9, 0"); a("s_and_b32 s21, s21, 0xffff")
    a("s_mov_b32 s22, 4096"); a("s_mov_b32 s23, 0x20000")
    a("v_lshlrev_b32 v3, 4, v2")
    a("s_mul_i32 s46, s44, %d" % URT_ROW)
    a("s_add_u32 s46, s46, 0x%x" % OFF_URT)
    a("s_mul_i32 s47, s43, 4608")
    a("s_add_u32 s47, s47, %d" % LDS_UR)
    for q in range(5):
        if q == 4:
            a("s_mov_b32 exec_hi, 0")
        a("s_add_u32 s48, s47, %d" % (1024 * q))
        a("s_mov_b32 m0, s48")
        a("s_add_u32 s48, s46, %d" % (1024 * q))
        a("buffer_load_dwordx4 v3, s[36:39], s48 offen lds")
    a("s_mov_b64 exec, -1")
    a("s_mul_i32 s48, s44, %d" % (2 * HP_ROW))
    a("s_add_u32 s48, s48, 0x%x" % OFF_HP)
    a("v_subrev_u32 v4, 32, v3")
    for it in range(5):
        if it == 0:
            a("buffer_load_dwordx4 v[8:11], v4, s[20:23], 0 offen")
            a("v_add_u32 v5, 16, v4")
            a("buffer_load_dword v12, v5, s[20:23], 0 offen")
        else:
            a("v_add_u32 v5, %d, v4" % (1024 * it))
            a("buffer_load_dwordx4 %s, v5, s[20:23], 0 offen" % v(8 + 8 * it, 4))
            a("buffer_load_dword v%d, v5, s[20:23], 0 offen offset:16" % (12 + 8 * it))
    a("s_add_u32 s49, s48, %d" % HP_ROW)
    for it in range(5):
        b = 8 + 8 * it
        a("s_waitcnt vmcnt(%d)" % (2 * (4 - it) + 2 * it))
        for k in range(4):
            a("v_alignbit_b32 v%d, v%d, v%d, 16" % (48 + 4 * (it & 1) + k, b + k + 1, b + k))
        if it < 4:
            a("buffer_store_dwordx4 %s, v3, s[36:39], s48 offen offset:%d" % (v(b, 4), 1024 * it))
        if it == 4:
            a("s_add_u32 s50, s48, 4096")
            a("buffer_store_dwordx4 %s, v3, s[36:39], s50 offen" % v(b, 4))
            a("s_add_u32 s50, s49, 4096")
            a("buffer_store_dwordx4 %s, v3, s[36:39], s50 offen" % v(48 + 4 * (it & 1), 4))
        else:
            a("buffer_store_dwordx4 %s, v3, s[36:39], s49 offen offset:%d" % (v(48 + 4 * (it & 1), 4), 1024 * it))
    a("v_and_b32 v4, 15, v2"); a("v_lshrrev_b32 v5, 4, v2")
    a("v_and_b32 v6, 7, v4"); a("v_lshlrev_b32 v6, 1, v6")
    a("v_lshrrev_b32 v7, 3, v4")
    a("v_lshl_add_u32 v6, v7, 1, v6")
    a("v_lshl_add_u32 v6, v5, 3, v6")
    a("v_lshlrev_b32 v6, 1, v6")
    a("v_mov_b32 v8, %d" % HP_ROW)
    a("v_cmp_eq_u32 vcc, 0, v7")
    a("v_mov_b32 v9, 0")
    a("s_nop 0")
    a("v_cndmask_b32 v8, v9, v8, vcc")
    a("v_add_u32 v6, v6, v8")
    a("v_lshlrev_b32 v7, 5, v4")
    a("v_lshlrev_b32 v8, 4, v5")
    a("v_sub_u32 v7, v8, v7")
    a("v_add_u32 v7, s47, v7")
    a("v_add_u32 v7, 4064, v7")
    AF, BF, Y = 16, 48, 80
    for r in range(32): a("v_mov_b32 v%d, 0" % (Y + r))
    a("s_waitcnt vmcnt(0)")
    a("s_barrier")
    a("s_mov_b32 s51, 0")
    a.label("L2c_rho")
    a("s_lshl_b32 s52, s51, 6")
    a("s_add_u32 s53, s52, s48")
    for mu in range(8):
        a("buffer_load_dwordx4 %s, v6, s[36:39], s53 offen offset:%d" % (v(AF + 4 * mu, 4), 512 * mu))
    a("v_add_u32 v8, s52, v7")
    a("v_subrev_u32 v8, %d, v8" % (512 * 7))
    for sg in range(8):
        a("ds_read_b128 %s, v8 offset:%d" % (v(BF + 4 * sg, 4), 512 * (7 - sg)))
    a("s_waitcnt lgkmcnt(0)")
    for mu in range(8):
        a("s_waitcnt vmcnt(%d)" % (7 - mu))
        for sg in range(8 - mu):
            t = mu + sg
            a("v_mfma_f32_16x16x32_bf16 %s, %s, %s, %s" % (v(Y + 4 * t, 4), v(AF + 4 * mu, 4), v(BF + 4 * sg, 4), v(Y + 4 * t, 4)))
    a("s_add_u32 s51, s51, 1")
    a("s_cmp_eq_u32 s51, 2")
    a("s_cbranch_scc0 L2c_nob")
    a("s_barrier")
    a.label("L2c_nob")
    a("s_cmp_lt_u32 s51, 8")
    a("s_cbranch_scc1 L2c_rho")
    a("s_lshl_b32 s52, s44, 1")
    a("s_and_b32 s53, s52, 0xfffffffc")
    a("s_add_u32 s54, s10, s53"); a("s_addc_u32 s55, s11, 0")
    a("s_load_dword s56, s[54:55], 0")
    a("s_waitcnt lgkmcnt(0)")
    a("s_and_b32 s57, s52, 2")
    a("s_lshl_b32 s57, s57, 3")
    a("s_lshr_b32 s56, s56, s57")
    a("s_lshl_b32 s56, s56, 16")
    a("v_and_b32 v8, 1, v5")
    a("v_lshrrev_b32 v9, 1, v5")
    a("v_lshlrev_b32 v10, 4, v4")
    a("v_lshl_add_u32 v10, v8, 3, v10")
    a("v_lshl_add_u32 v10, v9, 2, v10")
    a("v_lshlrev_b32 v11, 1, v10")
    a("v_sub_u32 v12, 0, v11")
    a("v_add_u32 v12, s47, v12")
    a("v_add_u32 v12, %d, v12" % (2 * 2044 - 512 * 7))
    for t in range(8):
        a("ds_read_b64 %s, v12 offset:%d" % (v(AF + 2 * t, 2), 512 * (7 - t)))
    a("s_lshl_b32 s52, s44, 12")
    a("s_add_u32 s52, s52, 0x%x" % OFF_YT)
    a("s_nop 7")
    for t in range(8):
        y = Y + 4 * t
        a("v_permlane32_swap_b32 v%d, v%d" % (y, y + 2))
        a("v_permlane32_swap_b32 v%d, v%d" % (y + 1, y + 3))
    a("s_waitcnt lgkmcnt(0)")
    for t in range(8):
        y = Y + 4 * t
        u0, u1 = AF + 2 * t, AF + 2 * t + 1
        a("v_and_b32 v40, 0xffff0000, v%d" % u1); a("v_fma_f32 v%d, v40, s56, v%d" % (y, y))
        a("v_lshlrev_b32 v41, 16, v%d" % u1);     a("v_fma_f32 v%d, v41, s56, v%d" % (y + 2, y + 2))
        a("v_and_b32 v42, 0xffff0000, v%d" % u0); a("v_fma_f32 v%d, v42, s56, v%d" % (y + 1, y + 1))
        a("v_lshlrev_b32 v43, 16, v%d" % u0);     a("v_fma_f32 v%d, v43, s56, v%d" % (y + 3, y + 3))
        a("v_cvt_pk_bf16_f32 v44, v%d, v%d" % (y, y + 2))
        a("v_cvt_pk_bf16_f32 v45, v%d, v%d" % (y + 1, y + 3))
        a("buffer_store_dwordx2 v[44:45], v11, s[36:39], s52 offen offset:%d" % (512 * t))
        a("s_nop 0")
    a("s_branch L2_fin")
    a.label("L2c_idle")
    a("s_barrier")
    a("s_barrier")
    a("s_branch L2_fin")

def gen_gate(a):
    srd(a, 16, 4, 2048 * 1152)
    srd(a, 20, 12, 1152)
    srd(a, 24, 6, 576 * 1152)
    a("v_lshrrev_b32 v3, 3, v2")
    a("v_and_b32 v4, 7, v2")
    a("s_lshl_b32 s43, s2, 3")
    a("v_add_u32 v3, s43, v3")
    a("v_mul_u32_u24 v5, 1152, v3")
    a("v_mul_u32_u24 v6, 144, v4")
    a("v_add_u32 v5, v5, v6")
    for c in range(9):
        a("buffer_load_dwordx4 %s, v5, s[16:19], 0 offen offset:%d" % (v(8 + 4 * c, 4), 16 * c))
        a("buffer_load_dwordx4 %s, v6, s[20:23], 0 offen offset:%d" % (v(44 + 4 * c, 4), 16 * c))
    a("v_and_b32 v80, 15, v2"); a("v_lshrrev_b32 v81, 4, v2")
    a("v_mul_u32_u24 v82, 8*1152, v81")
    a("v_lshl_add_u32 v82, v80, 1, v82")
    a("v_lshlrev_b32 v83, 4, v2")
    a("s_barrier")
    a("s_waitcnt vmcnt(0)")
    a("v_mov_b32 v84, 0")
    for r in range(36):
        a("v_dot2_f32_bf16 v84, v%d, v%d, v84" % (8 + r, 44 + r))
    a("s_nop 3")
    for d in (1, 2, 4):
        a("s_nop 1")
        if d == 1: a("v_mov_b32_dpp v85, v84 quad_perm:[1,0,3,2] row_mask:0xf bank_mask:0xf")
        elif d == 2: a("v_mov_b32_dpp v85, v84 quad_perm:[2,3,0,1] row_mask:0xf bank_mask:0xf")
        else: a("v_mov_b32_dpp v85, v84 row_half_mirror row_mask:0xf bank_mask:0xf")
        a("s_nop 1")
        a("v_add_f32 v84, v84, v85")
    a("v_mul_f32 v84, 0xbfb8aa3b, v84")
    a("v_exp_f32 v84, v84")
    a("s_nop 0")
    a("v_add_f32 v84, 1.0, v84")
    a("v_rcp_f32 v84, v84")
    a("v_lshlrev_b32 v85, 2, v3")
    a("v_mov_b32 v86, 0x%x" % OOB)
    a("v_cmp_eq_u32 vcc, 0, v4")
    a("s_mov_b32 s44, 0x%x" % OFF_G)
    a("s_nop 0")
    a("v_cndmask_b32 v85, v86, v85, vcc")
    a("buffer_store_dword v84, v85, s[36:39], s44 offen")
    a("s_barrier")
    a("s_mov_b32 s45, s2")
    a.label("L2g_frag")
    a("s_mul_hi_u32 s46, s45, 0x%x" % ((1 << 32) // 18 + 1))
    a("s_mul_i32 s47, s46, 18")
    a("s_sub_u32 s47, s45, s47")
    a("s_mul_i32 s47, s47, 32*1152")
    a("s_lshl_b32 s46, s46, 5")
    a("s_add_u32 s47, s47, s46")
    a("v_add_u32 v87, 4608, v82")
    for j in range(8):
        if j < 4: a("buffer_load_ushort v%d, v82, s[24:27], s47 offen offset:%d" % (92 + j, 1152 * j))
        else: a("buffer_load_ushort v%d, v87, s[24:27], s47 offen offset:%d" % (92 + j, 1152 * (j - 4)))
    a("s_lshl_b32 s48, s45, 10")
    a("s_add_u32 s48, s48, 0x%x" % OFF_WOF)
    a("s_waitcnt vmcnt(0)")
    for j in range(4):
        a("v_lshl_or_b32 v%d, v%d, 16, v%d" % (88 + j, 93 + 2 * j, 92 + 2 * j))
    a("buffer_store_dwordx4 v[88:91], v83, s[36:39], s48 offen")
    a("s_add_u32 s45, s45, 256")
    a("s_cmp_lt_u32 s45, 648")
    a("s_waitcnt vmcnt(0)")
    a("s_cbranch_scc1 L2g_frag")


def gen_out(a):
    name = "outproj_kernel"
    kernel_header(a, name)
    a("s_cmp_ge_u32 s2, 192")
    a("s_cbranch_scc1 L3_end")
    a("s_load_dwordx2 s[4:5], s[0:1], 0")
    a("s_load_dwordx2 s[6:7], s[0:1], 80")
    a("s_load_dwordx2 s[14:15], s[0:1], 96")
    a("s_and_b32 s41, s2, 31")
    a("s_lshr_b32 s40, s2, 5")
    a("v_lshrrev_b32 v1, 6, v0")
    a("v_and_b32 v2, 63, v0")
    a("v_readfirstlane_b32 s42, v1")
    a("v_and_b32 v3, 15, v2")
    a("v_lshrrev_b32 v4, 4, v2")
    a("s_waitcnt lgkmcnt(0)")
    srd(a, 16, 4, 2048 * 1152)
    srd(a, 20, 6, 2048 * 1152)
    srd(a, 36, 14, WS_SRD_SIZE)
    stamp_init(a); stamp(a, 0)
    LO, LY = 110592, 147456
    a("v_lshlrev_b32 v5, 4, v2")
    a("v_lshrrev_b32 v6, 2, v3")
    a("v_sub_u32 v6, 0, v6")
    a("v_and_b32 v6, 3, v6")
    a("v_xor_b32 v6, v6, v4")
    a("v_mul_u32_u24 v7, 576, v3")
    a("v_lshl_add_u32 v7, v6, 4, v7")
    a("s_mul_i32 s43, s42, 9216")
    a("s_add_u32 s43, s43, %d" % LO)
    a("v_add_u32 v7, s43, v7")
    OS = 8
    a("s_lshl_b32 s44, s41, 6")
    a("s_lshl_b32 s45, s42, 4")
    a("s_add_u32 s44, s44, s45")
    a("s_movk_i32 s45, 1821")
    for i in range(9):
        a("v_add_u32 v20, %d, v2" % (64 * i))
        a("v_mul_u32_u24 v21, s45, v20")
        a("v_lshrrev_b32 v21, 16, v21")
        a("v_mul_u32_u24 v22, 36, v21")
        a("v_sub_u32 v22, v20, v22")
        a("v_lshrrev_b32 v23, 2, v21")
        a("v_sub_u32 v23, 0, v23")
        a("v_and_b32 v23, 3, v23")
        a("v_xor_b32 v22, v22, v23")
        a("v_add_u32 v21, s44, v21")
        a("v_mul_u32_u24 v21, 1152, v21")
        a("v_lshl_add_u32 v%d, v22, 4, v21" % (OS + i))
    assert all((x * 1821 >> 16) == x // 36 for x in range(576))
    a("s_mov_b32 s46, 0x%x" % OFF_O)
    for i in range(9):
        a("s_add_u32 s47, s43, %d" % (1024 * i))
        a("s_mov_b32 m0, s47")
        a("s_nop 0")
        a("buffer_load_dwordx4 v%d, s[36:39], s46 offen lds" % (OS + i))
    a("s_mul_i32 s48, s40, 6*18*1024")
    a("s_add_u32 s48, s48, 0x%x" % OFF_WOF)
    for q in range(27):
        a("s_add_u32 s49, s42, %d" % (4 * q))
        a("s_mul_hi_u32 s50, s49, 0x%x" % ((1 << 32) // 6 + 1))
        a("s_mul_i32 s51, s50, 6")
        a("s_sub_u32 s51, s49, s51")
        a("s_mul_i32 s51, s51, 18")
        a("s_add_u32 s51, s51, s50")
        a("s_lshl_b32 s51, s51, 10")
        a("s_mov_b32 m0, s51")
        a("s_add_u32 s51, s51, s48")
        a("buffer_load_dwordx4 v5, s[36:39], s51 offen lds")
    a("v_lshrrev_b32 v20, 3, v2"); a("v_and_b32 v21, 7, v2")
    a("s_mul_i32 s49, s40, 96")
    a("s_mul_i32 s50, s42, 24")
    a("s_add_u32 s49, s49, s50")
    a("v_add_u32 v20, s49, v20")
    a("v_lshlrev_b32 v20, 12, v20")
    a("v_lshl_add_u32 v20, v21, 4, v20")
    a("s_lshl_b32 s49, s41, 7")
    a("s_add_u32 s49, s49, 0x%x" % OFF_YT)
    a("s_mul_i32 s50, s42, 3072")
    a("s_add_u32 s50, s50, %d" % LY)
    for i in range(3):
        a("s_mov_b32 m0, s50")
        a("s_add_u32 s50, s50, 1024")
        a("buffer_load_dwordx4 v20, s[36:39], s49 offen lds")
        a("s_add_u32 s49, s49, 8*4096")
    a("v_add_u32 v21, s44, v3")
    a("v_mul_u32_u24 v22, 1152, v21")
    a("v_lshl_add_u32 v22, v4, 3, v22")
    a("s_mul_i32 s52, s40, 192")
    XR = 64
    for mt in range(6):
        a("buffer_load_dwordx2 %s, v22, s[16:19], s52 offen offset:%d" % (v(XR + 2 * mt, 2), 32 * mt))
    a("v_lshlrev_b32 v23, 2, v21")
    a("s_mov_b32 s53, 0x%x" % OFF_G)
    a("buffer_load_dword v76, v23, s[36:39], s53 offen")
    ACC, AF, BF = 32, 80, 104
    stamp(a, 1)
    def step(ks, first):
        kh = ks % 9
        a("ds_read_b128 %s, v7 offset:%d" % (v(BF, 4), 64 * kh))
        for mt in range(6):
            a("ds_read_b128 %s, v5 offset:%d" % (v(AF + 4 * mt, 4), (mt * 18 + ks) * 1024 % 65536)) if (mt * 18 + ks) * 1024 < 65536 else a("ds_read_b128 %s, v6 offset:%d" % (v(AF + 4 * mt, 4), (mt * 18 + ks) * 1024 - 65536))
        for mt in range(6):
            a("s_waitcnt lgkmcnt(%d)" % (5 - mt))
            c = "0" if first else v(ACC + 4 * mt, 4)
            a("v_mfma_f32_16x16x32_bf16 %s, %s, %s, %s" % (v(ACC + 4 * mt, 4), v(AF + 4 * mt, 4), v(BF, 4), c))
    a("v_add_u32 v6, 0x10000, v5")
    a("s_waitcnt vmcnt(%d)" % (46 - 9 - 9))
    a("s_barrier")
    stamp(a, 2)
    for ks in range(6): step(ks, ks == 0)
    a("s_waitcnt vmcnt(%d)" % (46 - 9 - 18))
    a("s_barrier")
    for ks in range(6, 9): step(ks, False)
    a("s_add_u32 s46, s46, 576")
    for i in range(9):
        a("s_add_u32 s47, s43, %d" % (1024 * i))
        a("s_mov_b32 m0, s47")
        a("s_nop 0")
        a("buffer_load_dwordx4 v%d, s[36:39], s46 offen lds" % (OS + i))
    a("s_waitcnt vmcnt(0)")
    a("s_barrier")
    stamp(a, 3)
    for ks in range(9, 18): step(ks, False)
    stamp(a, 4)
    a("v_lshrrev_b32 v20, 2, v2"); a("v_and_b32 v20, 3, v20")
    a("v_lshl_add_u32 v20, v4, 2, v20")
    a("v_lshlrev_b32 v20, 7, v20")
    a("v_and_b32 v21, 3, v2")
    a("v_lshl_add_u32 v20, v21, 3, v20")
    a("s_lshl_b32 s49, s42, 5")
    a("s_add_u32 s49, s49, %d" % LY)
    a("v_add_u32 v20, s49, v20")
    YR = 80
    for mt in range(6):
        a("ds_read_b64_tr_b16 %s, v20 offset:%d" % (v(YR + 2 * mt, 2), 2048 * mt))
    a("v_sub_f32 v77, 1.0, v76")
    a("s_waitcnt lgkmcnt(0)")
    for mt in range(6):
        for r in range(4):
            xr = XR + 2 * mt + r // 2; yr = YR + 2 * mt + r // 2
            if r % 2 == 0:
                a("v_lshlrev_b32 v24, 16, v%d" % xr); a("v_lshlrev_b32 v25, 16, v%d" % yr)
            else:
                a("v_and_b32 v24, 0xffff0000, v%d" % xr); a("v_and_b32 v25, 0xffff0000, v%d" % yr)
            a("v_mul_f32 v24, v24, v25")
            a("v_mul_f32 v24, v24, v77")
            a("v_fma_f32 v%d, v%d, v76, v24" % (ACC + 4 * mt + r, ACC + 4 * mt + r))
        a("v_cvt_pk_bf16_f32 v26, v%d, v%d" % (ACC + 4 * mt, ACC + 4 * mt + 1))
        a("v_cvt_pk_bf16_f32 v27, v%d, v%d" % (ACC + 4 * mt + 2, ACC + 4 * mt + 3))
        a("buffer_store_dwordx2 v[26:27], v22, s[20:23], s52 offen offset:%d" % (32 * mt))
    stamp(a, 7)
    if DIAG:
        a("s_waitcnt vmcnt(0)")
    stamp(a, 8)
    stamp_store(a)
    a.label("L3_end")
    a("s_endpgm")
    return descriptor(name, 128)

def main():
    global DIAG
    DIAG = "--diag" in sys.argv
    for x in sys.argv:
        if x.startswith("--exp="): EXP.update(x[6:].split(","))
    sys.argv = [x for x in sys.argv if not x.startswith("--")]
    a = Asm()
    hdr = open("gated_mix__mha_block__ssm_conv_h3__prompt.s.ref").read().split("\n")
    head = [l for l in hdr if l.startswith(";") and "@launch" not in l and "Override" not in l and "grid=ceil" not in l]
    launches = ["; @launch kernel=qkv_proj_kernel grid=(256,1,1) block=(768,1,1) lds=131072",
                "; @launch kernel=attn_kernel grid=(256,1,1) block=(768,1,1) lds=%d" % LDS2,
                "; @launch kernel=outproj_kernel grid=(192,1,1) block=(256,1,1) lds=159744"]
    a.raw("\n".join(head))
    a.raw("\n".join(launches))
    a.raw('.amdgcn_target "amdgcn-amd-amdhsa--gfx950"')
    a.raw(".text")
    descs = []
    descs.append(gen_qkv(a))
    descs.append(gen_attn(a))
    descs.append(gen_out(a))
    a.raw('.section .rodata,"a"')
    for d in descs: a.raw(d)
    out = sys.argv[1] if len(sys.argv) > 1 else "out.s"
    open(out, "w").write(a.text())
    probs = check_seq(a.lines, "all")
    for p in probs: print("HAZARD", p)
    print("wrote", out, len(a.lines), "lines")

if __name__ == "__main__":
    main()
```

```python
import sys, struct
from asmlib import *

NAME = "gated_mix__mha_block__ssm_conv_h3__prompt_kernel"
KV_HEAD = 147456
Q_HEAD  = 73728
OFF_KV  = 0
OFF_Q   = OFF_KV + 32 * KV_HEAD
URT_ROW = 4096
OFF_URT = OFF_Q + 32 * Q_HEAD
HP_ROW  = 5120
OFF_HP  = OFF_URT + 576 * URT_ROW
OFF_YT  = OFF_HP + 576 * 2 * HP_ROW
O_HEAD  = 2048 * 36
OFF_O   = OFF_YT + 576 * 4096
OFF_G   = OFF_O + 32 * O_HEAD
OFF_WOF = OFF_G + 2048 * 4
OFF_MX  = OFF_WOF + 648 * 1024
OFF_CNT = OFF_MX + 256 * 8 * 512
WS_USED = OFF_CNT + 64 * 128
WS_SRD_SIZE = 0x2000000
assert WS_USED <= WS_SRD_SIZE and OFF_CNT % 128 == 0
C1, C2, C3, C4, C5 = 0, 16, 25, 29, 30
QSCALE = 1.4426950408889634 / (18.0 ** 0.5)
def f32bits(x): return struct.unpack("<I", struct.pack("<f", x))[0]
OOB = 0x80000000
LDS_KV = 147456
LDS_UR = LDS_KV
LDS_FLAG = LDS_UR + 3 * 4608
FA, FB, FBAD, GO1, CNT, GO2A, GO2B = LDS_FLAG, LDS_FLAG + 4, LDS_FLAG + 8, LDS_FLAG + 12, LDS_FLAG + 16, LDS_FLAG + 32, LDS_FLAG + 36
LDS_TOTAL = LDS_FLAG + 64
VMASK = 0x0003FFFF
SPIN_MAX = 400000

DIAG = False
EXP = set()
NST = 16
def stamp(a, i):
    if not DIAG: return
    a("s_memtime s[76:77]"); a("s_waitcnt lgkmcnt(0)"); a("s_mov_b32 s%d, s76" % (80 + i))
def rstamp(a, i):
    if not DIAG: return
    a("s_memrealtime s[76:77]"); a("s_waitcnt lgkmcnt(0)"); a("s_mov_b32 s%d, s76" % (80 + i))
def stamp_init(a):
    if not DIAG: return
    for i in range(NST): a("s_mov_b32 s%d, 0" % (80 + i))
def stamp_store(a):
    if not DIAG: return
    a("s_waitcnt vmcnt(0)")
    a("s_mov_b32 s38, 0x4000000")
    a("v_lshrrev_b32 v1, 6, v0"); a("s_lshl_b32 s78, s2, 4"); a("v_add_u32 v1, s78, v1")
    a("v_lshlrev_b32 v1, 6, v1"); a("v_add_u32 v1, 0x3000000, v1")
    for i in range(NST):
        a("v_mov_b32 v2, s%d" % (80 + i))
        a("buffer_store_dword v2, v1, s[36:39], 0 offen offset:%d" % (4 * i))

def srd(a, dst, ptr, size):
    a("s_mov_b32 s%d, s%d" % (dst, ptr))
    a("s_and_b32 s%d, s%d, 0xffff" % (dst + 1, ptr + 1))
    a("s_mov_b32 s%d, 0x%x" % (dst + 2, size))
    a("s_mov_b32 s%d, 0x20000" % (dst + 3))

def lds_arrive(a, addr, va=1, vb=3):
    a("v_mov_b32 v%d, %d" % (va, addr)); a("v_mov_b32 v%d, 1" % vb)
    a("s_mov_b64 exec, 1"); a("ds_add_u32 v%d, v%d" % (va, vb)); a("s_mov_b64 exec, -1")
def lds_set(a, addr, va=1, vb=3):
    a("v_mov_b32 v%d, %d" % (va, addr)); a("v_mov_b32 v%d, 1" % vb)
    a("ds_write_b32 v%d, v%d" % (va, vb)); a("s_waitcnt lgkmcnt(0)")
def lds_spin(a, addr, target, va=1, vb=3, st=56, sleep=True):
    l = a.uid("Lspin")
    a("v_mov_b32 v%d, %d" % (va, addr))
    a.label(l)
    a("ds_read_b32 v%d, v%d" % (vb, va)); a("s_waitcnt lgkmcnt(0)")
    a("v_readfirstlane_b32 s%d, v%d" % (st, vb))
    a("s_cmp_ge_u32 s%d, %d" % (st, target))
    a("s_cbranch_scc1 %s_x" % l)
    if sleep: a("s_sleep 1")
    a("s_branch %s" % l)
    a.label(l + "_x")
def poll_global(a, voff, vtgt, vt=3, sb=57):
    l = a.uid("Lpoll")
    a("s_mov_b32 s%d, %d" % (sb, SPIN_MAX))
    a.label(l)
    a("buffer_load_dword v%d, v%d, s[36:39], 0 offen sc1" % (vt, voff))
    a("s_waitcnt vmcnt(0)")
    a("v_cmp_lt_u32 vcc, v%d, v%d" % (vt, vtgt))
    a("s_nop 3")
    a("s_cmp_eq_u64 vcc, 0")
    a("s_cbranch_scc1 %s_x" % l)
    a("s_sleep 2")
    a("s_sub_u32 s%d, s%d, 1" % (sb, sb))
    a("s_cmp_lg_u32 s%d, 0" % sb)
    a("s_cbranch_scc1 %s" % l)
    a.label(l + "_x")
def atomic_inc(a, sidx, va=1, vb=3):
    a("s_lshl_b32 s57, s%d, 7" % sidx); a("s_add_u32 s57, s57, 0x%x" % OFF_CNT)
    a("v_mov_b32 v%d, s57" % va); a("v_mov_b32 v%d, 1" % vb)
    a("s_mov_b64 exec, 1")
    a("buffer_atomic_add v%d, v%d, s[36:39], 0 offen sc1" % (vb, va))
    a("s_mov_b64 exec, -1")

def phase1(a):
    a("s_load_dwordx4 s[4:7], s[0:1], 0")
    a("s_load_dwordx4 s[8:11], s[0:1], 32")
    a("s_load_dwordx2 s[12:13], s[0:1], 48")
    a("s_load_dwordx2 s[14:15], s[0:1], 96")
    a("s_and_b32 s40, s2, 1"); a("s_lshl_b32 s40, s40, 3")
    a("s_lshr_b32 s43, s2, 3"); a("s_and_b32 s43, s43, 7")
    a("s_add_u32 s40, s40, s43")
    a("s_lshr_b32 s41, s2, 1"); a("s_and_b32 s41, s41, 3"); a("s_lshl_b32 s41, s41, 2")
    a("s_lshr_b32 s43, s2, 6"); a("s_add_u32 s41, s41, s43")
    a("v_lshrrev_b32 v1, 6, v0")
    a("v_and_b32 v2, 63, v0")
    a("v_readfirstlane_b32 s42, v1")
    a("v_and_b32 v3, 15, v2")
    a("v_lshrrev_b32 v4, 4, v2")
    a("s_waitcnt lgkmcnt(0)")
    srd(a, 36, 14, WS_SRD_SIZE)
    stamp_init(a); stamp(a, 0)
    a("s_cmp_ge_u32 s42, 8")
    a("s_cbranch_scc1 L1_side")
    srd(a, 16, 4, 2048 * 1152)
    srd(a, 20, 6, 576 * 3456)
    a("v_lshrrev_b32 v5, 3, v2"); a("v_and_b32 v6, 7, v2")
    a("s_lshl_b32 s43, s41, 7"); a("s_lshl_b32 s44, s42, 4"); a("s_add_u32 s43, s43, s44")
    a("v_add_u32 v5, s43, v5")
    a("s_movk_i32 s44, 1152")
    a("v_mul_lo_u32 v5, v5, s44")
    a("v_xor_b32 v7, v6, v4")
    a("v_lshl_add_u32 v8, v7, 4, v5")
    a("v_xor_b32 v7, 4, v7")
    a("v_lshl_add_u32 v9, v7, 4, v5")
    a("v_add_u32 v9, 9216, v9")
    a("s_and_b32 s44, s42, 1"); a("s_lshl_b32 s44, s44, 3")
    a("v_lshlrev_b32 v5, 1, v4"); a("v_add_u32 v5, s44, v5"); a("v_xor_b32 v5, v5, v3")
    a("v_min_u32 v5, 13, v5")
    a("s_movk_i32 s44, 3456")
    a("v_mul_lo_u32 v6, v4, s44")
    a("v_lshl_add_u32 v10, v5, 4, v6")
    a("s_mul_i32 s45, s40, 216"); a("s_mul_i32 s46, s42, 8*3456"); a("s_add_u32 s46, s46, s45")
    a("s_mov_b32 s47, 0")
    a("s_lshl_b32 s48, s42, 11")
    def dma_groups():
        g0 = ["s_mov_b32 m0, s48", "s_add_u32 s49, s48, 1024", "buffer_load_dwordx4 v8, s[16:19], s47 offen lds"]
        g1 = ["s_mov_b32 m0, s49", "s_add_u32 s49, s48, 16384", "buffer_load_dwordx4 v9, s[16:19], s47 offen lds"]
        g2 = ["s_mov_b32 m0, s49", "s_add_u32 s49, s48, 17408", "buffer_load_dwordx4 v10, s[20:23], s46 offen lds"]
        g3 = ["s_mov_b32 m0, s49", "s_add_u32 s50, s46, 4*3456", "buffer_load_dwordx4 v10, s[20:23], s50 offen lds",
              "s_add_u32 s46, s46, 64*3456", "s_add_u32 s47, s47, 128", "s_add_u32 s48, s48, 32768", "s_and_b32 s48, s48, 0x1ffff"]
        return [g0, g1, g2, g3]
    def dma_stage():
        for g in dma_groups():
            for x in g: a(x)
    dma_stage()
    a("s_and_b32 s51, s42, 3"); a("s_lshr_b32 s52, s42, 2")
    a("s_lshl_b32 s44, s51, 5")
    a("v_add_u32 v5, s44, v3"); a("v_lshlrev_b32 v5, 7, v5")
    a("v_lshrrev_b32 v6, 1, v3"); a("v_xor_b32 v6, v6, v4")
    a("v_lshl_add_u32 v11, v6, 4, v5")
    a("v_xor_b32 v12, 64, v11")
    a("v_add_u32 v13, 0x10000, v11"); a("v_add_u32 v14, 0x10000, v12")
    AW = 16
    a("v_lshrrev_b32 v6, 2, v2"); a("v_and_b32 v6, 3, v6"); a("v_and_b32 v7, 3, v2")
    a("v_lshl_add_u32 v1, v4, 3, v6"); a("v_lshlrev_b32 v1, 8, v1")
    a("v_and_b32 v5, 1, v7"); a("v_lshl_add_u32 v1, v5, 3, v1")
    a("v_lshrrev_b32 v7, 1, v7"); a("v_lshl_add_u32 v1, v7, 4, v1")
    a("v_add_u32 v1, 16384, v1")
    a("v_and_b32 v5, 1, v4"); a("v_lshlrev_b32 v5, 3, v5"); a("v_lshl_add_u32 v5, v6, 1, v5")
    a("s_lshl_b32 s44, s52, 3")
    for i in range(4):
        a("s_add_u32 s45, s44, %d" % (2 * i))
        a("v_xor_b32 v6, s45, v5")
        a("v_lshl_add_u32 v%d, v6, 4, v1" % (AW + i))
        a("v_add_u32 v%d, 0x10000, v%d" % (AW + 4 + i, AW + i))
    dma_stage()
    ACC, AF, BF = 32, 64, 96
    TA_, TS_ = 112, 120
    a("s_lshl_b32 s44, s51, 5")
    a("v_add_u32 v5, s44, v3")
    a("s_movk_i32 s44, 304")
    a("v_mul_lo_u32 v5, v5, s44")
    a("s_mul_i32 s44, s40, 6"); a("s_sub_i32 s44, 32, s44"); a("s_max_i32 s44, s44, 0"); a("s_min_i32 s44, s44, 6")
    a("s_mul_i32 s54, s44, 18")
    a("s_lshl_b32 s55, s52, 6")
    a("v_lshl_add_u32 v6, v4, 2, s55")
    a("s_movk_i32 s56, 3641")
    a("v_mov_b32 v24, 1.0")
    a("v_mov_b32 v25, 0x%x" % f32bits(QSCALE))
    for i in range(4):
        for p in range(2):
            k = 2 * i + p
            a("v_add_u32 v26, %d, v6" % (16 * i + 2 * p))
            a("v_min_u32 v26, 110, v26")
            a("v_mul_u32_u24 v27, s56, v26")
            a("v_cmp_gt_u32 vcc, s54, v26")
            a("v_lshrrev_b32 v27, 16, v27")
            a("v_mul_u32_u24 v27, 12, v27")
            a("v_cndmask_b32 v%d, v24, v25, vcc" % (TS_ + k))
            a("v_lshl_add_u32 v27, v26, 1, v27")
            a("v_add_u32 v%d, v27, v5" % (TA_ + k))
    dma_stage()
    def reads(u):
        st, kk = divmod(u, 2)
        slot = st & 3; hi = slot >> 1; off = (slot & 1) * 32768; buf = u & 1
        out = []
        bb = (13 if hi else 11) + kk
        out.append("ds_read_b128 %s, v%d offset:%d" % (v(BF + 8 * buf, 4), bb, off))
        out.append("ds_read_b128 %s, v%d offset:%d" % (v(BF + 8 * buf + 4, 4), bb, off + 2048))
        for i in range(4):
            ar = AW + 4 * hi + i
            out.append("ds_read_b64_tr_b16 %s, v%d offset:%d" % (v(AF + 16 * buf + 4 * i, 2), ar, off + kk * 8192))
            out.append("ds_read_b64_tr_b16 %s, v%d offset:%d" % (v(AF + 16 * buf + 4 * i + 2, 2), ar, off + kk * 8192 + 1024))
        return out
    def mf(u, j):
        buf = u & 1; i, n = j >> 1, j & 1
        c = "0" if u == 0 else v(ACC + 8 * i + 4 * n, 4)
        a("v_mfma_f32_16x16x32_bf16 %s, %s, %s, %s" % (v(ACC + 8 * i + 4 * n, 4), v(AF + 16 * buf + 4 * i, 4), v(BF + 8 * buf + 4 * n, 4), c))
    stamp(a, 1)
    a("s_waitcnt vmcnt(8)")
    a("s_barrier")
    for x in reads(0): a(x)
    NU = 18
    for u in range(NU):
        st, kk = divmod(u, 2)
        last = (u == NU - 1)
        dg = []
        if kk == 1 and not last:
            a("s_waitcnt vmcnt(%d)" % (4 if st <= 6 else 0))
            a("s_barrier")
            if st + 3 <= 8: dg = dma_groups()
        nr = [] if last else reads(u + 1)
        waits = {0: 6, 2: 8, 4: 10, 6: 10} if not last else {0: 6, 2: 4, 4: 2, 6: 0}
        for j in range(8):
            if j in waits: a("s_waitcnt lgkmcnt(%d)" % waits[j])
            mf(u, j)
            if j < 5 and nr:
                a(nr[2 * j]); a(nr[2 * j + 1])
            if dg and j >= 4:
                for x in dg[j - 4]: a(x)
    stamp(a, 2)
    a("s_barrier")
    for i in range(4):
        for p in range(2):
            k = 2 * i + p
            for n in range(2):
                r0 = ACC + 8 * i + 4 * n + 2 * p
                a("v_mul_f32 v%d, v%d, v%d" % (r0, TS_ + k, r0))
                a("v_mul_f32 v%d, v%d, v%d" % (r0 + 1, TS_ + k, r0 + 1))
    for i in range(4):
        for p in range(2):
            for n in range(2):
                r0 = ACC + 8 * i + 4 * n + 2 * p
                a("v_cvt_pk_bf16_f32 v%d, v%d, v%d" % (r0, r0, r0 + 1))
    for i in range(4):
        for p in range(2):
            k = 2 * i + p
            for n in range(2):
                r0 = ACC + 8 * i + 4 * n + 2 * p
                a("ds_write_b32 v%d, v%d offset:%d" % (TA_ + k, r0, n * 16 * 304))
    a("s_waitcnt lgkmcnt(0)")
    a("s_branch L1_out")

    a.label("L1_side")
    a("s_sub_u32 s43, s42, 8")
    srd(a, 16, 4, 2048 * 1152); srd(a, 20, 6, 576 * 3456)
    a("s_lshr_b32 s44, s2, 3"); a("s_lshl_b32 s44, s44, 2"); a("s_add_u32 s44, s44, s43"); a("s_lshl_b32 s44, s44, 7")
    a("s_lshr_b32 s45, s2, 1"); a("s_and_b32 s45, s45, 3"); a("s_mul_i32 s45, s45, 512*1152")
    a("s_and_b32 s46, s2, 1"); a("s_mul_i32 s46, s46, 1664")
    a("s_movk_i32 s47, 7282"); a("s_mov_b32 s48, 34953")
    for e in range(2):
        a("v_lshl_add_u32 v5, v2, 1, s44");
        if e: a("v_add_u32 v5, 1, v5")
        a("v_mul_u32_u24 v6, s47, v5"); a("v_lshrrev_b32 v6, 16, v6"); a("v_mul_u32_u24 v7, 9, v6"); a("v_sub_u32 v7, v5, v7")
        a("v_mul_u32_u24 v6, 1152, v6"); a("v_lshl_add_u32 v6, v7, 7, v6"); a("v_add_u32 v6, s45, v6")
        a("v_mov_b32 v8, 0x%x" % OOB); a("v_cmp_gt_u32 vcc, 4608, v5"); a("s_nop 1"); a("v_cndmask_b32 v6, v8, v6, vcc")
        a("buffer_load_dword v%d, v6, s[16:19], 0 offen" % (24 + 2 * e))
        a("v_subrev_u32 v5, 4608, v5")
        a("v_mul_u32_u24 v6, s48, v5"); a("v_lshrrev_b32 v6, 19, v6"); a("v_mul_u32_u24 v7, 15, v6"); a("v_sub_u32 v7, v5, v7")
        a("v_mul_u32_u24 v6, 3456, v6"); a("v_lshl_add_u32 v6, v7, 7, v6"); a("v_add_u32 v6, s46, v6")
        a("v_cmp_gt_u32 vcc, 8640, v5"); a("s_nop 1"); a("v_cndmask_b32 v6, v8, v6, vcc")
        a("buffer_load_dword v%d, v6, s[20:23], 0 offen" % (25 + 2 * e))
    a("s_cmp_lg_u32 s42, 8")
    a("s_cbranch_scc1 L1_noflag")
    a("v_lshlrev_b32 v1, 2, v2"); a("v_add_u32 v1, %d, v1" % LDS_FLAG)
    a("v_mov_b32 v5, 0"); a("v_mov_b32 v6, 2")
    a("v_cmp_le_u32 vcc, 4, v2"); a("s_nop 1"); a("v_cndmask_b32 v5, v5, v6, vcc")
    a("v_cmp_le_u32 vcc, 8, v2"); a("v_mov_b32 v6, 0"); a("s_nop 0"); a("v_cndmask_b32 v5, v5, v6, vcc")
    a("s_mov_b64 exec, 0xffff")
    a("ds_write_b32 v1, v5")
    a("s_mov_b64 exec, -1")
    a.label("L1_noflag")
    a("s_load_dwordx2 s[16:17], s[0:1], 88")
    a("s_waitcnt lgkmcnt(0)")
    srd(a, 20, 16, 256)
    a("s_cmp_lg_u32 s42, 11")
    a("s_cbranch_scc1 L1_noinit")
    a("s_cmp_lg_u32 s2, 0")
    a("s_cbranch_scc1 L1_noinit")
    a("v_lshlrev_b32 v1, 7, v2"); a("v_add_u32 v1, 0x%x, v1" % OFF_CNT); a("v_mov_b32 v5, 0")
    a("buffer_store_dword v5, v1, s[36:39], 0 offen sc1")
    a("s_waitcnt vmcnt(0)")
    a("v_mov_b32 v1, 0"); a("v_mov_b32 v5, 1")
    a("s_mov_b64 exec, 1")
    a("buffer_store_dword v5, v1, s[20:23], 0 offen sc1")
    a("s_mov_b64 exec, -1")
    a.label("L1_noinit")
    a("v_mov_b32 v28, 0")
    a("s_cmp_lt_u32 s2, 144")
    a("s_cbranch_scc0 L1_misc")
    srd(a, 24, 8, 2048 * 1152); srd(a, 28, 10, 2048 * 1152); srd(a, 32, 12, 576 * 8)
    a("s_mul_hi_u32 s44, s2, 0x%x" % ((1 << 32) // 9 + 1))
    a("s_mul_i32 s45, s44, 9"); a("s_sub_u32 s45, s2, s45")
    a("v_and_b32 v10, 31, v2"); a("v_lshrrev_b32 v9, 5, v2")
    a("s_lshl_b32 s46, s43, 1"); a("v_add_u32 v9, s46, v9")
    a("s_lshl_b32 s46, s44, 7"); a("v_lshl_add_u32 v11, v9, 4, s46")
    a("s_lshl_b32 s46, s45, 7"); a("v_lshl_add_u32 v12, v10, 2, s46")
    a("s_movk_i32 s46, 1152")
    a("v_mul_lo_u32 v13, v11, s46"); a("v_add_u32 v13, v13, v12")
    a("v_subrev_u32 v14, 3456, v13")
    a("v_mov_b32 v15, 0x%x" % OOB)
    a("v_cmp_eq_u32 vcc, 0, v11")
    a("s_lshl_b32 s46, s45, 6")
    a("v_lshl_add_u32 v17, v10, 1, s46")
    a("v_cndmask_b32 v14, v14, v15, vcc")
    a("v_lshlrev_b32 v16, 3, v17")
    a("v_lshlrev_b32 v17, 12, v17")
    a("v_lshlrev_b32 v18, 1, v11")
    a("v_sub_u32 v17, v17, v18")
    a("v_add_u32 v17, 0x%x, v17" % (OFF_URT + 4064))
    KR, VR, WR = 32, 52, 68
    a("s_movk_i32 s48, 4608"); a("s_movk_i32 s49, 9216"); a("s_movk_i32 s50, 13824")
    soffs = ["0", "s48", "s49", "s50"]
    a("s_barrier")
    for i in range(3): a("buffer_load_dword v%d, v14, s[24:27], 0 offen offset:%d" % (KR + i, 1152 * i))
    for i in range(16): a("buffer_load_dword v%d, v13, s[24:27], %s offen offset:%d" % (KR + 3 + i, soffs[i // 4], 1152 * (i % 4)))
    a("buffer_load_dwordx4 %s, v16, s[32:35], 0 offen" % v(WR, 4))
    for i in range(16): a("buffer_load_dword v%d, v13, s[28:31], %s offen offset:%d" % (VR + i, soffs[i // 4], 1152 * (i % 4)))
    a("s_barrier")
    a("s_barrier")
    a("s_waitcnt vmcnt(0)")
    WF = 72
    for c in range(2):
        for p in range(2):
            src = WR + 2 * c + p
            a("v_lshlrev_b32 v%d, 16, v%d" % (WF + 4 * c + 2 * p, src))
            a("v_and_b32 v%d, 0xffff0000, v%d" % (WF + 4 * c + 2 * p + 1, src))
    KL, KH = 80, 100
    for i in range(19):
        a("v_lshlrev_b32 v%d, 16, v%d" % (KL + i, KR + i))
        a("v_and_b32 v%d, 0xffff0000, v%d" % (KH + i, KR + i))
    a("buffer_load_dword v19, v28, s[20:23], 0 offen sc1")
    a("s_barrier")
    RES = 120
    for c in range(2):
        KX = KL if c == 0 else KH
        for i0 in range(0, 16, 4):
            for i in range(i0, i0 + 4): a("v_mul_f32 v%d, v%d, v%d" % (RES + 16 * c + i, KX + i, WF + 4 * c + 3))
            for t in (2, 1, 0):
                for i in range(i0, i0 + 4): a("v_fmac_f32 v%d, v%d, v%d" % (RES + 16 * c + i, KX + i + 3 - t, WF + 4 * c + t))
            for i in range(i0, i0 + 4):
                if c == 0: a("v_lshlrev_b32 v%d, 16, v%d" % (20 + i - i0, VR + i))
                else: a("v_and_b32 v%d, 0xffff0000, v%d" % (20 + i - i0, VR + i))
            for i in range(i0, i0 + 4): a("v_mul_f32 v%d, v%d, v%d" % (RES + 16 * c + i, RES + 16 * c + i, 20 + i - i0))
            if i0 in (4, 12): a("s_barrier")
    for c in range(2):
        PK = 152 + 8 * c
        for e in range(8):
            a("v_cvt_pk_bf16_f32 v%d, v%d, v%d" % (PK + e, RES + 16 * c + 15 - 2 * e, RES + 16 * c + 14 - 2 * e))
    a("s_movk_i32 s46, %d" % URT_ROW)
    a("buffer_store_dwordx4 v[152:155], v17, s[36:39], 0 offen offset:0 sc1")
    a("buffer_store_dwordx4 v[156:159], v17, s[36:39], 0 offen offset:16 sc1")
    a("buffer_store_dwordx4 v[160:163], v17, s[36:39], s46 offen offset:0 sc1")
    a("buffer_store_dwordx4 v[164:167], v17, s[36:39], s46 offen offset:16 sc1")
    a("s_barrier")
    a("s_branch L1_hprep")
    a.label("L1_misc")
    a("s_load_dwordx2 s[16:17], s[0:1], 16")
    a("s_load_dwordx2 s[18:19], s[0:1], 72")
    a("s_waitcnt lgkmcnt(0)")
    srd(a, 24, 4, 2048 * 1152); srd(a, 28, 18, 1152); srd(a, 32, 16, 576 * 1152)
    a("s_sub_u32 s44, s2, 144"); a("s_lshl_b32 s44, s44, 2"); a("s_add_u32 s44, s44, s43")
    a("v_lshrrev_b32 v5, 3, v2"); a("v_and_b32 v6, 7, v2")
    a("s_lshl_b32 s45, s44, 3")
    a("v_add_u32 v5, s45, v5")
    a("v_mul_u32_u24 v7, 1152, v5"); a("v_mul_u32_u24 v8, 144, v6"); a("v_add_u32 v7, v7, v8")
    a("v_mul_u32_u24 v110, 8*1152, v4"); a("v_lshl_add_u32 v110, v3, 1, v110"); a("v_add_u32 v111, 4608, v110"); a("v_lshlrev_b32 v112, 4, v2")
    a("s_barrier")
    for c in range(9):
        a("buffer_load_dwordx4 %s, v7, s[24:27], 0 offen offset:%d" % (v(12 + 4 * c, 4), 16 * c))
        a("buffer_load_dwordx4 %s, v8, s[28:31], 0 offen offset:%d" % (v(44 + 4 * c + 4, 4), 16 * c))
    for r in range(2):
        a("s_add_u32 s45, s44, %d" % (448 * r))
        a("s_mul_hi_u32 s46, s45, 0x%x" % ((1 << 32) // 18 + 1))
        a("s_mul_i32 s47, s46, 18"); a("s_sub_u32 s47, s45, s47")
        a("s_mul_i32 s47, s47, 32*1152"); a("s_lshl_b32 s46, s46, 5"); a("s_add_u32 s47, s47, s46")
        a("s_cmp_lt_u32 s45, 648"); a("s_cselect_b32 s47, s47, 0")
        for j in range(8):
            a("buffer_load_ushort v%d, v%d, s[32:35], s47 offen offset:%d" % (92 + 8 * r + j, 110 if j < 4 else 111, 1152 * (j % 4)))
    a("s_barrier")
    a("s_barrier")
    a("s_barrier")
    a("s_waitcnt vmcnt(0)")
    a("buffer_load_dword v9, v28, s[20:23], 0 offen sc1")
    a("v_mov_b32 v84, 0")
    for r in range(36): a("v_dot2_f32_bf16 v84, v%d, v%d, v84" % (12 + r, 48 + r))
    a("s_barrier")
    a("s_nop 3")
    for d in (1, 2, 4):
        a("s_nop 1")
        if d == 1: a("v_mov_b32_dpp v85, v84 quad_perm:[1,0,3,2] row_mask:0xf bank_mask:0xf")
        elif d == 2: a("v_mov_b32_dpp v85, v84 quad_perm:[2,3,0,1] row_mask:0xf bank_mask:0xf")
        else: a("v_mov_b32_dpp v85, v84 row_half_mirror row_mask:0xf bank_mask:0xf")
        a("s_nop 1")
        a("v_add_f32 v84, v84, v85")
    a("v_mul_f32 v84, 0xbfb8aa3b, v84"); a("v_exp_f32 v84, v84"); a("s_nop 0")
    a("v_add_f32 v84, 1.0, v84"); a("v_rcp_f32 v84, v84")
    a("v_lshlrev_b32 v85, 2, v5"); a("v_mov_b32 v86, 0x%x" % OOB)
    a("v_cmp_eq_u32 vcc, 0, v6"); a("s_mov_b32 s46, 0x%x" % OFF_G); a("s_nop 0")
    a("v_cndmask_b32 v85, v86, v85, vcc")
    a("v_cmp_gt_u32 vcc, 2048, v5"); a("s_nop 1"); a("v_cndmask_b32 v85, v86, v85, vcc")
    a("buffer_store_dword v84, v85, s[36:39], s46 offen sc1")
    a("s_barrier")
    for r in range(2):
        for j in range(4): a("v_lshl_or_b32 v%d, v%d, 16, v%d" % (88 + j, 93 + 8 * r + 2 * j, 92 + 8 * r + 2 * j))
        a("s_add_u32 s45, s44, %d" % (448 * r))
        a("s_lshl_b32 s46, s45, 10"); a("s_add_u32 s46, s46, 0x%x" % OFF_WOF)
        a("s_cmp_lt_u32 s45, 648"); a("s_cbranch_scc0 L1_nw%d" % r)
        a("buffer_store_dwordx4 v[88:91], v112, s[36:39], s46 offen sc1")
        a("s_nop 1")
        a.label("L1_nw%d" % r)
    a("s_barrier")
    a("s_barrier")
    a("s_waitcnt vmcnt(0)")
    a("v_mov_b32 v19, v9")
    a("s_barrier")
    a.label("L1_hprep")
    a("s_cmp_eq_u32 s42, 11")
    a("s_cbranch_scc0 L1_sidedone")
    a("s_waitcnt vmcnt(0)")
    a("v_readfirstlane_b32 s56, v19")
    a("s_cmp_eq_u32 s56, 1")
    a("s_cbranch_scc1 L1_sidedone")
    a("v_mov_b32 v5, 0"); a("v_mov_b32 v6, 1")
    l = "L1_initpoll"
    a("s_mov_b32 s57, %d" % SPIN_MAX)
    a.label(l)
    a("buffer_load_dword v7, v5, s[20:23], 0 offen sc1")
    a("s_waitcnt vmcnt(0)")
    a("v_readfirstlane_b32 s56, v7")
    a("s_cmp_eq_u32 s56, 1")
    a("s_cbranch_scc1 L1_sidedone")
    a("s_sleep 2"); a("s_sub_u32 s57, s57, 1"); a("s_cmp_lg_u32 s57, 0"); a("s_cbranch_scc1 %s" % l)
    a.label("L1_sidedone")
    a("s_barrier")
    a.label("L1_out")
    a("s_barrier")
    stamp(a, 3)
    a("s_cmp_ge_u32 s42, 6")
    a("s_cbranch_scc1 L1_fin")
    a("s_mul_i32 s53, s40, 6"); a("s_add_u32 s53, s53, s42")
    a("s_lshr_b32 s54, s53, 5"); a("s_and_b32 s56, s53, 31")
    a("s_mul_i32 s57, s42, 48")
    a("s_lshr_b32 s50, s41, 1"); a("s_mul_i32 s50, s50, 18432")
    a("s_mul_i32 s51, s56, %d" % KV_HEAD); a("s_add_u32 s50, s50, s51")
    a("s_and_b32 s52, s41, 1")
    a("s_movk_i32 s61, 304")
    a("s_cmp_eq_u32 s54, 2")
    a("s_cbranch_scc1 L1_vout")
    a("s_cmp_eq_u32 s54, 0")
    a("s_cbranch_scc0 L1_kdest")
    a("s_mul_i32 s58, s56, %d" % Q_HEAD); a("s_add_u32 s58, s58, 0x%x" % OFF_Q)
    a("s_lshl_b32 s60, s41, 9"); a("s_add_u32 s59, s58, s60"); a("s_add_u32 s59, s59, 65536")
    a("s_lshl_b32 s60, s41, 12"); a("s_add_u32 s58, s58, s60")
    a("s_branch L1_destdone")
    a.label("L1_kdest")
    a("s_lshl_b32 s60, s52, 9"); a("s_add_u32 s59, s50, s60"); a("s_add_u32 s59, s59, 8192")
    a("s_lshl_b32 s60, s52, 12"); a("s_add_u32 s58, s50, s60")
    a.label("L1_destdone")
    a("v_and_b32 v5, 31, v2"); a("v_lshrrev_b32 v6, 5, v2")
    a("v_mul_lo_u32 v7, v5, s61"); a("v_lshl_add_u32 v7, v6, 4, v7"); a("v_add_u32 v7, s57, v7")
    for i in range(4): a("ds_read_b128 %s, v7 offset:%d" % (v(24 + 4 * i, 4), i * 32 * 304))
    a("v_lshlrev_b32 v8, 2, v5"); a("v_mul_lo_u32 v8, v8, s61"); a("v_add_u32 v8, s57, v8")
    for j in range(4): a("ds_read_b32 v%d, v8 offset:%d" % (40 + j, 32 + 304 * j))
    a("v_lshlrev_b32 v11, 4, v2")
    a("v_mov_b32 v12, 0x%x" % OOB); a("v_cmp_gt_u32 vcc, 32, v2"); a("s_nop 1"); a("v_cndmask_b32 v12, v12, v11, vcc")
    for i in range(4):
        a("s_waitcnt lgkmcnt(%d)" % (7 - i))
        a("buffer_store_dwordx4 %s, v11, s[36:39], s58 offen offset:%d sc1" % (v(24 + 4 * i, 4), 1024 * i))
    a("s_waitcnt lgkmcnt(0)")
    a("buffer_store_dwordx4 v[40:43], v12, s[36:39], s59 offen sc1")
    a("s_branch L1_fin")
    a.label("L1_vout")
    a("v_lshrrev_b32 v9, 2, v2"); a("v_and_b32 v9, 3, v9")
    a("v_and_b32 v10, 1, v4")
    a("v_lshl_add_u32 v9, v10, 2, v9")
    a("v_mul_lo_u32 v9, v9, s61")
    a("v_and_b32 v13, 3, v2"); a("v_lshl_add_u32 v9, v13, 3, v9")
    a("v_lshrrev_b32 v13, 1, v4"); a("v_lshl_add_u32 v9, v13, 5, v9")
    a("v_add_u32 v9, s57, v9")
    a("s_mul_i32 s60, s52, 8*576"); a("s_add_u32 s63, s50, s60"); a("s_add_u32 s63, s63, 9216")
    a("v_lshl_add_u32 v14, v13, 4, v3")
    a("v_mul_u32_u24 v13, 288, v10"); a("v_lshl_add_u32 v13, v14, 4, v13")
    a("v_mov_b32 v15, 0x%x" % OOB); a("v_cmp_le_u32 vcc, 18, v14"); a("s_nop 1"); a("v_cndmask_b32 v13, v13, v15, vcc")
    for half in range(2):
        for b in range(4):
            beta = 4 * half + b
            a("ds_read_b64_tr_b16 %s, v9 offset:%d" % (v(24 + 16 * half + 4 * b, 2), beta * 16 * 304))
            a("ds_read_b64_tr_b16 %s, v9 offset:%d" % (v(26 + 16 * half + 4 * b, 2), beta * 16 * 304 + 8 * 304))
        for b in range(4):
            beta = 4 * half + b
            a("s_waitcnt lgkmcnt(%d)" % (6 - 2 * b))
            a("buffer_store_dwordx4 %s, v13, s[36:39], s63 offen offset:%d sc1" % (v(24 + 16 * half + 4 * b, 4), beta * 576))
    a.label("L1_fin")
    a("s_waitcnt vmcnt(0) lgkmcnt(0)")
    stamp(a, 4)
    a("s_barrier")
    a("s_cmp_lg_u32 s42, 0")
    a("s_cbranch_scc1 L1_na0")
    atomic_inc(a, 40)
    a.label("L1_na0")
    a("s_cmp_lg_u32 s42, 8")
    a("s_cbranch_scc1 L1_na8")
    a("s_mul_hi_u32 s44, s2, 0x%x" % ((1 << 32) // 9 + 1)); a("s_mul_i32 s45, s44, 9"); a("s_sub_u32 s45, s2, s45"); a("s_add_u32 s45, s45, %d" % C2)
    a("s_cmp_lt_u32 s2, 144"); a("s_cselect_b32 s45, s45, %d" % C4)
    atomic_inc(a, 45)
    a.label("L1_na8")

def attn_regs():
    R = {}
    R["QA1"], R["QA2"], R["QB1"], R["QB2"] = 8, 12, 14, 18
    R["SA"], R["SB"] = 20, 36
    R["PA"], R["PB"] = 52, 60
    R["OA"], R["OB"] = 68, 84
    R["K1"] = [100, 104]; R["K2"] = [108, 110]; R["V"] = [112, 120]
    R["NA"], R["NB"] = 128, 144
    return R

def phase2(a):
    R = attn_regs()
    a("s_and_b32 s40, s2, 31"); a("s_lshr_b32 s41, s2, 5")
    a("v_lshlrev_b32 v3, 4, v2")
    a("s_mul_i32 s43, s40, %d" % KV_HEAD)
    a("s_cmp_ge_u32 s42, 8"); a("s_cselect_b32 s44, 1, 0"); a("s_cmp_eq_u32 s42, 11"); a("s_cselect_b32 s44, 0, s44")
    a("s_cmp_eq_u32 s44, 1")
    a("s_cbranch_scc1 L2_conv")
    a("s_cmp_lg_u32 s42, 0")
    a("s_cbranch_scc1 L2_waitgo")
    a("v_min_u32 v5, 2, v2"); a("v_lshlrev_b32 v5, 5, v5"); a("v_add_u32 v5, s40, v5")
    a("v_mul_u32_u24 v5, 0x2aab, v5"); a("v_lshrrev_b32 v5, 16, v5")
    a("v_lshlrev_b32 v5, 7, v5"); a("v_add_u32 v5, 0x%x, v5" % (OFF_CNT + 128 * C1))
    a("v_mov_b32 v6, 16")
    poll_global(a, 5, 6, vt=7)
    lds_set(a, GO1, 1, 7)
    a("s_branch L2_go")
    a.label("L2_waitgo")
    lds_spin(a, GO1, 1, 1, 7)
    a.label("L2_go")
    stamp(a, 5)
    a("s_cmp_ge_u32 s42, 8")
    a("s_cbranch_scc1 L2_aux")
    a("s_and_b32 s45, s42, 3"); a("s_lshr_b32 s46, s42, 2")
    a("s_lshl_b32 s44, s42, 10"); a("s_add_u32 s43, s43, s44")
    for q in range(5):
        a("buffer_load_dwordx4 %s, v3, s[36:39], s43 offen sc1" % v(20 + 4 * q, 4))
        if q < 4: a("s_add_u32 s43, s43, 8192")
    a("s_lshl_b32 s47, s41, 3"); a("s_lshl_b32 s48, s45, 1"); a("s_add_u32 s47, s47, s48")
    a("s_mul_i32 s48, s40, %d" % Q_HEAD); a("s_add_u32 s48, s48, 0x%x" % OFF_Q)
    a("s_lshl_b32 s49, s47, 10"); a("s_add_u32 s49, s49, s48")
    a("s_lshl_b32 s50, s47, 7"); a("s_add_u32 s50, s50, s48"); a("s_add_u32 s50, s50, 65536")
    a("v_and_b32 v4, 31, v2"); a("v_lshrrev_b32 v5, 5, v2"); a("v_lshlrev_b32 v6, 2, v4")
    a("v_mov_b32 v7, 0x%x" % OOB)
    a("v_cmp_eq_u32 vcc, 0, v5")
    a("buffer_load_dwordx4 %s, v3, s[36:39], s49 offen sc1" % v(R["QA1"], 4))
    a("buffer_load_dwordx4 %s, v3, s[36:39], s49 offen offset:1024 sc1" % v(R["QB1"], 4))
    a("v_cndmask_b32 v7, v7, v6, vcc")
    a("buffer_load_dword v%d, v7, s[36:39], s50 offen sc1" % R["QA2"])
    a("buffer_load_dword v%d, v7, s[36:39], s50 offen offset:128 sc1" % R["QB2"])
    a("v_mov_b32 v%d, 0" % (R["QA2"] + 1)); a("v_mov_b32 v%d, 0" % (R["QB2"] + 1))
    a("v_mov_b32 v%d, 0" % (R["K2"][0] + 1)); a("v_mov_b32 v%d, 0" % (R["K2"][1] + 1))
    a("v_mov_b32 v1, 0x3f803f80"); a("v_cmp_eq_u32 vcc, 18, v4"); a("v_mov_b32 v7, 0"); a("s_nop 0")
    a("v_cndmask_b32 v1, v7, v1, vcc")
    for b in range(2):
        for r in range(8): a("v_mov_b32 v%d, v1" % (R["V"][b] + r))
    for r in range(16):
        a("v_mov_b32 v%d, 0" % (R["NA"] + r)); a("v_mov_b32 v%d, 0" % (R["NB"] + r))
    LK1, LK2, LV = 160, 161, 162
    AK1, AK2, AV = 163, 164, 165
    CA, CO, NX = 166, 167, 7
    a("v_lshlrev_b32 v%d, 4, v2" % LK1)
    a("v_add_u32 v%d, 8192, v6" % LK2)
    a("v_mul_u32_u24 v%d, 288, v5" % LV); a("v_lshl_add_u32 v%d, v4, 4, v%d" % (LV, LV)); a("v_add_u32 v%d, 9216, v%d" % (LV, LV))
    a("s_mov_b32 s52, 0x%x" % VMASK); a("s_mov_b32 s53, 0x%x" % VMASK)
    a("s_mov_b32 s60, 0"); a("s_mov_b32 s61, 0")
    a("s_lshl_b32 s62, s45, 2"); a("s_add_u32 s62, s62, %d" % CNT)
    a("v_mov_b32 v%d, s62" % CA); a("v_mov_b32 v%d, 1" % CO)
    a("v_add_u32 v3, s44, v3")
    for q in range(5):
        a("s_waitcnt vmcnt(%d)" % (4 + 4 - q))
        a("ds_write_b128 v3, %s offset:%d" % (v(20 + 4 * q, 4), 8192 * q))
    a("s_waitcnt vmcnt(0) lgkmcnt(0)")
    lds_arrive(a, FA, 1, 3)
    lds_spin(a, FA, 8, 1, 3, sleep=False)
    stamp(a, 6)
    rstamp(a, 14)

    def mS1(S, kb, Q1, N): return "v_mfma_f32_32x32x16_bf16 %s, %s, %s, %s" % (v(S, 16), v(R["K1"][kb], 4), v(Q1, 4), v(N, 16))
    def mS2(S, kb, Q2): return "v_mfma_f32_32x32x8_bf16 %s, %s, %s, %s" % (v(S, 16), v(R["K2"][kb], 2), v(Q2, 2), v(S, 16))
    def mP(O, vb, h, P): return "v_mfma_f32_32x32x16_bf16 %s, %s, %s, %s" % (v(O, 16), v(R["V"][vb] + 4 * h, 4), v(P + 4 * h, 4), v(O, 16))
    def phase(S, P, Sn, Q1, Q2, Nn, kb, On, Pn, vb, loads):
        ex = ["v_exp_f32 v%d, v%d" % (S + i, S + i) for i in range(16)]
        cv = ["v_cvt_pk_bf16_f32 v%d, v%d, v%d" % (P + i, S + 2 * i, S + 2 * i + 1) for i in range(8)]
        l0, l1 = loads
        return ([mS1(Sn, kb, Q1, Nn)] + l0 + ex[0:4] + [mP(On, vb, 0, Pn)] + ex[4:6] + cv[0:1] + ex[6:8] + cv[1:2] + l1 + ex[8:9] +
                [mS2(Sn, kb, Q2)] + ex[9:10] + cv[2:3] + ex[10:12] + cv[3:4] + [mP(On, vb, 1, Pn)] + ex[12:14] + cv[4:5] + ex[14:16] + cv[5:8])
    a.label("L2_main")
    for r in range(16):
        a("v_mov_b32 v%d, 0" % (R["OA"] + r)); a("v_mov_b32 v%d, 0" % (R["OB"] + r))
    for r in range(8): a("v_mov_b32 v%d, 0" % (R["PB"] + r))
    a("s_mov_b32 s54, s46")
    a("s_mul_i32 s55, s54, 18432")
    a("v_add_u32 v%d, s55, v%d" % (AK1, LK1)); a("v_add_u32 v%d, s55, v%d" % (AK2, LK2)); a("v_add_u32 v%d, s55, v%d" % (AV, LV))
    a("ds_read_b128 %s, v%d" % (v(R["K1"][0], 4), AK1))
    a("ds_read_b32 v%d, v%d" % (R["K2"][0], AK2))
    a("s_waitcnt lgkmcnt(0)")
    a(mS1(R["SA"], 0, R["QA1"], R["NA"]))
    a(mS2(R["SA"], 0, R["QA2"]))
    a("s_nop 7"); a("s_nop 3")
    a.label("L2_stage")
    body = []
    for i in range(8):
        kb = i & 1; kn = kb ^ 1; vb = i & 1; vp = vb ^ 1
        off = (i + 1) if i < 7 else 0
        lk = ["ds_read_b128 %s, v%d offset:%d" % (v(R["K1"][kn], 4), AK1, off * 1024),
              "ds_read_b32 v%d, v%d offset:%d" % (R["K2"][kn], AK2, off * 128)]
        lv = ["s_mov_b64 exec, s[52:53]",
              "ds_read_b128 %s, v%d offset:%d" % (v(R["V"][vb], 4), AV, (2 * i) * 576),
              "ds_read_b128 %s, v%d offset:%d" % (v(R["V"][vb] + 4, 4), AV, (2 * i + 1) * 576),
              "s_mov_b64 exec, -1"]
        if i == 6:
            lv = lv[:-1] + ["s_mov_b64 exec, 1", "ds_add_rtn_u32 v%d, v%d, v%d" % (NX, CA, CO), "s_mov_b64 exec, -1"]
        body += phase(R["SA"], R["PA"], R["SB"], R["QB1"], R["QB2"], R["NB"], kb, R["OB"], R["PB"], vp, (lv, lk))
        body.append("s_waitcnt lgkmcnt(0)")
        if i == 6: body.append("NEXT")
        body += phase(R["SB"], R["PB"], R["SA"], R["QA1"], R["QA2"], R["NA"], kn, R["OA"], R["PA"], vb, ([], []))
    for x in body:
        if x == "NEXT":
            a("v_readfirstlane_b32 s55, v%d" % NX)
            a("s_cmp_lt_u32 s55, 8")
            a("s_cselect_b32 s57, s55, s54")
            a("s_mul_i32 s57, s57, 18432")
            a("s_cmp_lg_u32 s61, 0")
            a("s_cbranch_scc1 L2_landed")
            lds_spin(a, FB, 1, 1, 3, sleep=False)
            a("s_mov_b32 s61, 1")
            a.label("L2_landed")
            a("v_add_u32 v%d, s57, v%d" % (AK1, LK1)); a("v_add_u32 v%d, s57, v%d" % (AK2, LK2))
        else:
            a(x)
    a("v_add_u32 v%d, s57, v%d" % (AV, LV))
    a("s_mov_b32 s54, s55")
    a("s_cmp_lt_u32 s54, 8")
    a("s_cbranch_scc1 L2_stage")
    a(mP(R["OB"], 1, 0, R["PB"])); a(mP(R["OB"], 1, 1, R["PB"]))
    stamp(a, 7)
    rstamp(a, 15)
    a("s_nop 7"); a("s_nop 3")
    a("s_cmp_lg_u32 s60, 0")
    a("s_cbranch_scc1 L2_combine")
    a("v_mov_b32 v1, 0x21800000"); a("v_mov_b32 v3, 0x5d800000")
    a("v_cmp_le_f32 s[56:57], v1, v%d" % (R["OA"] + 10)); a("v_cmp_ge_f32 s[58:59], v3, v%d" % (R["OA"] + 10))
    a("s_and_b64 s[56:57], s[56:57], s[58:59]")
    a("v_cmp_le_f32 s[58:59], v1, v%d" % (R["OB"] + 10)); a("s_and_b64 s[56:57], s[56:57], s[58:59]")
    a("v_cmp_ge_f32 s[58:59], v3, v%d" % (R["OB"] + 10)); a("s_and_b64 s[56:57], s[56:57], s[58:59]")
    a("s_cmp_eq_u32 s56, -1")
    a("s_cbranch_scc1 L2_ok")
    lds_set(a, FBAD, 1, 3)
    a.label("L2_ok")
    a("s_barrier")
    a("v_mov_b32 v1, %d" % FBAD); a("ds_read_b32 v3, v1"); a("s_waitcnt lgkmcnt(0)")
    a("v_readfirstlane_b32 s56, v3")
    a("s_cmp_eq_u32 s56, 0")
    a("s_cbranch_scc1 L2_exch")
    a("s_mov_b32 s60, 1")
    MA, MB = 166, 167
    a("v_mov_b32 v%d, 0xff800000" % MA); a("v_mov_b32 v%d, 0xff800000" % MB)
    a("s_lshl_b32 s54, s46, 2"); a("s_add_u32 s58, s54, 4")
    a.label("L2_maxstage")
    a("s_mul_i32 s55, s54, 18432")
    a("v_add_u32 v1, s55, v%d" % LK1); a("v_add_u32 v3, s55, v%d" % LK2)
    a("s_mov_b32 s55, 0")
    a.label("L2_maxtile")
    a("ds_read_b128 %s, v1" % v(R["K1"][0], 4)); a("ds_read_b32 v%d, v3" % R["K2"][0])
    a("s_waitcnt lgkmcnt(0)")
    a("v_mfma_f32_32x32x16_bf16 %s, %s, %s, 0" % (v(R["SA"], 16), v(R["K1"][0], 4), v(R["QA1"], 4)))
    a("v_mfma_f32_32x32x16_bf16 %s, %s, %s, 0" % (v(R["SB"], 16), v(R["K1"][0], 4), v(R["QB1"], 4)))
    a(mS2(R["SA"], 0, R["QA2"])); a(mS2(R["SB"], 0, R["QB2"]))
    a("s_nop 7"); a("s_nop 7")
    for r in range(16):
        a("v_max_f32 v%d, v%d, v%d" % (MA, MA, R["SA"] + r)); a("v_max_f32 v%d, v%d, v%d" % (MB, MB, R["SB"] + r))
    a("v_add_u32 v1, 1024, v1"); a("v_add_u32 v3, 128, v3")
    a("s_add_u32 s55, s55, 1"); a("s_cmp_lt_u32 s55, 8"); a("s_cbranch_scc1 L2_maxtile")
    a("s_add_u32 s54, s54, 1"); a("s_cmp_lt_u32 s54, s58"); a("s_cbranch_scc1 L2_maxstage")
    a("v_xor_b32 v1, 32, v2"); a("v_lshlrev_b32 v1, 2, v1")
    a("ds_bpermute_b32 v3, v1, v%d" % MA); a("s_waitcnt lgkmcnt(0)"); a("v_max_f32 v%d, v%d, v3" % (MA, MA))
    a("ds_bpermute_b32 v3, v1, v%d" % MB); a("s_waitcnt lgkmcnt(0)"); a("v_max_f32 v%d, v%d, v3" % (MB, MB))
    a("s_lshl_b32 s55, s2, 3"); a("s_add_u32 s55, s55, s42"); a("s_lshl_b32 s55, s55, 9"); a("s_add_u32 s55, s55, 0x%x" % OFF_MX)
    a("v_lshlrev_b32 v1, 3, v2")
    a("buffer_store_dwordx2 v[%d:%d], v1, s[36:39], s55 offen sc0 sc1" % (MA, MB))
    a("v_mov_b32 v3, s62"); a("v_mov_b32 v6, 2"); a("ds_write_b32 v3, v6")
    a("s_waitcnt vmcnt(0) lgkmcnt(0)")
    a("s_barrier")
    a("s_xor_b32 s56, s42, 4"); a("s_lshl_b32 s57, s2, 3"); a("s_add_u32 s56, s56, s57"); a("s_lshl_b32 s56, s56, 9")
    a("s_add_u32 s56, s56, 0x%x" % OFF_MX)
    a("buffer_load_dwordx2 v[6:7], v1, s[36:39], s56 offen sc0 sc1")
    a("s_waitcnt vmcnt(0)")
    a("v_max_f32 v%d, v%d, v6" % (MA, MA)); a("v_max_f32 v%d, v%d, v7" % (MB, MB))
    for r in range(16):
        a("v_sub_f32 v%d, 0, v%d" % (R["NA"] + r, MA)); a("v_sub_f32 v%d, 0, v%d" % (R["NB"] + r, MB))
    a("v_mov_b32 v%d, s62" % CA); a("v_mov_b32 v%d, 1" % CO)
    a("s_branch L2_main")
    a.label("L2_combine")
    a("s_barrier")
    a.label("L2_exch")
    a("s_mul_i32 s55, s45, 6144")
    a("v_lshlrev_b32 v1, 4, v2"); a("v_add_u32 v1, s55, v1")
    a("s_cmp_eq_u32 s46, 0")
    a("s_cbranch_scc1 L2_recv")
    for t, O in enumerate((R["OA"], R["OB"])):
        for c in range(3): a("ds_write_b128 v1, %s offset:%d" % (v(O + 4 * c, 4), (3 * t + c) * 1024))
    a("s_waitcnt lgkmcnt(0)")
    a("s_barrier")
    a("s_cmp_lg_u32 s42, 4")
    a("s_cbranch_scc1 L2_nopollA")
    a("s_lshr_b32 s55, s40, 3"); a("s_add_u32 s55, s55, %d" % C3)
    a("v_mov_b32 v5, s55"); a("v_mov_b32 v6, 144"); a("v_mov_b32 v7, %d" % C4); a("v_mov_b32 v8, 112")
    a("v_cmp_eq_u32 vcc, 0, v2"); a("s_nop 1")
    a("v_cndmask_b32 v5, v7, v5, vcc"); a("v_cndmask_b32 v6, v8, v6, vcc")
    a("v_lshlrev_b32 v5, 7, v5"); a("v_add_u32 v5, 0x%x, v5" % OFF_CNT)
    poll_global(a, 5, 6, vt=7)
    lds_set(a, GO2A, 1, 7)
    a.label("L2_nopollA")
    a("s_barrier")
    a("s_branch L2_ostore")
    a.label("L2_recv")
    a("s_barrier")
    for t in range(2):
        for c in range(3): a("ds_read_b128 %s, v1 offset:%d" % (v(R["SA"] + 12 * t + 4 * c, 4), (3 * t + c) * 1024))
    a("s_waitcnt lgkmcnt(0)")
    for t, O in enumerate((R["OA"], R["OB"])):
        for r in range(12): a("v_add_f32 v%d, v%d, v%d" % (O + r, O + r, R["SA"] + 12 * t + r))
    for t, O in enumerate((R["OA"], R["OB"])):
        a("v_mov_b32 v%d, v%d" % (52 + 2 * t, O + 10)); a("v_mov_b32 v%d, v%d" % (53 + 2 * t, O + 10))
    a("s_nop 1")
    a("v_permlane32_swap_b32 v52, v53"); a("v_permlane32_swap_b32 v54, v55")
    a("s_nop 1")
    a("v_rcp_f32 v52, v52"); a("v_rcp_f32 v54, v54")
    a("s_lshl_b32 s55, s45, 6")
    a("v_add_u32 v3, s55, v4"); a("v_mul_u32_u24 v3, 36, v3"); a("v_lshl_add_u32 v3, v5, 3, v3"); a("v_add_u32 v3, 32768, v3")
    a("v_cmp_eq_u32 vcc, 0, v5")
    for t, O in enumerate((R["OA"], R["OB"])):
        rc = 52 + 2 * t
        for r in range(10): a("v_mul_f32 v%d, v%d, v%d" % (O + r, O + r, rc))
        for c in range(5): a("v_cvt_pk_bf16_f32 v%d, v%d, v%d" % (56 + 5 * t + c, O + 2 * c, O + 2 * c + 1))
    for t in range(2):
        off = t * 32 * 36; b = 56 + 5 * t
        a("ds_write_b32 v3, v%d offset:%d" % (b, off + 0)); a("ds_write_b32 v3, v%d offset:%d" % (b + 1, off + 4))
        a("ds_write_b32 v3, v%d offset:%d" % (b + 2, off + 16)); a("ds_write_b32 v3, v%d offset:%d" % (b + 3, off + 20))
    a("s_and_saveexec_b64 s[56:57], vcc")
    a("ds_write_b32 v3, v60 offset:32"); a("ds_write_b32 v3, v65 offset:%d" % (32 * 36 + 32))
    a("s_mov_b64 exec, s[56:57]")
    a("s_waitcnt lgkmcnt(0)")
    a("s_barrier")
    a.label("L2_ostore")
    a("s_lshl_b32 s55, s42, 10")
    a("v_lshlrev_b32 v1, 4, v2"); a("v_add_u32 v1, s55, v1")
    a("v_add_u32 v3, 32768, v1")
    a("ds_read_b128 v[8:11], v3")
    a("s_mul_i32 s57, s40, %d" % O_HEAD); a("s_mul_i32 s58, s41, 9216"); a("s_add_u32 s57, s57, s58"); a("s_add_u32 s57, s57, 0x%x" % OFF_O)
    a("s_cmp_lg_u32 s42, 0")
    a("s_cbranch_scc1 L2_o1")
    a("ds_read_b128 v[12:15], v3 offset:8192")
    a("s_waitcnt lgkmcnt(0)")
    a("v_add_u32 v6, 8192, v1")
    a("buffer_store_dwordx4 v[12:15], v6, s[36:39], s57 offen sc1")
    a.label("L2_o1")
    a("s_waitcnt lgkmcnt(0)")
    a("buffer_store_dwordx4 v[8:11], v1, s[36:39], s57 offen sc1")
    stamp(a, 8)
    phase3(a)
    a("s_branch L_fin")

    a.label("L2_aux")
    a("s_add_u32 s43, s43, 40*1024")
    a("v_add_u32 v4, 40*1024, v3")
    NB_, BS = 8, 13
    def issue(b):
        for q in range(BS):
            a("buffer_load_dwordx4 %s, v3, s[36:39], s43 offen offset:%d sc1" % (v(8 + 52 * (b & 1) + 4 * q, 4), (q % 4) * 1024))
            if q % 4 == 3 or q == BS - 1: a("s_add_u32 s43, s43, %d" % (4096 if q % 4 == 3 else 1024 * ((q % 4) + 1)))
    issue(0)
    for b in range(NB_):
        if b + 1 < NB_: issue(b + 1)
        for q in range(BS):
            a("s_waitcnt vmcnt(%d)" % ((BS - 1 - q) + (BS if b + 1 < NB_ else 0)))
            a("ds_write_b128 v4, %s offset:%d" % (v(8 + 52 * (b & 1) + 4 * q, 4), 1024 * q))
        a("v_add_u32 v4, %d, v4" % (1024 * BS))
    a("s_waitcnt lgkmcnt(0)")
    lds_arrive(a, FB, 1, 4)
    stamp(a, 6)
    a("s_branch L_fin")
    a.label("L2_conv")
    conv(a)

def conv(a):
    a("s_sub_u32 s43, s42, 8")
    a("s_lshl_b32 s44, s43, 8"); a("s_add_u32 s44, s44, s2")
    a("s_cmp_ge_u32 s44, 576")
    a("s_cbranch_scc1 L_fin")
    a("s_load_dwordx2 s[10:11], s[0:1], 64")
    a("s_load_dwordx2 s[16:17], s[0:1], 56")
    a("s_waitcnt lgkmcnt(0)")
    a("s_lshl_b32 s45, s44, 12")
    a("s_add_u32 s20, s16, s45"); a("s_addc_u32 s21, s17, 0"); a("s_and_b32 s21, s21, 0xffff")
    a("s_mov_b32 s22, 4096"); a("s_mov_b32 s23, 0x20000")
    a("v_lshlrev_b32 v5, 4, v2")
    a("s_mul_i32 s48, s44, %d" % (2 * HP_ROW)); a("s_add_u32 s48, s48, 0x%x" % OFF_HP)
    a("v_subrev_u32 v6, 32, v5")
    for it in range(5):
        if it == 0:
            a("buffer_load_dwordx4 v[8:11], v6, s[20:23], 0 offen")
            a("v_add_u32 v7, 16, v6")
            a("buffer_load_dword v12, v7, s[20:23], 0 offen")
        else:
            a("v_add_u32 v7, %d, v6" % (1024 * it))
            a("buffer_load_dwordx4 %s, v7, s[20:23], 0 offen" % v(8 + 8 * it, 4))
            a("buffer_load_dword v%d, v7, s[20:23], 0 offen offset:16" % (12 + 8 * it))
    a("s_add_u32 s49, s48, %d" % HP_ROW)
    for it in range(5):
        b = 8 + 8 * it
        a("s_waitcnt vmcnt(8)")
        for k in range(4): a("v_alignbit_b32 v%d, v%d, v%d, 16" % (48 + 4 * it + k, b + k + 1, b + k))
        if it < 4:
            a("buffer_store_dwordx4 %s, v5, s[36:39], s48 offen offset:%d" % (v(b, 4), 1024 * it))
            a("buffer_store_dwordx4 %s, v5, s[36:39], s49 offen offset:%d" % (v(48 + 4 * it, 4), 1024 * it))
        else:
            a("s_add_u32 s50, s48, 4096"); a("buffer_store_dwordx4 %s, v5, s[36:39], s50 offen" % v(b, 4))
            a("s_add_u32 s50, s49, 4096"); a("buffer_store_dwordx4 %s, v5, s[36:39], s50 offen" % v(48 + 4 * it, 4))
    a("s_waitcnt vmcnt(0)")
    stamp(a, 5)
    a("s_lshr_b32 s45, s44, 6"); a("s_add_u32 s45, s45, %d" % C2); a("s_lshl_b32 s45, s45, 7"); a("s_add_u32 s45, s45, 0x%x" % OFF_CNT)
    a("v_mov_b32 v5, s45"); a("v_mov_b32 v6, 16")
    poll_global(a, 5, 6, vt=7)
    stamp(a, 6)
    a("v_lshlrev_b32 v3, 4, v2")
    a("s_lshl_b32 s46, s44, 12"); a("s_add_u32 s46, s46, 0x%x" % OFF_URT)
    a("s_mul_i32 s47, s43, 4608"); a("s_add_u32 s47, s47, %d" % LDS_UR)
    for q in range(4): a("buffer_load_dwordx4 %s, v3, s[36:39], s46 offen offset:%d sc1" % (v(8 + 4 * q, 4), 1024 * q))
    a("s_mul_i32 s48, s44, %d" % (2 * HP_ROW)); a("s_add_u32 s48, s48, 0x%x" % OFF_HP)
    a("v_and_b32 v4, 15, v2"); a("v_lshrrev_b32 v5, 4, v2")
    a("v_and_b32 v6, 7, v4"); a("v_lshlrev_b32 v6, 1, v6")
    a("v_lshrrev_b32 v7, 3, v4")
    a("v_lshl_add_u32 v6, v7, 1, v6"); a("v_lshl_add_u32 v6, v5, 3, v6"); a("v_lshlrev_b32 v6, 1, v6")
    a("v_mov_b32 v24, %d" % HP_ROW); a("v_cmp_eq_u32 vcc, 0, v7"); a("v_mov_b32 v25, 0"); a("s_nop 0")
    a("v_cndmask_b32 v24, v25, v24, vcc"); a("v_add_u32 v6, v6, v24")
    a("v_lshlrev_b32 v7, 5, v4"); a("v_lshlrev_b32 v24, 4, v5"); a("v_sub_u32 v7, v24, v7")
    a("v_add_u32 v7, s47, v7"); a("v_add_u32 v7, 4064, v7")
    AF, AG, BF, Y = 16, 112, 48, 80
    for mu in range(8): a("buffer_load_dwordx4 %s, v6, s[36:39], s48 offen offset:%d" % (v(AG + 4 * mu, 4), 512 * mu))
    a("v_add_u32 v26, s47, v3")
    for q in range(4):
        a("s_waitcnt vmcnt(%d)" % (8 + 3 - q))
        a("ds_write_b128 v26, %s offset:%d" % (v(8 + 4 * q, 4), 1024 * q))
    for r in range(4): a("v_mov_b32 v%d, 0" % (28 + r))
    a("s_mov_b32 exec_hi, 0")
    a("ds_write_b128 v26, v[28:31] offset:4096")
    a("s_mov_b64 exec, -1")
    for r in range(32): a("v_mov_b32 v%d, 0" % (Y + r))
    a("s_waitcnt lgkmcnt(0)")
    a("s_mov_b32 s51, 0")
    a.label("L2c_rho")
    for half, (cur, nxt) in enumerate(((AG, AF), (AF, AG))):
        a("s_add_u32 s52, s51, %d" % half); a("s_lshl_b32 s52, s52, 6")
        a("v_add_u32 v8, s52, v7"); a("v_subrev_u32 v8, %d, v8" % (512 * 7))
        for sg in range(8): a("ds_read_b128 %s, v8 offset:%d" % (v(BF + 4 * sg, 4), 512 * (7 - sg)))
        a("s_add_u32 s53, s52, 64"); a("s_and_b32 s53, s53, 0x1ff"); a("s_add_u32 s53, s53, s48")
        for mu in range(8): a("buffer_load_dwordx4 %s, v6, s[36:39], s53 offen offset:%d" % (v(nxt + 4 * mu, 4), 512 * mu))
        a("s_waitcnt lgkmcnt(0)")
        for mu in range(8):
            a("s_waitcnt vmcnt(%d)" % (8 + 7 - mu))
            for sg in range(8 - mu):
                t = mu + sg
                a("v_mfma_f32_16x16x32_bf16 %s, %s, %s, %s" % (v(Y + 4 * t, 4), v(cur + 4 * mu, 4), v(BF + 4 * sg, 4), v(Y + 4 * t, 4)))
    a("s_add_u32 s51, s51, 2"); a("s_cmp_lt_u32 s51, 8"); a("s_cbranch_scc1 L2c_rho")
    a("s_waitcnt vmcnt(0)")
    a("s_lshl_b32 s52, s44, 1"); a("s_and_b32 s53, s52, 0xfffffffc")
    a("s_add_u32 s54, s10, s53"); a("s_addc_u32 s55, s11, 0")
    a("s_load_dword s56, s[54:55], 0")
    a("s_waitcnt lgkmcnt(0)")
    a("s_and_b32 s57, s52, 2"); a("s_lshl_b32 s57, s57, 3"); a("s_lshr_b32 s56, s56, s57"); a("s_lshl_b32 s56, s56, 16")
    a("v_and_b32 v8, 1, v5"); a("v_lshrrev_b32 v9, 1, v5")
    a("v_lshlrev_b32 v10, 4, v4"); a("v_lshl_add_u32 v10, v8, 3, v10"); a("v_lshl_add_u32 v10, v9, 2, v10")
    a("v_lshlrev_b32 v11, 1, v10")
    a("v_sub_u32 v12, 0, v11"); a("v_add_u32 v12, s47, v12"); a("v_add_u32 v12, %d, v12" % (2 * 2044 - 512 * 7))
    for t in range(8): a("ds_read_b64 %s, v12 offset:%d" % (v(AF + 2 * t, 2), 512 * (7 - t)))
    a("s_lshl_b32 s52, s44, 12"); a("s_add_u32 s52, s52, 0x%x" % OFF_YT)
    a("s_nop 7")
    for t in range(8):
        y = Y + 4 * t
        a("v_permlane32_swap_b32 v%d, v%d" % (y, y + 2)); a("v_permlane32_swap_b32 v%d, v%d" % (y + 1, y + 3))
    a("s_waitcnt lgkmcnt(0)")
    for t in range(8):
        y = Y + 4 * t; u0, u1 = AF + 2 * t, AF + 2 * t + 1
        a("v_and_b32 v40, 0xffff0000, v%d" % u1); a("v_fma_f32 v%d, v40, s56, v%d" % (y, y))
        a("v_lshlrev_b32 v41, 16, v%d" % u1);     a("v_fma_f32 v%d, v41, s56, v%d" % (y + 2, y + 2))
        a("v_and_b32 v42, 0xffff0000, v%d" % u0); a("v_fma_f32 v%d, v42, s56, v%d" % (y + 1, y + 1))
        a("v_lshlrev_b32 v43, 16, v%d" % u0);     a("v_fma_f32 v%d, v43, s56, v%d" % (y + 3, y + 3))
        a("v_cvt_pk_bf16_f32 v%d, v%d, v%d" % (112 + 2 * t, y, y + 2))
        a("v_cvt_pk_bf16_f32 v%d, v%d, v%d" % (113 + 2 * t, y + 1, y + 3))
        a("buffer_store_dwordx2 %s, v11, s[36:39], s52 offen offset:%d sc1" % (v(112 + 2 * t, 2), 512 * t))
    a("s_waitcnt vmcnt(0)")
    a("s_mul_hi_u32 s45, s44, 0x%x" % ((1 << 32) // 144 + 1)); a("s_add_u32 s45, s45, %d" % C3)
    atomic_inc(a, 45)
    stamp(a, 7)
    a("s_branch L_fin")

def phase3(a):
    OB, YB, UB, W8 = 49152, 90112, 102400, 112640
    WA, ST = 20, 92
    a("s_load_dwordx2 s[4:5], s[0:1], 0"); a("s_load_dwordx2 s[6:7], s[0:1], 80")
    a("s_and_b32 s43, s40, 7"); a("s_lshl_b32 s43, s43, 5"); a("s_lshl_b32 s44, s41, 8"); a("s_add_u32 s43, s43, s44")
    a("s_lshr_b32 s44, s40, 3")
    a("v_and_b32 v3, 15, v2"); a("v_lshrrev_b32 v4, 4, v2"); a("v_lshlrev_b32 v5, 4, v2")
    lds_spin(a, GO2A, 1, 1, 6)
    srd(a, 16, 4, 2048 * 1152); srd(a, 20, 6, 2048 * 1152)
    a("s_mul_i32 s45, s44, 9"); a("s_add_u32 s46, s45, s42"); a("s_mul_i32 s46, s46, 18*1024"); a("s_add_u32 s46, s46, 0x%x" % OFF_WOF)
    for ks in range(18):
        a("buffer_load_dwordx4 %s, v5, s[36:39], s46 offen offset:%d sc1" % (v(WA + 4 * ks, 4), (ks % 4) * 1024))
        if ks % 4 == 3: a("s_add_u32 s46, s46, 4096")
    a("v_add_u32 v6, s43, v3")
    a("v_mul_u32_u24 v7, 1152, v6"); a("v_lshl_add_u32 v7, v4, 3, v7")
    a("s_mul_i32 s47, s44, 288"); a("s_lshl_b32 s48, s42, 5"); a("s_add_u32 s48, s48, s47")
    a("buffer_load_dwordx2 v[8:9], v7, s[16:19], s48 offen")
    a("s_add_u32 s49, s48, 16*1152"); a("buffer_load_dwordx2 v[10:11], v7, s[16:19], s49 offen")
    a("s_and_b32 s50, s42, 1"); a("s_mul_i32 s50, s50, 16*1152"); a("s_add_u32 s50, s50, s47"); a("s_add_u32 s50, s50, 256")
    a("buffer_load_dwordx2 v[12:13], v7, s[16:19], s50 offen")
    a("v_lshlrev_b32 v14, 2, v6"); a("s_mov_b32 s51, 0x%x" % OFF_G)
    a("buffer_load_dword v16, v14, s[36:39], s51 offen sc1"); a("buffer_load_dword v17, v14, s[36:39], s51 offen offset:64 sc1")
    a("s_cmp_lt_u32 s42, 4")
    a("s_cbranch_scc1 L3_prepO")
    a("s_cmp_lt_u32 s42, 6")
    a("s_cbranch_scc1 L3_prepY")
    a("s_add_u32 s46, s45, 8"); a("s_mul_i32 s46, s46, 18*1024"); a("s_add_u32 s46, s46, 0x%x" % OFF_WOF)
    a("s_sub_u32 s52, s42, 6"); a("s_mul_i32 s52, s52, 9216"); a("s_add_u32 s46, s46, s52")
    for i in range(9):
        a("buffer_load_dwordx4 %s, v5, s[36:39], s46 offen offset:%d sc1" % (v(ST + 4 * i, 4), (i % 4) * 1024))
        if i % 4 == 3: a("s_add_u32 s46, s46, 4096")
    a("s_add_u32 s52, s52, %d" % W8); a("v_add_u32 v14, s52, v5")
    for i in range(9):
        a("s_waitcnt vmcnt(%d)" % (8 - i))
        a("ds_write_b128 v14, %s offset:%d" % (v(ST + 4 * i, 4), 1024 * i))
    a("s_branch L3_prepdone")
    a.label("L3_prepY")
    a("v_lshrrev_b32 v14, 2, v2"); a("v_and_b32 v15, 3, v2")
    a("s_sub_u32 s52, s42, 4"); a("s_mul_i32 s52, s52, 80")
    a("s_mul_i32 s53, s44, 144"); a("s_add_u32 s53, s53, s52")
    a("v_add_u32 v14, s53, v14"); a("v_lshlrev_b32 v14, 12, v14"); a("v_lshl_add_u32 v14, v15, 4, v14")
    a("s_lshl_b32 s53, s43, 1"); a("s_add_u32 s53, s53, 0x%x" % OFF_YT)
    for i in range(5):
        a("buffer_load_dwordx4 %s, v14, s[36:39], s53 offen sc1" % v(ST + 4 * i, 4))
        a("s_add_u32 s53, s53, 16*4096")
    a("s_lshl_b32 s52, s52, 6"); a("s_add_u32 s52, s52, %d" % YB)
    a("v_add_u32 v14, s52, v5")
    for i in range(5):
        a("s_waitcnt vmcnt(%d)" % (4 - i))
        a("ds_write_b128 v14, %s offset:%d" % (v(ST + 4 * i, 4), 1024 * i))
    a("s_branch L3_prepdone")
    a.label("L3_prepO")
    OA_ = 156
    a("s_movk_i32 s52, 7282"); a("s_mul_i32 s54, s42, 288"); a("s_add_u32 s54, s54, %d" % OB)
    for part in range(2):
        for j in range(4):
            r = OA_ + 4 * part + j
            a("v_lshlrev_b32 v14, 2, v2"); a("v_add_u32 v14, %d, v14" % (256 * part + j))
            a("v_mul_u32_u24 v15, s52, v14"); a("v_lshrrev_b32 v15, 16, v15")
            a("v_mul_u32_u24 v18, 9, v15"); a("v_sub_u32 v14, v14, v18")
            a("v_mul_u32_u24 v15, 1168, v15"); a("v_lshl_add_u32 v15, v14, 2, v15")
            a("v_add_u32 v%d, s54, v15" % r)
    assert all((q * 7282 >> 16) == q // 9 for q in range(288))
    a.label("L3_prepdone")
    a("s_waitcnt vmcnt(0) lgkmcnt(0)")
    a("s_barrier")
    stamp(a, 13)
    a("s_cmp_lg_u32 s42, 0")
    a("s_cbranch_scc1 L3_waitgo")
    a("s_add_u32 s52, s41, %d" % C5)
    atomic_inc(a, 52, 14, 15)
    a("s_add_u32 s52, s41, %d" % C5); a("s_lshl_b32 s52, s52, 7"); a("s_add_u32 s52, s52, 0x%x" % OFF_CNT)
    a("v_mov_b32 v14, s52"); a("v_mov_b32 v15, 32")
    poll_global(a, 14, 15, vt=18)
    lds_set(a, GO2B, 1, 18)
    a("s_branch L3_go")
    a.label("L3_waitgo")
    lds_spin(a, GO2B, 1, 1, 18)
    a.label("L3_go")
    stamp(a, 9)
    a("s_cmp_ge_u32 s42, 4")
    a("s_cbranch_scc1 L3_noO")
    a("s_lshl_b32 s52, s42, 3"); a("s_mul_i32 s53, s52, %d" % O_HEAD); a("s_mul_i32 s54, s43, 36"); a("s_add_u32 s53, s53, s54"); a("s_add_u32 s53, s53, 0x%x" % OFF_O)
    a("v_add_u32 v14, 1024, v5"); a("v_mov_b32 v15, 0x%x" % OOB); a("v_cmp_gt_u32 vcc, 8, v2"); a("s_nop 1"); a("v_cndmask_b32 v14, v15, v14, vcc")
    for hh in range(8):
        a("buffer_load_dwordx4 %s, v5, s[36:39], s53 offen sc1" % v(ST + 8 * hh, 4))
        a("buffer_load_dwordx4 %s, v14, s[36:39], s53 offen sc1" % v(ST + 8 * hh + 4, 4))
        a("s_add_u32 s53, s53, %d" % O_HEAD)
    for hh in range(8):
        a("s_waitcnt vmcnt(%d)" % (15 - 2 * hh))
        for j in range(4): a("ds_write_b32 v%d, v%d offset:%d" % (OA_ + j, ST + 8 * hh + j, 36 * hh))
        a("s_waitcnt vmcnt(%d)" % (14 - 2 * hh))
        a("s_mov_b64 exec, 0xff")
        for j in range(4): a("ds_write_b32 v%d, v%d offset:%d" % (OA_ + 4 + j, ST + 8 * hh + 4 + j, 36 * hh))
        a("s_mov_b64 exec, -1")
    a("s_waitcnt lgkmcnt(0)")
    a.label("L3_noO")
    a("s_barrier")
    stamp(a, 10)
    a("v_mul_u32_u24 v6, 1168, v3"); a("v_lshl_add_u32 v6, v4, 4, v6"); a("v_add_u32 v6, %d, v6" % OB)
    a("s_and_b32 s52, s42, 1"); a("s_mul_i32 s52, s52, 16*1168"); a("v_add_u32 v7, s52, v6")
    a("v_add_u32 v14, %d, v5" % W8)
    AC = [92, 96, 100]; BFR = [104, 116]; A2 = [128, 132]
    def kloop(three):
        def rd(ks):
            b = BFR[ks & 1]
            out = ["ds_read_b128 %s, v6 offset:%d" % (v(b, 4), 64 * ks), "ds_read_b128 %s, v6 offset:%d" % (v(b + 4, 4), 64 * ks + 16 * 1168)]
            if three:
                out += ["ds_read_b128 %s, v7 offset:%d" % (v(b + 8, 4), 64 * ks), "ds_read_b128 %s, v14 offset:%d" % (v(A2[ks & 1], 4), 1024 * ks)]
            return out
        n = 4 if three else 2
        for x in rd(0): a(x)
        for ks in range(18):
            if ks < 17:
                for x in rd(ks + 1): a(x)
                a("s_waitcnt lgkmcnt(%d)" % n)
            else:
                a("s_waitcnt lgkmcnt(0)")
            b = BFR[ks & 1]
            for t in range(2):
                c = "0" if ks == 0 else v(AC[t], 4)
                a("v_mfma_f32_16x16x32_bf16 %s, %s, %s, %s" % (v(AC[t], 4), v(WA + 4 * ks, 4), v(b + 4 * t, 4), c))
            if three:
                c = "0" if ks == 0 else v(AC[2], 4)
                a("v_mfma_f32_16x16x32_bf16 %s, %s, %s, %s" % (v(AC[2], 4), v(A2[ks & 1], 4), v(b + 8, 4), c))
    def epi(t, mreg_off, n_expr, xr, gr):
        a("v_lshrrev_b32 v136, 2, v2"); a("v_and_b32 v136, 3, v136"); a("v_lshl_add_u32 v136, v4, 2, v136")
        a("v_add_u32 v136, s%d, v136" % mreg_off); a("v_lshlrev_b32 v136, 6, v136")
        a("v_and_b32 v137, 3, v2"); a("v_lshl_add_u32 v136, v137, 3, v136")
        a("s_lshl_b32 s56, s%d, 5" % n_expr); a("s_add_u32 s56, s56, %d" % YB)
        a("v_add_u32 v136, s56, v136")
        a("ds_read_b64_tr_b16 v[138:139], v136")
        a("v_sub_f32 v140, 1.0, v%d" % gr)
        a("s_waitcnt lgkmcnt(0)")
        for r in range(4):
            x_, y_ = xr + r // 2, 138 + r // 2
            if r % 2 == 0:
                a("v_lshlrev_b32 v141, 16, v%d" % x_); a("v_lshlrev_b32 v142, 16, v%d" % y_)
            else:
                a("v_and_b32 v141, 0xffff0000, v%d" % x_); a("v_and_b32 v142, 0xffff0000, v%d" % y_)
            a("v_mul_f32 v141, v141, v142"); a("v_mul_f32 v141, v141, v140")
            a("v_fma_f32 v%d, v%d, v%d, v141" % (AC[t] + r, AC[t] + r, gr))
        a("v_cvt_pk_bf16_f32 v144, v%d, v%d" % (AC[t], AC[t] + 1)); a("v_cvt_pk_bf16_f32 v145, v%d, v%d" % (AC[t] + 2, AC[t] + 3))
        a("s_lshl_b32 s56, s%d, 4" % n_expr); a("v_add_u32 v146, s56, v3"); a("v_mul_u32_u24 v146, 304, v146")
        a("v_lshl_add_u32 v146, v4, 3, v146"); a("s_lshl_b32 s56, s%d, 1" % mreg_off); a("s_add_u32 s56, s56, %d" % UB)
        a("v_add_u32 v146, s56, v146")
        a("ds_write_b64 v146, v[144:145]")
    a("s_cmp_ge_u32 s42, 6")
    a("s_cbranch_scc1 L3_k3")
    kloop(False)
    a("s_branch L3_kdone")
    a.label("L3_k3")
    kloop(True)
    a.label("L3_kdone")
    stamp(a, 11)
    a("s_lshl_b32 s58, s42, 4"); a("s_mov_b32 s59, 0"); a("s_mov_b32 s60, 1"); a("s_nop 4")
    epi(0, 58, 59, 8, 16)
    epi(1, 58, 60, 10, 17)
    a("s_cmp_lt_u32 s42, 6")
    a("s_cbranch_scc1 L3_edone")
    a("s_movk_i32 s58, 128"); a("s_and_b32 s59, s42, 1")
    a("s_cmp_eq_u32 s59, 0"); a("s_cselect_b64 vcc, -1, 0"); a("v_cndmask_b32 v18, v17, v16, vcc")
    epi(2, 58, 59, 12, 18)
    a.label("L3_edone")
    a("s_waitcnt lgkmcnt(0)")
    a("s_barrier")
    a("s_movk_i32 s56, 3641")
    for rep in range(2):
        if rep == 1:
            a("s_cmp_lg_u32 s42, 0"); a("s_cbranch_scc1 L_fin")
        a("s_lshl_b32 s57, s42, 6"); a("v_add_u32 v6, s57, v2")
        if rep == 1: a("v_add_u32 v6, 512, v6")
        a("v_mul_u32_u24 v7, s56, v6"); a("v_lshrrev_b32 v7, 16, v7")
        a("v_mul_u32_u24 v8, 18, v7"); a("v_sub_u32 v8, v6, v8")
        a("v_mul_u32_u24 v9, 304, v7"); a("v_lshl_add_u32 v9, v8, 4, v9"); a("v_add_u32 v9, %d, v9" % UB)
        a("ds_read_b128 v[24:27], v9")
        a("v_add_u32 v7, s43, v7"); a("v_mul_u32_u24 v7, 1152, v7"); a("v_lshl_add_u32 v7, v8, 4, v7")
        a("s_waitcnt lgkmcnt(0)")
        a("buffer_store_dwordx4 v[24:27], v7, s[20:23], s47 offen")
    assert all((x * 3641 >> 16) == x // 18 for x in range(576))

def descriptor(name, nvgpr, nsgpr=100):
    return """.p2align 6
.amdhsa_kernel %s
  .amdhsa_next_free_vgpr %d
  .amdhsa_next_free_sgpr %d
  .amdhsa_accum_offset %d
  .amdhsa_group_segment_fixed_size 0
  .amdhsa_kernarg_size 104
  .amdhsa_user_sgpr_count 2
  .amdhsa_user_sgpr_kernarg_segment_ptr 1
  .amdhsa_system_sgpr_workgroup_id_x 1
  .amdhsa_float_denorm_mode_32 3
.end_amdhsa_kernel
""" % (name, nvgpr, nsgpr, nvgpr)

def main():
    global DIAG
    DIAG = "--diag" in sys.argv
    for x in sys.argv:
        if x.startswith("--exp="): EXP.update(x[6:].split(","))
    args = [x for x in sys.argv[1:] if not x.startswith("--")]
    a = Asm()
    hdr = open("gated_mix__mha_block__ssm_conv_h3__prompt.s.ref").read().split("\n")
    head = [l for l in hdr if l.startswith(";") and "@launch" not in l and "Override" not in l and "grid=ceil" not in l]
    a.raw("\n".join(head))
    a.raw("; @launch grid=(256,1,1) block=(768,1,1) lds=%d" % LDS_TOTAL)
    a.raw('.amdgcn_target "amdgcn-amd-amdhsa--gfx950"')
    a.raw(".text")
    a.raw(".globl %s" % NAME); a.raw(".p2align 8"); a.raw(".type %s,@function" % NAME); a.label(NAME)
    a("s_cmp_ge_u32 s2, 256")
    a("s_cbranch_scc1 L_end")
    phase1(a)
    phase2(a)
    a.label("L_fin")
    stamp(a, 12)
    stamp_store(a)
    a.label("L_end")
    a("s_endpgm")
    a.raw('.section .rodata,"a"')
    a.raw(descriptor(NAME, 168))
    out = args[0] if args else "fused.s"
    open(out, "w").write(a.text())
    probs = check_seq(a.lines, "all")
    for p in probs: print("HAZARD", p)
    print("wrote", out, len(a.lines), "lines")

if __name__ == "__main__":
    main()
```

```python
import sys, struct
from asmlib import *

NAME = "gated_mix__mha_block__ssm_conv_h3__prompt_kernel"
KV_HEAD = 147456
Q_HEAD  = 73728
OFF_KV  = 0
OFF_Q   = OFF_KV + 32 * KV_HEAD
URT_ROW = 4096
OFF_URT = OFF_Q + 32 * Q_HEAD
HP_ROW  = 5120
OFF_HP  = OFF_URT + 576 * URT_ROW
OFF_YT  = OFF_HP + 576 * 2 * HP_ROW
O_HEAD  = 2048 * 36
OFF_O   = OFF_YT + 576 * 4096
OFF_G   = OFF_O + 32 * O_HEAD
OFF_WOF = OFF_G + 2048 * 4
OFF_MX  = OFF_WOF + 648 * 1024
OFF_CNT = OFF_MX + 256 * 8 * 512
WS_USED = OFF_CNT + 256 * 128
WS_SRD_SIZE = 0x2000000
assert WS_USED <= WS_SRD_SIZE and OFF_CNT % 128 == 0
C1, C2, C3, C4, C5 = 0, 128, 137, 141, 142
QSCALE = 1.4426950408889634 / (18.0 ** 0.5)
def f32bits(x): return struct.unpack("<I", struct.pack("<f", x))[0]
OOB = 0x80000000
LDS_KV = 147456
LDS_UR = LDS_KV
LDS_FLAG = LDS_UR + 3 * 4608
FA, FB, FBAD, GO1, CNT, GO2A, GO2B = LDS_FLAG, LDS_FLAG + 4, LDS_FLAG + 8, LDS_FLAG + 12, LDS_FLAG + 16, LDS_FLAG + 32, LDS_FLAG + 36
SB1, SB2, SB3, SB4, SB5 = LDS_FLAG + 40, LDS_FLAG + 44, LDS_FLAG + 48, LDS_FLAG + 52, LDS_FLAG + 56
LDS_TOTAL = LDS_FLAG + 64
VMASK = 0x0003FFFF
SPIN_MAX = 400000
NPRE = 8

DIAG = False
EXP = set()
NST = 16
RT = False
def stamp(a, i):
    if not DIAG: return
    a("%s s[76:77]" % ("s_memrealtime" if RT else "s_memtime")); a("s_waitcnt lgkmcnt(0)"); a("s_mov_b32 s%d, s76" % (80 + i))
def rstamp(a, i):
    if not DIAG or RT: return
    a("s_memrealtime s[76:77]"); a("s_waitcnt lgkmcnt(0)"); a("s_mov_b32 s%d, s76" % (80 + i))
def stamp_init(a):
    if not DIAG: return
    for i in range(NST): a("s_mov_b32 s%d, 0" % (80 + i))
def stamp_store(a):
    if not DIAG: return
    a("s_waitcnt vmcnt(0)")
    a("s_mov_b32 s38, 0x4000000")
    a("v_lshrrev_b32 v1, 6, v0"); a("s_lshl_b32 s78, s2, 4"); a("v_add_u32 v1, s78, v1")
    a("v_lshlrev_b32 v1, 6, v1"); a("v_add_u32 v1, 0x3000000, v1")
    for i in range(NST):
        a("v_mov_b32 v2, s%d" % (80 + i))
        a("buffer_store_dword v2, v1, s[36:39], 0 offen offset:%d" % (4 * i))

def srd(a, dst, ptr, size):
    a("s_mov_b32 s%d, s%d" % (dst, ptr))
    a("s_and_b32 s%d, s%d, 0xffff" % (dst + 1, ptr + 1))
    a("s_mov_b32 s%d, 0x%x" % (dst + 2, size))
    a("s_mov_b32 s%d, 0x20000" % (dst + 3))

def lds_arrive(a, addr, va=1, vb=3):
    a("v_mov_b32 v%d, %d" % (va, addr)); a("v_mov_b32 v%d, 1" % vb)
    a("s_mov_b64 exec, 1"); a("ds_add_u32 v%d, v%d" % (va, vb)); a("s_mov_b64 exec, -1")
def lds_set(a, addr, va=1, vb=3):
    a("v_mov_b32 v%d, %d" % (va, addr)); a("v_mov_b32 v%d, 1" % vb)
    a("ds_write_b32 v%d, v%d" % (va, vb)); a("s_waitcnt lgkmcnt(0)")
def lds_spin(a, addr, target, va=1, vb=3, st=56, sleep=True):
    l = a.uid("Lspin")
    a("v_mov_b32 v%d, %d" % (va, addr))
    a.label(l)
    a("ds_read_b32 v%d, v%d" % (vb, va)); a("s_waitcnt lgkmcnt(0)")
    a("v_readfirstlane_b32 s%d, v%d" % (st, vb))
    a("s_cmp_ge_u32 s%d, %d" % (st, target))
    a("s_cbranch_scc1 %s_x" % l)
    if sleep: a("s_sleep 1")
    a("s_branch %s" % l)
    a.label(l + "_x")
def soft_barrier(a, addr, n, va=1, vb=3):
    lds_arrive(a, addr, va, vb)
    lds_spin(a, addr, n, va, vb, sleep=False)
def poll_global(a, voff, vtgt, vt=3, sb=57):
    l = a.uid("Lpoll")
    a("s_mov_b32 s%d, %d" % (sb, SPIN_MAX))
    a.label(l)
    a("buffer_load_dword v%d, v%d, s[36:39], 0 offen sc1" % (vt, voff))
    a("s_waitcnt vmcnt(0)")
    a("v_cmp_lt_u32 vcc, v%d, v%d" % (vt, vtgt))
    a("s_nop 3")
    a("s_cmp_eq_u64 vcc, 0")
    a("s_cbranch_scc1 %s_x" % l)
    a("s_sleep 2")
    a("s_sub_u32 s%d, s%d, 1" % (sb, sb))
    a("s_cmp_lg_u32 s%d, 0" % sb)
    a("s_cbranch_scc1 %s" % l)
    a.label(l + "_x")
def atomic_inc(a, sidx, va=1, vb=3):
    a("s_lshl_b32 s57, s%d, 7" % sidx); a("s_add_u32 s57, s57, 0x%x" % OFF_CNT)
    a("v_mov_b32 v%d, s57" % va); a("v_mov_b32 v%d, 1" % vb)
    a("s_mov_b64 exec, 1")
    a("buffer_atomic_add v%d, v%d, s[36:39], 0 offen sc1" % (vb, va))
    a("s_mov_b64 exec, -1")

def hloads(a):
    l = a.uid("Lh")
    a("s_lshl_b32 s61, s43, 8"); a("s_add_u32 s61, s61, s2")
    a("s_cmp_ge_u32 s61, 576"); a("s_cselect_b32 s58, 1, 0"); a("s_cmp_eq_u32 s42, 11"); a("s_cselect_b32 s58, 1, s58")
    a("s_load_dwordx2 s[62:63], s[0:1], 56")
    a("v_lshlrev_b32 v118, 4, v2"); a("v_subrev_u32 v119, 32, v118")
    a("s_waitcnt lgkmcnt(0)")
    a("s_min_u32 s61, s61, 575")
    a("s_lshl_b32 s56, s61, 12")
    a("s_add_u32 s64, s62, s56"); a("s_addc_u32 s65, s63, 0"); a("s_and_b32 s65, s65, 0xffff")
    a("s_mov_b32 s66, 4096"); a("s_mov_b32 s67, 0x20000")
    a("s_cmp_eq_u32 s58, 1"); a("s_cbranch_scc1 %s" % l)
    for it in range(5):
        if it == 0:
            a("buffer_load_dwordx4 v[120:123], v119, s[64:67], 0 offen")
            a("v_add_u32 v117, 16, v119")
            a("buffer_load_dword v124, v117, s[64:67], 0 offen")
        else:
            a("v_add_u32 v117, %d, v119" % (1024 * it))
            a("buffer_load_dwordx4 %s, v117, s[64:67], 0 offen" % v(120 + 8 * it, 4))
            a("buffer_load_dword v%d, v117, s[64:67], 0 offen offset:16" % (124 + 8 * it))
    a.label(l)
def hstores(a):
    l = a.uid("Lhs")
    a("s_cmp_eq_u32 s58, 1"); a("s_cbranch_scc1 %s" % l)
    a("s_mul_i32 s62, s61, %d" % (2 * HP_ROW)); a("s_add_u32 s62, s62, 0x%x" % OFF_HP); a("s_add_u32 s63, s62, %d" % HP_ROW)
    for it in range(5):
        b = 120 + 8 * it; t = 160 + 4 * (it & 1)
        for k in range(4): a("v_alignbit_b32 v%d, v%d, v%d, 16" % (t + k, b + k + 1, b + k))
        if it < 4:
            a("buffer_store_dwordx4 %s, v118, s[36:39], s62 offen offset:%d" % (v(b, 4), 1024 * it))
            a("buffer_store_dwordx4 %s, v118, s[36:39], s63 offen offset:%d" % (v(t, 4), 1024 * it))
        else:
            a("s_add_u32 s56, s62, 4096"); a("buffer_store_dwordx4 %s, v118, s[36:39], s56 offen" % v(b, 4))
            a("s_add_u32 s56, s63, 4096"); a("buffer_store_dwordx4 %s, v118, s[36:39], s56 offen" % v(t, 4))
        a("s_nop 1")
    a.label(l)

def phase1(a):
    a("s_load_dwordx4 s[4:7], s[0:1], 0")
    a("s_load_dwordx4 s[8:11], s[0:1], 32")
    a("s_load_dwordx2 s[12:13], s[0:1], 48")
    a("s_load_dwordx2 s[14:15], s[0:1], 96")
    a("s_and_b32 s40, s2, 1"); a("s_lshl_b32 s40, s40, 3")
    a("s_lshr_b32 s43, s2, 3"); a("s_and_b32 s43, s43, 7")
    a("s_add_u32 s40, s40, s43")
    a("s_lshr_b32 s41, s2, 1"); a("s_and_b32 s41, s41, 3"); a("s_lshl_b32 s41, s41, 2")
    a("s_lshr_b32 s43, s2, 6"); a("s_add_u32 s41, s41, s43")
    a("v_lshrrev_b32 v1, 6, v0")
    a("v_and_b32 v2, 63, v0")
    a("v_readfirstlane_b32 s42, v1")
    a("v_and_b32 v3, 15, v2")
    a("v_lshrrev_b32 v4, 4, v2")
    a("s_waitcnt lgkmcnt(0)")
    srd(a, 36, 14, WS_SRD_SIZE)
    stamp_init(a); stamp(a, 0)
    a("s_cmp_ge_u32 s42, 8")
    a("s_cbranch_scc1 L1_side")
    srd(a, 16, 4, 2048 * 1152)
    srd(a, 20, 6, 576 * 3456)
    a("v_lshrrev_b32 v5, 3, v2"); a("v_and_b32 v6, 7, v2")
    a("s_lshl_b32 s43, s41, 7"); a("s_lshl_b32 s44, s42, 4"); a("s_add_u32 s43, s43, s44")
    a("v_add_u32 v5, s43, v5")
    a("s_movk_i32 s44, 1152")
    a("v_mul_lo_u32 v5, v5, s44")
    a("v_xor_b32 v7, v6, v4")
    a("v_lshl_add_u32 v8, v7, 4, v5")
    a("v_xor_b32 v7, 4, v7")
    a("v_lshl_add_u32 v9, v7, 4, v5")
    a("v_add_u32 v9, 9216, v9")
    a("s_and_b32 s44, s42, 1"); a("s_lshl_b32 s44, s44, 3")
    a("v_lshlrev_b32 v5, 1, v4"); a("v_add_u32 v5, s44, v5"); a("v_xor_b32 v5, v5, v3")
    a("v_min_u32 v5, 13, v5")
    a("s_movk_i32 s44, 3456")
    a("v_mul_lo_u32 v6, v4, s44")
    a("v_lshl_add_u32 v10, v5, 4, v6")
    a("s_mul_i32 s45, s40, 216"); a("s_mul_i32 s46, s42, 8*3456"); a("s_add_u32 s46, s46, s45")
    a("s_mov_b32 s47, 0")
    a("s_lshl_b32 s48, s42, 11")
    def dma_groups():
        g0 = ["s_mov_b32 m0, s48", "s_add_u32 s49, s48, 1024", "buffer_load_dwordx4 v8, s[16:19], s47 offen lds"]
        g1 = ["s_mov_b32 m0, s49", "s_add_u32 s49, s48, 16384", "buffer_load_dwordx4 v9, s[16:19], s47 offen lds"]
        g2 = ["s_mov_b32 m0, s49", "s_add_u32 s49, s48, 17408", "buffer_load_dwordx4 v10, s[20:23], s46 offen lds"]
        g3 = ["s_mov_b32 m0, s49", "s_add_u32 s50, s46, 4*3456", "buffer_load_dwordx4 v10, s[20:23], s50 offen lds",
              "s_add_u32 s46, s46, 64*3456", "s_add_u32 s47, s47, 128", "s_add_u32 s48, s48, 32768", "s_and_b32 s48, s48, 0x1ffff"]
        return [g0, g1, g2, g3]
    def dma_stage():
        for g in dma_groups():
            for x in g: a(x)
    dma_stage()
    a("s_and_b32 s51, s42, 3"); a("s_lshr_b32 s52, s42, 2")
    a("s_lshl_b32 s44, s51, 5")
    a("v_add_u32 v5, s44, v3"); a("v_lshlrev_b32 v5, 7, v5")
    a("v_lshrrev_b32 v6, 1, v3"); a("v_xor_b32 v6, v6, v4")
    a("v_lshl_add_u32 v11, v6, 4, v5")
    a("v_xor_b32 v12, 64, v11")
    a("v_add_u32 v13, 0x10000, v11"); a("v_add_u32 v14, 0x10000, v12")
    AW = 16
    a("v_lshrrev_b32 v6, 2, v2"); a("v_and_b32 v6, 3, v6"); a("v_and_b32 v7, 3, v2")
    a("v_lshl_add_u32 v1, v4, 3, v6"); a("v_lshlrev_b32 v1, 8, v1")
    a("v_and_b32 v5, 1, v7"); a("v_lshl_add_u32 v1, v5, 3, v1")
    a("v_lshrrev_b32 v7, 1, v7"); a("v_lshl_add_u32 v1, v7, 4, v1")
    a("v_add_u32 v1, 16384, v1")
    a("v_and_b32 v5, 1, v4"); a("v_lshlrev_b32 v5, 3, v5"); a("v_lshl_add_u32 v5, v6, 1, v5")
    a("s_lshl_b32 s44, s52, 3")
    for i in range(4):
        a("s_add_u32 s45, s44, %d" % (2 * i))
        a("v_xor_b32 v6, s45, v5")
        a("v_lshl_add_u32 v%d, v6, 4, v1" % (AW + i))
        a("v_add_u32 v%d, 0x10000, v%d" % (AW + 4 + i, AW + i))
    dma_stage()
    ACC, AF, BF = 32, 64, 96
    TA_, TS_ = 112, 120
    a("s_lshl_b32 s44, s51, 5")
    a("v_add_u32 v5, s44, v3")
    a("s_movk_i32 s44, 304")
    a("v_mul_lo_u32 v5, v5, s44")
    a("s_mul_i32 s44, s40, 6"); a("s_sub_i32 s44, 32, s44"); a("s_max_i32 s44, s44, 0"); a("s_min_i32 s44, s44, 6")
    a("s_mul_i32 s54, s44, 18")
    a("s_lshl_b32 s55, s52, 6")
    a("v_lshl_add_u32 v6, v4, 2, s55")
    a("s_movk_i32 s56, 3641")
    a("v_mov_b32 v24, 1.0")
    a("v_mov_b32 v25, 0x%x" % f32bits(QSCALE))
    for i in range(4):
        for p in range(2):
            k = 2 * i + p
            a("v_add_u32 v26, %d, v6" % (16 * i + 2 * p))
            a("v_min_u32 v26, 110, v26")
            a("v_mul_u32_u24 v27, s56, v26")
            a("v_cmp_gt_u32 vcc, s54, v26")
            a("v_lshrrev_b32 v27, 16, v27")
            a("v_mul_u32_u24 v27, 12, v27")
            a("v_cndmask_b32 v%d, v24, v25, vcc" % (TS_ + k))
            a("v_lshl_add_u32 v27, v26, 1, v27")
            a("v_add_u32 v%d, v27, v5" % (TA_ + k))
    dma_stage()
    def reads(u):
        st, kk = divmod(u, 2)
        slot = st & 3; hi = slot >> 1; off = (slot & 1) * 32768; buf = u & 1
        out = []
        bb = (13 if hi else 11) + kk
        out.append("ds_read_b128 %s, v%d offset:%d" % (v(BF + 8 * buf, 4), bb, off))
        out.append("ds_read_b128 %s, v%d offset:%d" % (v(BF + 8 * buf + 4, 4), bb, off + 2048))
        for i in range(4):
            ar = AW + 4 * hi + i
            out.append("ds_read_b64_tr_b16 %s, v%d offset:%d" % (v(AF + 16 * buf + 4 * i, 2), ar, off + kk * 8192))
            out.append("ds_read_b64_tr_b16 %s, v%d offset:%d" % (v(AF + 16 * buf + 4 * i + 2, 2), ar, off + kk * 8192 + 1024))
        return out
    def mf(u, j):
        buf = u & 1; i, n = j >> 1, j & 1
        c = "0" if u == 0 else v(ACC + 8 * i + 4 * n, 4)
        a("v_mfma_f32_16x16x32_bf16 %s, %s, %s, %s" % (v(ACC + 8 * i + 4 * n, 4), v(AF + 16 * buf + 4 * i, 4), v(BF + 8 * buf + 4 * n, 4), c))
    stamp(a, 1)
    a("s_waitcnt vmcnt(8)")
    a("s_barrier")
    if RT: stamp(a, 14)
    for x in reads(0): a(x)
    NU = 18
    for u in range(NU):
        st, kk = divmod(u, 2)
        last = (u == NU - 1)
        dg = []
        if kk == 1 and not last:
            a("s_waitcnt vmcnt(%d)" % (4 if st <= 6 else 0))
            a("s_barrier")
            if RT and st == 3: stamp(a, 15)
            if st + 3 <= 8: dg = dma_groups()
        nr = [] if last else reads(u + 1)
        waits = {0: 6, 2: 8, 4: 10, 6: 10} if not last else {0: 6, 2: 4, 4: 2, 6: 0}
        for j in range(8):
            if j in waits: a("s_waitcnt lgkmcnt(%d)" % waits[j])
            mf(u, j)
            if j < 5 and nr:
                a(nr[2 * j]); a(nr[2 * j + 1])
            if dg and j >= 4:
                for x in dg[j - 4]: a(x)
    stamp(a, 2)
    soft_barrier(a, SB1, 8, 1, 5)
    for i in range(4):
        for p in range(2):
            k = 2 * i + p
            for n in range(2):
                r0 = ACC + 8 * i + 4 * n + 2 * p
                a("v_mul_f32 v%d, v%d, v%d" % (r0, TS_ + k, r0))
                a("v_mul_f32 v%d, v%d, v%d" % (r0 + 1, TS_ + k, r0 + 1))
    for i in range(4):
        for p in range(2):
            for n in range(2):
                r0 = ACC + 8 * i + 4 * n + 2 * p
                a("v_cvt_pk_bf16_f32 v%d, v%d, v%d" % (r0, r0, r0 + 1))
    for i in range(4):
        for p in range(2):
            k = 2 * i + p
            for n in range(2):
                r0 = ACC + 8 * i + 4 * n + 2 * p
                a("ds_write_b32 v%d, v%d offset:%d" % (TA_ + k, r0, n * 16 * 304))
    a("s_waitcnt lgkmcnt(0)")
    a("s_branch L1_out")

    a.label("L1_side")
    a("s_setprio 3")
    a("s_sub_u32 s43, s42, 8")
    if 'pref' in EXP:
        srd(a, 16, 4, 2048 * 1152); srd(a, 20, 6, 576 * 3456)
        a("s_lshr_b32 s44, s2, 3"); a("s_lshl_b32 s44, s44, 2"); a("s_add_u32 s44, s44, s43"); a("s_lshl_b32 s44, s44, 7")
        a("s_lshr_b32 s45, s2, 1"); a("s_and_b32 s45, s45, 3"); a("s_mul_i32 s45, s45, 512*1152")
        a("s_and_b32 s46, s2, 1"); a("s_mul_i32 s46, s46, 1664")
        a("s_movk_i32 s47, 7282"); a("s_mov_b32 s48, 34953")
        for e in range(2):
            a("v_lshl_add_u32 v5, v2, 1, s44");
            if e: a("v_add_u32 v5, 1, v5")
            a("v_mul_u32_u24 v6, s47, v5"); a("v_lshrrev_b32 v6, 16, v6"); a("v_mul_u32_u24 v7, 9, v6"); a("v_sub_u32 v7, v5, v7")
            a("v_mul_u32_u24 v6, 1152, v6"); a("v_lshl_add_u32 v6, v7, 7, v6"); a("v_add_u32 v6, s45, v6")
            a("v_mov_b32 v8, 0x%x" % OOB); a("v_cmp_gt_u32 vcc, 4608, v5"); a("s_nop 1"); a("v_cndmask_b32 v6, v8, v6, vcc")
            a("buffer_load_dword v%d, v6, s[16:19], 0 offen" % (24 + 2 * e))
            a("v_subrev_u32 v5, 4608, v5")
            a("v_mul_u32_u24 v6, s48, v5"); a("v_lshrrev_b32 v6, 19, v6"); a("v_mul_u32_u24 v7, 15, v6"); a("v_sub_u32 v7, v5, v7")
            a("v_mul_u32_u24 v6, 3456, v6"); a("v_lshl_add_u32 v6, v7, 7, v6"); a("v_add_u32 v6, s46, v6")
            a("v_cmp_gt_u32 vcc, 8640, v5"); a("s_nop 1"); a("v_cndmask_b32 v6, v8, v6, vcc")
            a("buffer_load_dword v%d, v6, s[20:23], 0 offen" % (25 + 2 * e))
    if "notlb" not in EXP:
        a("s_load_dwordx2 s[16:17], s[0:1], 80")
        a("s_waitcnt lgkmcnt(0)")
        srd(a, 24, 16, 2048 * 1152)
        a("s_lshl_b32 s44, s43, 6"); a("v_add_u32 v5, s44, v2"); a("v_lshlrev_b32 v5, 16, v5")
        a("buffer_load_dword v24, v5, s[36:39], 0 offen")
        a("v_add_u32 v6, 0x1000000, v5"); a("v_mov_b32 v7, 0x%x" % OOB); a("v_cmp_gt_u32 vcc, 0x%x, v6" % (WS_USED + 0x10000)); a("s_nop 1")
        a("v_cndmask_b32 v6, v7, v6, vcc")
        a("buffer_load_dword v25, v6, s[36:39], 0 offen")
        a("buffer_load_dword v26, v5, s[24:27], 0 offen")
    a("s_cmp_lg_u32 s42, 8")
    a("s_cbranch_scc1 L1_noflag")
    a("v_lshlrev_b32 v1, 2, v2"); a("v_add_u32 v1, %d, v1" % LDS_FLAG)
    a("v_mov_b32 v5, 0"); a("v_mov_b32 v6, 2")
    a("v_cmp_le_u32 vcc, 4, v2"); a("s_nop 1"); a("v_cndmask_b32 v5, v5, v6, vcc")
    a("v_cmp_le_u32 vcc, 8, v2"); a("v_mov_b32 v6, 0"); a("s_nop 0"); a("v_cndmask_b32 v5, v5, v6, vcc")
    a("s_mov_b64 exec, 0xffff")
    a("ds_write_b32 v1, v5")
    a("s_mov_b64 exec, -1")
    a.label("L1_noflag")
    a("s_load_dwordx2 s[16:17], s[0:1], 88")
    a("s_waitcnt lgkmcnt(0)")
    srd(a, 20, 16, 256)
    a("s_cmp_lg_u32 s42, 11")
    a("s_cbranch_scc1 L1_noinit")
    a("s_cmp_lg_u32 s2, 0")
    a("s_cbranch_scc1 L1_noinit")
    a("v_lshlrev_b32 v1, 7, v2"); a("v_add_u32 v1, 0x%x, v1" % OFF_CNT); a("v_mov_b32 v5, 0")
    for q in range(4):
        a("buffer_store_dword v5, v1, s[36:39], 0 offen sc1")
        a("v_add_u32 v1, 8192, v1")
    a("s_waitcnt vmcnt(0)")
    a("v_mov_b32 v1, 0"); a("v_mov_b32 v5, 1")
    a("s_mov_b64 exec, 1")
    a("buffer_store_dword v5, v1, s[20:23], 0 offen sc1")
    a("s_mov_b64 exec, -1")
    a.label("L1_noinit")
    a("v_mov_b32 v28, 0")
    a("s_cmp_lt_u32 s2, 144")
    a("s_cbranch_scc0 L1_misc")
    srd(a, 24, 8, 2048 * 1152); srd(a, 28, 10, 2048 * 1152); srd(a, 32, 12, 576 * 8)
    a("s_mul_hi_u32 s44, s2, 0x%x" % ((1 << 32) // 9 + 1))
    a("s_mul_i32 s45, s44, 9"); a("s_sub_u32 s45, s2, s45")
    a("v_and_b32 v10, 31, v2"); a("v_lshrrev_b32 v9, 5, v2")
    a("s_lshl_b32 s46, s43, 1"); a("v_add_u32 v9, s46, v9")
    a("s_lshl_b32 s46, s44, 7"); a("v_lshl_add_u32 v11, v9, 4, s46")
    a("s_lshl_b32 s46, s45, 7"); a("v_lshl_add_u32 v12, v10, 2, s46")
    a("s_movk_i32 s46, 1152")
    a("v_mul_lo_u32 v13, v11, s46"); a("v_add_u32 v13, v13, v12")
    a("v_subrev_u32 v14, 3456, v13")
    a("v_mov_b32 v15, 0x%x" % OOB)
    a("v_cmp_eq_u32 vcc, 0, v11")
    a("s_lshl_b32 s46, s45, 6")
    a("v_lshl_add_u32 v17, v10, 1, s46")
    a("v_cndmask_b32 v14, v14, v15, vcc")
    a("v_lshlrev_b32 v16, 3, v17")
    a("v_lshlrev_b32 v17, 12, v17")
    a("v_lshlrev_b32 v18, 1, v11")
    a("v_sub_u32 v17, v17, v18")
    a("v_add_u32 v17, 0x%x, v17" % (OFF_URT + 4064))
    KR, VR, WR = 32, 52, 68
    a("s_movk_i32 s48, 4608"); a("s_movk_i32 s49, 9216"); a("s_movk_i32 s50, 13824")
    soffs = ["0", "s48", "s49", "s50"]
    for b in range(NPRE): a("s_barrier")
    for i in range(3): a("buffer_load_dword v%d, v14, s[24:27], 0 offen offset:%d" % (KR + i, 1152 * i))
    for i in range(16): a("buffer_load_dword v%d, v13, s[24:27], %s offen offset:%d" % (KR + 3 + i, soffs[i // 4], 1152 * (i % 4)))
    a("buffer_load_dwordx4 %s, v16, s[32:35], 0 offen" % v(WR, 4))
    for i in range(16): a("buffer_load_dword v%d, v13, s[28:31], %s offen offset:%d" % (VR + i, soffs[i // 4], 1152 * (i % 4)))
    a("buffer_load_dword v19, v28, s[20:23], 0 offen sc1")
    hloads(a)
    for b in range(NPRE, 9): a("s_barrier")
    a("s_waitcnt vmcnt(0)")
    hstores(a)
    WF = 72
    for c in range(2):
        for p in range(2):
            src = WR + 2 * c + p
            a("v_lshlrev_b32 v%d, 16, v%d" % (WF + 4 * c + 2 * p, src))
            a("v_and_b32 v%d, 0xffff0000, v%d" % (WF + 4 * c + 2 * p + 1, src))
    KL, KH = 80, 100
    for i in range(19):
        a("v_lshlrev_b32 v%d, 16, v%d" % (KL + i, KR + i))
        a("v_and_b32 v%d, 0xffff0000, v%d" % (KH + i, KR + i))
    RES = 120
    for c in range(2):
        KX = KL if c == 0 else KH
        for i0 in range(0, 16, 4):
            for i in range(i0, i0 + 4): a("v_mul_f32 v%d, v%d, v%d" % (RES + 16 * c + i, KX + i, WF + 4 * c + 3))
            for t in (2, 1, 0):
                for i in range(i0, i0 + 4): a("v_fmac_f32 v%d, v%d, v%d" % (RES + 16 * c + i, KX + i + 3 - t, WF + 4 * c + t))
            for i in range(i0, i0 + 4):
                if c == 0: a("v_lshlrev_b32 v%d, 16, v%d" % (20 + i - i0, VR + i))
                else: a("v_and_b32 v%d, 0xffff0000, v%d" % (20 + i - i0, VR + i))
            for i in range(i0, i0 + 4): a("v_mul_f32 v%d, v%d, v%d" % (RES + 16 * c + i, RES + 16 * c + i, 20 + i - i0))
    for c in range(2):
        PK = 152 + 8 * c
        for e in range(8):
            a("v_cvt_pk_bf16_f32 v%d, v%d, v%d" % (PK + e, RES + 16 * c + 15 - 2 * e, RES + 16 * c + 14 - 2 * e))
    a("v_lshlrev_b32 v20, 1, v10")
    a("v_lshlrev_b32 v21, 1, v9"); a("v_sub_u32 v21, 14, v21")
    for c in range(2):
        if c == 1: a("v_add_u32 v20, 1, v20")
        a("v_and_b32 v22, 15, v20")
        for k in range(2):
            a("v_add_u32 v23, %d, v21" % k); a("v_xor_b32 v23, v23, v22"); a("v_lshlrev_b32 v23, 4, v23")
            a("v_lshl_add_u32 v23, v20, 8, v23"); a("v_add_u32 v23, 131072, v23")
            a("ds_write_b128 v23, %s" % v(152 + 8 * c + 4 * k, 4))
    a("s_waitcnt lgkmcnt(0)")
    soft_barrier(a, SB5, 4, 22, 23)
    a("s_lshl_b32 s46, s43, 4"); a("v_add_u32 v20, s46, v4")
    a("v_lshlrev_b32 v21, 8, v20"); a("v_lshl_add_u32 v21, v3, 4, v21"); a("v_add_u32 v21, 131072, v21")
    for i in range(4): a("ds_read_b128 %s, v21 offset:%d" % (v(120 + 4 * i, 4), 1024 * i))
    a("s_lshl_b32 s46, s45, 6"); a("s_lshl_b32 s47, s44, 8"); a("s_sub_u32 s47, 3840, s47"); a("s_add_u32 s47, s47, 0x%x" % OFF_URT)
    for i in range(4):
        a("v_add_u32 v22, %d, v20" % (4 * i)); a("v_and_b32 v23, 15, v22"); a("v_xor_b32 v23, v23, v3")
        a("v_add_u32 v22, s46, v22"); a("v_lshlrev_b32 v22, 12, v22"); a("v_lshl_add_u32 v%d, v23, 4, v22" % (24 + i))
    for i in range(4):
        a("s_waitcnt lgkmcnt(%d)" % (3 - i))
        a("buffer_store_dwordx4 %s, v%d, s[36:39], s47 offen sc1" % (v(120 + 4 * i, 4), 24 + i))
    a("s_branch L1_sidejoin")
    a.label("L1_misc")
    a("s_load_dwordx2 s[16:17], s[0:1], 16")
    a("s_load_dwordx2 s[18:19], s[0:1], 72")
    a("s_waitcnt lgkmcnt(0)")
    srd(a, 24, 4, 2048 * 1152); srd(a, 28, 18, 1152); srd(a, 32, 16, 576 * 1152)
    a("s_sub_u32 s44, s2, 144"); a("s_lshl_b32 s44, s44, 2"); a("s_add_u32 s44, s44, s43")
    a("v_lshrrev_b32 v5, 3, v2"); a("v_and_b32 v6, 7, v2")
    a("s_lshl_b32 s45, s44, 3")
    a("v_add_u32 v9, s45, v5")
    a("v_mul_u32_u24 v7, 1152, v9"); a("v_lshlrev_b32 v8, 4, v6"); a("v_add_u32 v7, v7, v8")
    a("v_mul_u32_u24 v110, 8*1152, v4"); a("v_lshl_add_u32 v110, v3, 1, v110"); a("v_add_u32 v111, 4608, v110"); a("v_lshlrev_b32 v112, 4, v2")
    a("s_mov_b32 s60, s44")
    for b in range(NPRE): a("s_barrier")
    for c in range(9):
        a("buffer_load_dwordx4 %s, v7, s[24:27], 0 offen offset:%d" % (v(12 + 4 * c, 4), 128 * c))
        a("buffer_load_dwordx4 %s, v8, s[28:31], 0 offen offset:%d" % (v(48 + 4 * c, 4), 128 * c))
    for r in range(2):
        a("s_add_u32 s45, s44, %d" % (448 * r))
        a("s_mul_hi_u32 s46, s45, 0x%x" % ((1 << 32) // 18 + 1))
        a("s_mul_i32 s47, s46, 18"); a("s_sub_u32 s47, s45, s47")
        a("s_mul_i32 s47, s47, 32*1152"); a("s_lshl_b32 s46, s46, 5"); a("s_add_u32 s47, s47, s46")
        a("s_cmp_lt_u32 s45, 648"); a("s_cselect_b32 s47, s47, 0")
        for j in range(8):
            a("buffer_load_ushort v%d, v%d, s[32:35], s47 offen offset:%d" % (92 + 8 * r + j, 110 if j < 4 else 111, 1152 * (j % 4)))
    a("v_mov_b32 v10, 0")
    a("buffer_load_dword v11, v10, s[20:23], 0 offen sc1")
    hloads(a)
    for b in range(NPRE, 9): a("s_barrier")
    a("s_waitcnt vmcnt(0)")
    hstores(a)
    a("v_mov_b32 v84, 0")
    for r in range(36): a("v_dot2_f32_bf16 v84, v%d, v%d, v84" % (12 + r, 48 + r))
    a("v_mov_b32 v19, v11"); a("v_mov_b32 v28, 0")
    a("s_nop 3")
    for d in (1, 2, 4):
        a("s_nop 1")
        if d == 1: a("v_mov_b32_dpp v85, v84 quad_perm:[1,0,3,2] row_mask:0xf bank_mask:0xf")
        elif d == 2: a("v_mov_b32_dpp v85, v84 quad_perm:[2,3,0,1] row_mask:0xf bank_mask:0xf")
        else: a("v_mov_b32_dpp v85, v84 row_half_mirror row_mask:0xf bank_mask:0xf")
        a("s_nop 1")
        a("v_add_f32 v84, v84, v85")
    a("v_mul_f32 v84, 0xbfb8aa3b, v84"); a("v_exp_f32 v84, v84"); a("s_nop 0")
    a("v_add_f32 v84, 1.0, v84"); a("v_rcp_f32 v84, v84")
    a("v_lshlrev_b32 v85, 2, v9"); a("v_mov_b32 v86, 0x%x" % OOB)
    a("v_cmp_eq_u32 vcc, 0, v6"); a("s_mov_b32 s46, 0x%x" % OFF_G); a("s_nop 0")
    a("v_cndmask_b32 v85, v86, v85, vcc")
    a("v_cmp_gt_u32 vcc, 2048, v9"); a("s_nop 1"); a("v_cndmask_b32 v85, v86, v85, vcc")
    a("buffer_store_dword v84, v85, s[36:39], s46 offen sc1")
    for r in range(2):
        for j in range(4): a("v_lshl_or_b32 v%d, v%d, 16, v%d" % (88 + j, 93 + 8 * r + 2 * j, 92 + 8 * r + 2 * j))
        a("s_add_u32 s45, s60, %d" % (448 * r))
        a("s_lshl_b32 s46, s45, 10"); a("s_add_u32 s46, s46, 0x%x" % OFF_WOF)
        a("s_cmp_lt_u32 s45, 648"); a("s_cbranch_scc0 L1_nw%d" % r)
        a("buffer_store_dwordx4 v[88:91], v112, s[36:39], s46 offen sc1")
        a("s_nop 1")
        a.label("L1_nw%d" % r)
    a.label("L1_sidejoin")
    a("s_cmp_lg_u32 s42, 11")
    a("s_cbranch_scc1 L1_initok")
    a("v_readfirstlane_b32 s59, v19")
    a("s_cmp_eq_u32 s59, 1")
    a("s_cbranch_scc1 L1_initok")
    a("s_mov_b32 s57, %d" % SPIN_MAX)
    a.label("L1_initpoll")
    a("buffer_load_dword v7, v28, s[20:23], 0 offen sc1")
    a("s_waitcnt vmcnt(0)")
    a("v_readfirstlane_b32 s56, v7")
    a("s_cmp_eq_u32 s56, 1")
    a("s_cbranch_scc1 L1_initok")
    a("s_sleep 2"); a("s_sub_u32 s57, s57, 1"); a("s_cmp_lg_u32 s57, 0"); a("s_cbranch_scc1 L1_initpoll")
    a.label("L1_initok")
    a("s_waitcnt vmcnt(0)")
    lds_arrive(a, SB4, 1, 4)
    a("s_cmp_lg_u32 s42, 8")
    a("s_cbranch_scc1 L2_entry")
    lds_spin(a, SB4, 4, 1, 4, sleep=False)
    a("s_mul_hi_u32 s44, s2, 0x%x" % ((1 << 32) // 9 + 1)); a("s_mul_i32 s45, s44, 9"); a("s_sub_u32 s45, s2, s45"); a("s_add_u32 s45, s45, %d" % C2)
    a("s_cmp_lt_u32 s2, 144"); a("s_cselect_b32 s45, s45, %d" % C4)
    atomic_inc(a, 45, 1, 4)
    a("s_branch L2_entry")
    a.label("L1_out")
    soft_barrier(a, SB2, 8, 1, 5)
    stamp(a, 3)
    a("s_cmp_ge_u32 s42, 6")
    a("s_cbranch_scc1 L1_fin")
    a("s_mul_i32 s53, s40, 6"); a("s_add_u32 s53, s53, s42")
    a("s_lshr_b32 s54, s53, 5"); a("s_and_b32 s56, s53, 31")
    a("s_mul_i32 s57, s42, 48")
    a("s_lshr_b32 s50, s41, 1"); a("s_mul_i32 s50, s50, 18432")
    a("s_mul_i32 s51, s56, %d" % KV_HEAD); a("s_add_u32 s50, s50, s51")
    a("s_and_b32 s52, s41, 1")
    a("s_movk_i32 s61, 304")
    a("s_cmp_eq_u32 s54, 2")
    a("s_cbranch_scc1 L1_vout")
    a("s_cmp_eq_u32 s54, 0")
    a("s_cbranch_scc0 L1_kdest")
    a("s_mul_i32 s58, s56, %d" % Q_HEAD); a("s_add_u32 s58, s58, 0x%x" % OFF_Q)
    a("s_lshl_b32 s60, s41, 9"); a("s_add_u32 s59, s58, s60"); a("s_add_u32 s59, s59, 65536")
    a("s_lshl_b32 s60, s41, 12"); a("s_add_u32 s58, s58, s60")
    a("s_branch L1_destdone")
    a.label("L1_kdest")
    a("s_lshl_b32 s60, s52, 9"); a("s_add_u32 s59, s50, s60"); a("s_add_u32 s59, s59, 8192")
    a("s_lshl_b32 s60, s52, 12"); a("s_add_u32 s58, s50, s60")
    a.label("L1_destdone")
    a("v_and_b32 v5, 31, v2"); a("v_lshrrev_b32 v6, 5, v2")
    a("v_mul_lo_u32 v7, v5, s61"); a("v_lshl_add_u32 v7, v6, 4, v7"); a("v_add_u32 v7, s57, v7")
    for i in range(4): a("ds_read_b128 %s, v7 offset:%d" % (v(24 + 4 * i, 4), i * 32 * 304))
    a("v_lshlrev_b32 v8, 2, v5"); a("v_mul_lo_u32 v8, v8, s61"); a("v_add_u32 v8, s57, v8")
    for j in range(4): a("ds_read_b32 v%d, v8 offset:%d" % (40 + j, 32 + 304 * j))
    a("v_lshlrev_b32 v11, 4, v2")
    a("v_mov_b32 v12, 0x%x" % OOB); a("v_cmp_gt_u32 vcc, 32, v2"); a("s_nop 1"); a("v_cndmask_b32 v12, v12, v11, vcc")
    for i in range(4):
        a("s_waitcnt lgkmcnt(%d)" % (7 - i))
        a("buffer_store_dwordx4 %s, v11, s[36:39], s58 offen offset:%d sc1" % (v(24 + 4 * i, 4), 1024 * i))
    a("s_waitcnt lgkmcnt(0)")
    a("buffer_store_dwordx4 v[40:43], v12, s[36:39], s59 offen sc1")
    a("s_branch L1_fin")
    a.label("L1_vout")
    a("v_lshrrev_b32 v9, 2, v2"); a("v_and_b32 v9, 3, v9")
    a("v_and_b32 v10, 1, v4")
    a("v_lshl_add_u32 v9, v10, 2, v9")
    a("v_mul_lo_u32 v9, v9, s61")
    a("v_and_b32 v13, 3, v2"); a("v_lshl_add_u32 v9, v13, 3, v9")
    a("v_lshrrev_b32 v13, 1, v4"); a("v_lshl_add_u32 v9, v13, 5, v9")
    a("v_add_u32 v9, s57, v9")
    a("s_mul_i32 s60, s52, 8*576"); a("s_add_u32 s63, s50, s60"); a("s_add_u32 s63, s63, 9216")
    a("v_lshl_add_u32 v14, v13, 4, v3")
    a("v_mul_u32_u24 v13, 288, v10"); a("v_lshl_add_u32 v13, v14, 4, v13")
    a("v_mov_b32 v15, 0x%x" % OOB); a("v_cmp_le_u32 vcc, 18, v14"); a("s_nop 1"); a("v_cndmask_b32 v13, v13, v15, vcc")
    for half in range(2):
        for b in range(4):
            beta = 4 * half + b
            a("ds_read_b64_tr_b16 %s, v9 offset:%d" % (v(24 + 16 * half + 4 * b, 2), beta * 16 * 304))
            a("ds_read_b64_tr_b16 %s, v9 offset:%d" % (v(26 + 16 * half + 4 * b, 2), beta * 16 * 304 + 8 * 304))
        for b in range(4):
            beta = 4 * half + b
            a("s_waitcnt lgkmcnt(%d)" % (6 - 2 * b))
            a("buffer_store_dwordx4 %s, v13, s[36:39], s63 offen offset:%d sc1" % (v(24 + 16 * half + 4 * b, 4), beta * 576))
    a.label("L1_fin")
    a("s_waitcnt vmcnt(0) lgkmcnt(0)")
    stamp(a, 4)
    soft_barrier(a, SB3, 8, 1, 5)
    a("s_cmp_lg_u32 s42, 0")
    a("s_cbranch_scc1 L2_entry")
    a("s_lshl_b32 s44, s40, 3"); a("s_lshr_b32 s45, s41, 1"); a("s_add_u32 s44, s44, s45")
    atomic_inc(a, 44)
    a.label("L2_entry")

def attn_regs():
    R = {}
    R["QA1"], R["QA2"], R["QB1"], R["QB2"] = 8, 12, 14, 18
    R["SA"], R["SB"] = 20, 36
    R["PA"], R["PB"] = 52, 60
    R["OA"], R["OB"] = 68, 84
    R["K1"] = [100, 104]; R["K2"] = [108, 110]; R["V"] = [112, 120]
    R["NA"], R["NB"] = 128, 144
    return R

def phase2(a):
    R = attn_regs()
    a("s_and_b32 s40, s2, 31"); a("s_lshr_b32 s41, s2, 5")
    a("v_lshlrev_b32 v3, 4, v2")
    a("s_mul_i32 s43, s40, %d" % KV_HEAD)
    a("s_cmp_ge_u32 s42, 8"); a("s_cselect_b32 s44, 1, 0"); a("s_cmp_eq_u32 s42, 11"); a("s_cselect_b32 s44, 0, s44")
    a("s_cmp_eq_u32 s44, 1")
    a("s_cbranch_scc1 L2_conv")
    a("s_cmp_eq_u32 s42, 11")
    a("s_cbranch_scc1 L2_aux")
    a("s_cmp_lg_u32 s42, 0")
    a("s_cbranch_scc1 L2_waitgo")
    a("v_min_u32 v5, 4, v2")
    a("v_add_u32 v6, 1, v5"); a("v_lshrrev_b32 v6, 1, v6")
    a("v_and_b32 v7, 1, v5"); a("v_sub_u32 v7, 2, v7"); a("v_cmp_eq_u32 vcc, 0, v5"); a("v_mov_b32 v8, 0"); a("s_nop 0")
    a("v_cndmask_b32 v7, v7, v8, vcc")
    a("v_lshlrev_b32 v7, 5, v7"); a("v_add_u32 v7, s40, v7"); a("v_mul_u32_u24 v7, 0x2aab, v7"); a("v_lshrrev_b32 v7, 16, v7")
    a("v_subrev_u32 v6, 1, v6"); a("v_mov_b32 v8, s41"); a("v_cndmask_b32 v6, v6, v8, vcc")
    a("v_lshl_add_u32 v5, v7, 3, v6")
    a("v_lshlrev_b32 v5, 7, v5"); a("v_add_u32 v5, 0x%x, v5" % (OFF_CNT + 128 * C1))
    a("v_mov_b32 v6, 2")
    poll_global(a, 5, 6, vt=7)
    lds_set(a, GO1, 1, 7)
    a("s_branch L2_go")
    a.label("L2_waitgo")
    lds_spin(a, GO1, 1, 1, 7)
    a.label("L2_go")
    stamp(a, 5)
    a("s_cmp_ge_u32 s42, 8")
    a("s_cbranch_scc1 L2_aux")
    a("s_and_b32 s45, s42, 3"); a("s_lshr_b32 s46, s42, 2")
    a("s_lshl_b32 s44, s42, 10"); a("s_add_u32 s43, s43, s44")
    a("v_mov_b32 v9, 0x%x" % OOB)
    a("s_cmp_lt_u32 s42, 4"); a("s_cselect_b64 vcc, -1, 0"); a("v_cndmask_b32 v9, v9, v3, vcc")
    for q in range(5):
        a("buffer_load_dwordx4 %s, v%d, s[36:39], s43 offen sc1" % (v(20 + 4 * q, 4), 3 if q < 4 else 9))
        if q < 4: a("s_add_u32 s43, s43, 8192")
    a("s_lshl_b32 s47, s41, 3"); a("s_lshl_b32 s48, s45, 1"); a("s_add_u32 s47, s47, s48")
    a("s_mul_i32 s48, s40, %d" % Q_HEAD); a("s_add_u32 s48, s48, 0x%x" % OFF_Q)
    a("s_lshl_b32 s49, s47, 10"); a("s_add_u32 s49, s49, s48")
    a("s_lshl_b32 s50, s47, 7"); a("s_add_u32 s50, s50, s48"); a("s_add_u32 s50, s50, 65536")
    a("v_and_b32 v4, 31, v2"); a("v_lshrrev_b32 v5, 5, v2"); a("v_lshlrev_b32 v6, 2, v4")
    a("v_mov_b32 v7, 0x%x" % OOB)
    a("v_cmp_eq_u32 vcc, 0, v5")
    a("buffer_load_dwordx4 %s, v3, s[36:39], s49 offen sc1" % v(R["QA1"], 4))
    a("buffer_load_dwordx4 %s, v3, s[36:39], s49 offen offset:1024 sc1" % v(R["QB1"], 4))
    a("v_cndmask_b32 v7, v7, v6, vcc")
    a("buffer_load_dword v%d, v7, s[36:39], s50 offen sc1" % R["QA2"])
    a("buffer_load_dword v%d, v7, s[36:39], s50 offen offset:128 sc1" % R["QB2"])
    a("v_mov_b32 v%d, 0" % (R["QA2"] + 1)); a("v_mov_b32 v%d, 0" % (R["QB2"] + 1))
    a("v_mov_b32 v%d, 0" % (R["K2"][0] + 1)); a("v_mov_b32 v%d, 0" % (R["K2"][1] + 1))
    a("v_mov_b32 v1, 0x3f803f80"); a("v_cmp_eq_u32 vcc, 18, v4"); a("v_mov_b32 v7, 0"); a("s_nop 0")
    a("v_cndmask_b32 v1, v7, v1, vcc")
    for b in range(2):
        for r in range(8): a("v_mov_b32 v%d, v1" % (R["V"][b] + r))
    for r in range(16):
        a("v_mov_b32 v%d, 0" % (R["NA"] + r)); a("v_mov_b32 v%d, 0" % (R["NB"] + r))
    LK1, LK2, LV = 160, 161, 162
    AK1, AK2, AV = 163, 164, 165
    CA, CO, NX = 166, 167, 7
    a("v_lshlrev_b32 v%d, 4, v2" % LK1)
    a("v_add_u32 v%d, 8192, v6" % LK2)
    a("v_mul_u32_u24 v%d, 288, v5" % LV); a("v_lshl_add_u32 v%d, v4, 4, v%d" % (LV, LV)); a("v_add_u32 v%d, 9216, v%d" % (LV, LV))
    a("s_mov_b32 s52, 0x%x" % VMASK); a("s_mov_b32 s53, 0x%x" % VMASK)
    a("s_mov_b32 s60, 0"); a("s_mov_b32 s61, 2")
    a("s_lshl_b32 s62, s45, 2"); a("s_add_u32 s62, s62, %d" % CNT)
    a("v_mov_b32 v%d, s62" % CA); a("v_mov_b32 v%d, 1" % CO)
    a("v_add_u32 v3, s44, v3")
    for q in range(5):
        a("s_waitcnt vmcnt(%d)" % (4 + 4 - q))
        if q == 4:
            a("s_cmp_ge_u32 s42, 4"); a("s_cbranch_scc1 L2_no5")
        a("ds_write_b128 v3, %s offset:%d" % (v(20 + 4 * q, 4), 8192 * q))
    a.label("L2_no5")
    a("s_waitcnt vmcnt(0) lgkmcnt(0)")
    lds_arrive(a, FA, 1, 3)
    lds_spin(a, FA, 8, 1, 3, sleep=False)
    stamp(a, 6)
    rstamp(a, 14)

    def mS1(S, kb, Q1, N): return "v_mfma_f32_32x32x16_bf16 %s, %s, %s, %s" % (v(S, 16), v(R["K1"][kb], 4), v(Q1, 4), v(N, 16))
    def mS2(S, kb, Q2): return "v_mfma_f32_32x32x8_bf16 %s, %s, %s, %s" % (v(S, 16), v(R["K2"][kb], 2), v(Q2, 2), v(S, 16))
    def mP(O, vb, h, P): return "v_mfma_f32_32x32x16_bf16 %s, %s, %s, %s" % (v(O, 16), v(R["V"][vb] + 4 * h, 4), v(P + 4 * h, 4), v(O, 16))
    def phase(S, P, Sn, Q1, Q2, Nn, kb, On, Pn, vb, loads):
        ex = ["v_exp_f32 v%d, v%d" % (S + i, S + i) for i in range(16)]
        cv = ["v_cvt_pk_bf16_f32 v%d, v%d, v%d" % (P + i, S + 2 * i, S + 2 * i + 1) for i in range(8)]
        l0, l1 = loads
        return ([mS1(Sn, kb, Q1, Nn)] + l0 + ex[0:4] + [mP(On, vb, 0, Pn)] + ex[4:6] + cv[0:1] + ex[6:8] + cv[1:2] + l1 + ex[8:9] +
                [mS2(Sn, kb, Q2)] + ex[9:10] + cv[2:3] + ex[10:12] + cv[3:4] + [mP(On, vb, 1, Pn)] + ex[12:14] + cv[4:5] + ex[14:16] + cv[5:8])
    a.label("L2_main")
    for r in range(16):
        a("v_mov_b32 v%d, 0" % (R["OA"] + r)); a("v_mov_b32 v%d, 0" % (R["OB"] + r))
    for r in range(8): a("v_mov_b32 v%d, 0" % (R["PB"] + r))
    a("s_mov_b32 s54, s46")
    a("s_mul_i32 s55, s54, 18432")
    a("v_add_u32 v%d, s55, v%d" % (AK1, LK1)); a("v_add_u32 v%d, s55, v%d" % (AK2, LK2)); a("v_add_u32 v%d, s55, v%d" % (AV, LV))
    a("ds_read_b128 %s, v%d" % (v(R["K1"][0], 4), AK1))
    a("ds_read_b32 v%d, v%d" % (R["K2"][0], AK2))
    a("s_waitcnt lgkmcnt(0)")
    a(mS1(R["SA"], 0, R["QA1"], R["NA"]))
    a(mS2(R["SA"], 0, R["QA2"]))
    a("s_nop 7"); a("s_nop 3")
    a.label("L2_stage")
    body = []
    for i in range(8):
        kb = i & 1; kn = kb ^ 1; vb = i & 1; vp = vb ^ 1
        off = (i + 1) if i < 7 else 0
        lk = ["ds_read_b128 %s, v%d offset:%d" % (v(R["K1"][kn], 4), AK1, off * 1024),
              "ds_read_b32 v%d, v%d offset:%d" % (R["K2"][kn], AK2, off * 128)]
        lv = ["s_mov_b64 exec, s[52:53]",
              "ds_read_b128 %s, v%d offset:%d" % (v(R["V"][vb], 4), AV, (2 * i) * 576),
              "ds_read_b128 %s, v%d offset:%d" % (v(R["V"][vb] + 4, 4), AV, (2 * i + 1) * 576),
              "s_mov_b64 exec, -1"]
        if i == 6:
            lv = lv[:-1] + ["s_mov_b64 exec, 1", "ds_add_rtn_u32 v%d, v%d, v%d" % (NX, CA, CO), "s_mov_b64 exec, -1"]
        body += phase(R["SA"], R["PA"], R["SB"], R["QB1"], R["QB2"], R["NB"], kb, R["OB"], R["PB"], vp, (lv, lk))
        body.append("s_waitcnt lgkmcnt(0)")
        if i == 6: body.append("NEXT")
        body += phase(R["SB"], R["PB"], R["SA"], R["QA1"], R["QA2"], R["NA"], kn, R["OA"], R["PA"], vb, ([], []))
    for x in body:
        if x == "NEXT":
            a("v_readfirstlane_b32 s55, v%d" % NX)
            a("s_cmp_lt_u32 s55, 8")
            a("s_cselect_b32 s57, s55, s54")
            a("s_mul_i32 s57, s57, 18432")
            a("s_cmp_ge_u32 s55, 8"); a("s_cbranch_scc1 L2_landed")
            a("s_cmp_lt_u32 s55, s61"); a("s_cbranch_scc1 L2_landed")
            a("v_mov_b32 v1, %d" % FB)
            a.label("L2_spinL")
            a("ds_read_b32 v3, v1"); a("s_waitcnt lgkmcnt(0)")
            a("v_readfirstlane_b32 s61, v3")
            a("s_cmp_lt_u32 s55, s61"); a("s_cbranch_scc0 L2_spinL")
            a.label("L2_landed")
            a("v_add_u32 v%d, s57, v%d" % (AK1, LK1)); a("v_add_u32 v%d, s57, v%d" % (AK2, LK2))
        else:
            a(x)
    a("v_add_u32 v%d, s57, v%d" % (AV, LV))
    a("s_mov_b32 s54, s55")
    a("s_cmp_lt_u32 s54, 8")
    a("s_cbranch_scc1 L2_stage")
    a(mP(R["OB"], 1, 0, R["PB"])); a(mP(R["OB"], 1, 1, R["PB"]))
    stamp(a, 7)
    rstamp(a, 15)
    a("s_nop 7"); a("s_nop 3")
    a("s_cmp_lg_u32 s60, 0")
    a("s_cbranch_scc1 L2_combine")
    a("v_mov_b32 v1, 0x21800000"); a("v_mov_b32 v3, 0x5d800000")
    a("v_cmp_le_f32 s[56:57], v1, v%d" % (R["OA"] + 10)); a("v_cmp_ge_f32 s[58:59], v3, v%d" % (R["OA"] + 10))
    a("s_and_b64 s[56:57], s[56:57], s[58:59]")
    a("v_cmp_le_f32 s[58:59], v1, v%d" % (R["OB"] + 10)); a("s_and_b64 s[56:57], s[56:57], s[58:59]")
    a("v_cmp_ge_f32 s[58:59], v3, v%d" % (R["OB"] + 10)); a("s_and_b64 s[56:57], s[56:57], s[58:59]")
    a("s_cmp_eq_u32 s56, -1")
    a("s_cbranch_scc1 L2_ok")
    lds_set(a, FBAD, 1, 3)
    a.label("L2_ok")
    a("s_barrier")
    a("v_mov_b32 v1, %d" % FBAD); a("ds_read_b32 v3, v1"); a("s_waitcnt lgkmcnt(0)")
    a("v_readfirstlane_b32 s56, v3")
    a("s_cmp_eq_u32 s56, 0")
    a("s_cbranch_scc1 L2_exch")
    a("s_mov_b32 s60, 1")
    MA, MB = 166, 167
    a("v_mov_b32 v%d, 0xff800000" % MA); a("v_mov_b32 v%d, 0xff800000" % MB)
    a("s_lshl_b32 s54, s46, 2"); a("s_add_u32 s58, s54, 4")
    a.label("L2_maxstage")
    a("s_mul_i32 s55, s54, 18432")
    a("v_add_u32 v1, s55, v%d" % LK1); a("v_add_u32 v3, s55, v%d" % LK2)
    a("s_mov_b32 s55, 0")
    a.label("L2_maxtile")
    a("ds_read_b128 %s, v1" % v(R["K1"][0], 4)); a("ds_read_b32 v%d, v3" % R["K2"][0])
    a("s_waitcnt lgkmcnt(0)")
    a("v_mfma_f32_32x32x16_bf16 %s, %s, %s, 0" % (v(R["SA"], 16), v(R["K1"][0], 4), v(R["QA1"], 4)))
    a("v_mfma_f32_32x32x16_bf16 %s, %s, %s, 0" % (v(R["SB"], 16), v(R["K1"][0], 4), v(R["QB1"], 4)))
    a(mS2(R["SA"], 0, R["QA2"])); a(mS2(R["SB"], 0, R["QB2"]))
    a("s_nop 7"); a("s_nop 7")
    for r in range(16):
        a("v_max_f32 v%d, v%d, v%d" % (MA, MA, R["SA"] + r)); a("v_max_f32 v%d, v%d, v%d" % (MB, MB, R["SB"] + r))
    a("v_add_u32 v1, 1024, v1"); a("v_add_u32 v3, 128, v3")
    a("s_add_u32 s55, s55, 1"); a("s_cmp_lt_u32 s55, 8"); a("s_cbranch_scc1 L2_maxtile")
    a("s_add_u32 s54, s54, 1"); a("s_cmp_lt_u32 s54, s58"); a("s_cbranch_scc1 L2_maxstage")
    a("v_xor_b32 v1, 32, v2"); a("v_lshlrev_b32 v1, 2, v1")
    a("ds_bpermute_b32 v3, v1, v%d" % MA); a("s_waitcnt lgkmcnt(0)"); a("v_max_f32 v%d, v%d, v3" % (MA, MA))
    a("ds_bpermute_b32 v3, v1, v%d" % MB); a("s_waitcnt lgkmcnt(0)"); a("v_max_f32 v%d, v%d, v3" % (MB, MB))
    a("s_lshl_b32 s55, s2, 3"); a("s_add_u32 s55, s55, s42"); a("s_lshl_b32 s55, s55, 9"); a("s_add_u32 s55, s55, 0x%x" % OFF_MX)
    a("v_lshlrev_b32 v1, 3, v2")
    a("buffer_store_dwordx2 v[%d:%d], v1, s[36:39], s55 offen sc0 sc1" % (MA, MB))
    a("v_mov_b32 v3, s62"); a("v_mov_b32 v6, 2"); a("ds_write_b32 v3, v6")
    a("s_waitcnt vmcnt(0) lgkmcnt(0)")
    a("s_barrier")
    a("s_xor_b32 s56, s42, 4"); a("s_lshl_b32 s57, s2, 3"); a("s_add_u32 s56, s56, s57"); a("s_lshl_b32 s56, s56, 9")
    a("s_add_u32 s56, s56, 0x%x" % OFF_MX)
    a("buffer_load_dwordx2 v[6:7], v1, s[36:39], s56 offen sc0 sc1")
    a("s_waitcnt vmcnt(0)")
    a("v_max_f32 v%d, v%d, v6" % (MA, MA)); a("v_max_f32 v%d, v%d, v7" % (MB, MB))
    for r in range(16):
        a("v_sub_f32 v%d, 0, v%d" % (R["NA"] + r, MA)); a("v_sub_f32 v%d, 0, v%d" % (R["NB"] + r, MB))
    a("v_mov_b32 v%d, s62" % CA); a("v_mov_b32 v%d, 1" % CO)
    a("s_branch L2_main")
    a.label("L2_combine")
    a("s_barrier")
    a.label("L2_exch")
    a("s_mul_i32 s55, s45, 6144")
    a("v_lshlrev_b32 v1, 4, v2"); a("v_add_u32 v1, s55, v1")
    a("s_cmp_eq_u32 s46, 0")
    a("s_cbranch_scc1 L2_recv")
    for t, O in enumerate((R["OA"], R["OB"])):
        for c in range(3): a("ds_write_b128 v1, %s offset:%d" % (v(O + 4 * c, 4), (3 * t + c) * 1024))
    a("s_waitcnt lgkmcnt(0)")
    a("s_barrier")
    a("s_barrier")
    a("s_branch L2_ostore")
    a.label("L2_recv")
    a("s_barrier")
    for t in range(2):
        for c in range(3): a("ds_read_b128 %s, v1 offset:%d" % (v(R["SA"] + 12 * t + 4 * c, 4), (3 * t + c) * 1024))
    a("s_waitcnt lgkmcnt(0)")
    for t, O in enumerate((R["OA"], R["OB"])):
        for r in range(12): a("v_add_f32 v%d, v%d, v%d" % (O + r, O + r, R["SA"] + 12 * t + r))
    for t, O in enumerate((R["OA"], R["OB"])):
        a("v_mov_b32 v%d, v%d" % (52 + 2 * t, O + 10)); a("v_mov_b32 v%d, v%d" % (53 + 2 * t, O + 10))
    a("s_nop 1")
    a("v_permlane32_swap_b32 v52, v53"); a("v_permlane32_swap_b32 v54, v55")
    a("s_nop 1")
    a("v_rcp_f32 v52, v52"); a("v_rcp_f32 v54, v54")
    a("s_lshl_b32 s55, s45, 6")
    a("v_add_u32 v3, s55, v4"); a("v_mul_u32_u24 v3, 36, v3"); a("v_lshl_add_u32 v3, v5, 3, v3"); a("v_add_u32 v3, 32768, v3")
    a("v_cmp_eq_u32 vcc, 0, v5")
    for t, O in enumerate((R["OA"], R["OB"])):
        rc = 52 + 2 * t
        for r in range(10): a("v_mul_f32 v%d, v%d, v%d" % (O + r, O + r, rc))
        for c in range(5): a("v_cvt_pk_bf16_f32 v%d, v%d, v%d" % (56 + 5 * t + c, O + 2 * c, O + 2 * c + 1))
    for t in range(2):
        off = t * 32 * 36; b = 56 + 5 * t
        a("ds_write_b32 v3, v%d offset:%d" % (b, off + 0)); a("ds_write_b32 v3, v%d offset:%d" % (b + 1, off + 4))
        a("ds_write_b32 v3, v%d offset:%d" % (b + 2, off + 16)); a("ds_write_b32 v3, v%d offset:%d" % (b + 3, off + 20))
    a("s_and_saveexec_b64 s[56:57], vcc")
    a("ds_write_b32 v3, v60 offset:32"); a("ds_write_b32 v3, v65 offset:%d" % (32 * 36 + 32))
    a("s_mov_b64 exec, s[56:57]")
    a("s_waitcnt lgkmcnt(0)")
    a("s_barrier")
    a.label("L2_ostore")
    a("s_lshl_b32 s55, s42, 10")
    a("v_lshlrev_b32 v1, 4, v2"); a("v_add_u32 v1, s55, v1")
    a("v_add_u32 v3, 32768, v1")
    a("ds_read_b128 v[8:11], v3")
    a("s_mul_i32 s57, s40, %d" % O_HEAD); a("s_mul_i32 s58, s41, 9216"); a("s_add_u32 s57, s57, s58"); a("s_add_u32 s57, s57, 0x%x" % OFF_O)
    a("s_cmp_lg_u32 s42, 0")
    a("s_cbranch_scc1 L2_o1")
    a("ds_read_b128 v[12:15], v3 offset:8192")
    a("s_waitcnt lgkmcnt(0)")
    a("v_add_u32 v6, 8192, v1")
    a("buffer_store_dwordx4 v[12:15], v6, s[36:39], s57 offen sc1")
    a.label("L2_o1")
    a("s_waitcnt lgkmcnt(0)")
    a("buffer_store_dwordx4 v[8:11], v1, s[36:39], s57 offen sc1")
    stamp(a, 8)
    phase3(a)
    a("s_branch L_fin")

    a.label("L2_aux")
    lds_spin(a, SB4, 4, 1, 4, sleep=False)
    lds_spin(a, SB3, 8, 1, 4)
    a("v_and_b32 v5, 1, v2"); a("v_add_u32 v5, 1, v5"); a("v_lshlrev_b32 v5, 5, v5"); a("v_add_u32 v5, s40, v5")
    a("v_mul_u32_u24 v5, 0x2aab, v5"); a("v_lshrrev_b32 v5, 16, v5"); a("v_lshlrev_b32 v5, 10, v5")
    a("v_add_u32 v5, 0x%x, v5" % (OFF_CNT + 128 * C1 + 2 * 128)); a("v_mov_b32 v6, 2")
    a("s_add_u32 s43, s43, 2*18432"); a("v_add_u32 v4, 2*18432, v3")
    a("s_mov_b32 s44, 2")
    a.label("L2_ldstage")
    poll_global(a, 5, 6, vt=7)
    for q in range(18):
        a("buffer_load_dwordx4 %s, v3, s[36:39], s43 offen offset:%d sc1" % (v(8 + 4 * q, 4), (q % 4) * 1024))
        if q % 4 == 3 or q == 17: a("s_add_u32 s43, s43, %d" % (4096 if q % 4 == 3 else 2048))
    for q in range(18):
        a("s_waitcnt vmcnt(%d)" % (17 - q))
        a("ds_write_b128 v4, %s offset:%d" % (v(8 + 4 * q, 4), 1024 * q))
    a("v_add_u32 v4, 18432, v4"); a("v_add_u32 v5, 128, v5")
    a("s_add_u32 s44, s44, 1")
    a("s_waitcnt lgkmcnt(0)")
    a("v_mov_b32 v1, %d" % FB); a("v_mov_b32 v7, s44"); a("ds_write_b32 v1, v7")
    a("s_cmp_lt_u32 s44, 8"); a("s_cbranch_scc1 L2_ldstage")
    a("s_waitcnt lgkmcnt(0)")
    stamp(a, 6)
    a("s_branch L_fin")
    a.label("L2_conv")
    conv(a)

def conv(a):
    a("s_sub_u32 s43, s42, 8")
    a("s_lshl_b32 s44, s43, 8"); a("s_add_u32 s44, s44, s2")
    a("s_cmp_ge_u32 s44, 576")
    a("s_cbranch_scc1 L_fin")
    a("s_load_dwordx2 s[10:11], s[0:1], 64")
    a("s_setprio 0")
    a("s_lshr_b32 s45, s44, 6"); a("s_add_u32 s45, s45, %d" % C2); a("s_lshl_b32 s45, s45, 7"); a("s_add_u32 s45, s45, 0x%x" % OFF_CNT)
    a("v_mov_b32 v5, s45"); a("v_mov_b32 v6, 16")
    poll_global(a, 5, 6, vt=7)
    stamp(a, 6)
    a("v_lshlrev_b32 v3, 4, v2")
    a("s_lshl_b32 s46, s44, 12"); a("s_add_u32 s46, s46, 0x%x" % OFF_URT)
    a("s_mul_i32 s47, s43, 4608"); a("s_add_u32 s47, s47, %d" % LDS_UR)
    for q in range(4): a("buffer_load_dwordx4 %s, v3, s[36:39], s46 offen offset:%d sc1" % (v(8 + 4 * q, 4), 1024 * q))
    a("s_mul_i32 s48, s44, %d" % (2 * HP_ROW)); a("s_add_u32 s48, s48, 0x%x" % OFF_HP)
    a("v_and_b32 v4, 15, v2"); a("v_lshrrev_b32 v5, 4, v2")
    a("v_and_b32 v6, 7, v4"); a("v_lshlrev_b32 v6, 1, v6")
    a("v_lshrrev_b32 v7, 3, v4")
    a("v_lshl_add_u32 v6, v7, 1, v6"); a("v_lshl_add_u32 v6, v5, 3, v6"); a("v_lshlrev_b32 v6, 1, v6")
    a("v_mov_b32 v24, %d" % HP_ROW); a("v_cmp_eq_u32 vcc, 0, v7"); a("v_mov_b32 v25, 0"); a("s_nop 0")
    a("v_cndmask_b32 v24, v25, v24, vcc"); a("v_add_u32 v6, v6, v24")
    a("v_lshlrev_b32 v7, 5, v4"); a("v_lshlrev_b32 v24, 4, v5"); a("v_sub_u32 v7, v24, v7")
    a("v_add_u32 v7, s47, v7"); a("v_add_u32 v7, 4064, v7")
    AF, AG, BF, Y = 16, 112, 48, 80
    for mu in range(8): a("buffer_load_dwordx4 %s, v6, s[36:39], s48 offen offset:%d" % (v(AG + 4 * mu, 4), 512 * mu))
    a("v_add_u32 v26, s47, v3")
    for q in range(4):
        a("s_waitcnt vmcnt(%d)" % (8 + 3 - q))
        a("ds_write_b128 v26, %s offset:%d" % (v(8 + 4 * q, 4), 1024 * q))
    for r in range(4): a("v_mov_b32 v%d, 0" % (28 + r))
    a("s_mov_b32 exec_hi, 0")
    a("ds_write_b128 v26, v[28:31] offset:4096")
    a("s_mov_b64 exec, -1")
    for r in range(32): a("v_mov_b32 v%d, 0" % (Y + r))
    a("s_waitcnt lgkmcnt(0)")
    a("s_mov_b32 s51, 0")
    a.label("L2c_rho")
    for half, (cur, nxt) in enumerate(((AG, AF), (AF, AG))):
        a("s_add_u32 s52, s51, %d" % half); a("s_lshl_b32 s52, s52, 6")
        a("v_add_u32 v8, s52, v7"); a("v_subrev_u32 v8, %d, v8" % (512 * 7))
        for sg in range(8): a("ds_read_b128 %s, v8 offset:%d" % (v(BF + 4 * sg, 4), 512 * (7 - sg)))
        a("s_add_u32 s53, s52, 64"); a("s_and_b32 s53, s53, 0x1ff"); a("s_add_u32 s53, s53, s48")
        for mu in range(8): a("buffer_load_dwordx4 %s, v6, s[36:39], s53 offen offset:%d" % (v(nxt + 4 * mu, 4), 512 * mu))
        a("s_waitcnt lgkmcnt(0)")
        for mu in range(8):
            a("s_waitcnt vmcnt(%d)" % (8 + 7 - mu))
            for sg in range(8 - mu):
                t = mu + sg
                a("v_mfma_f32_16x16x32_bf16 %s, %s, %s, %s" % (v(Y + 4 * t, 4), v(cur + 4 * mu, 4), v(BF + 4 * sg, 4), v(Y + 4 * t, 4)))
    a("s_add_u32 s51, s51, 2"); a("s_cmp_lt_u32 s51, 8"); a("s_cbranch_scc1 L2c_rho")
    a("s_waitcnt vmcnt(0)")
    a("s_lshl_b32 s52, s44, 1"); a("s_and_b32 s53, s52, 0xfffffffc")
    a("s_add_u32 s54, s10, s53"); a("s_addc_u32 s55, s11, 0")
    a("s_load_dword s56, s[54:55], 0")
    a("s_waitcnt lgkmcnt(0)")
    a("s_and_b32 s57, s52, 2"); a("s_lshl_b32 s57, s57, 3"); a("s_lshr_b32 s56, s56, s57"); a("s_lshl_b32 s56, s56, 16")
    a("v_and_b32 v8, 1, v5"); a("v_lshrrev_b32 v9, 1, v5")
    a("v_lshlrev_b32 v10, 4, v4"); a("v_lshl_add_u32 v10, v8, 3, v10"); a("v_lshl_add_u32 v10, v9, 2, v10")
    a("v_lshlrev_b32 v11, 1, v10")
    a("v_sub_u32 v12, 0, v11"); a("v_add_u32 v12, s47, v12"); a("v_add_u32 v12, %d, v12" % (2 * 2044 - 512 * 7))
    for t in range(8): a("ds_read_b64 %s, v12 offset:%d" % (v(AF + 2 * t, 2), 512 * (7 - t)))
    a("s_lshl_b32 s52, s44, 12"); a("s_add_u32 s52, s52, 0x%x" % OFF_YT)
    a("s_nop 7")
    for t in range(8):
        y = Y + 4 * t
        a("v_permlane32_swap_b32 v%d, v%d" % (y, y + 2)); a("v_permlane32_swap_b32 v%d, v%d" % (y + 1, y + 3))
    a("s_waitcnt lgkmcnt(0)")
    for t in range(8):
        y = Y + 4 * t; u0, u1 = AF + 2 * t, AF + 2 * t + 1
        a("v_and_b32 v40, 0xffff0000, v%d" % u1); a("v_fma_f32 v%d, v40, s56, v%d" % (y, y))
        a("v_lshlrev_b32 v41, 16, v%d" % u1);     a("v_fma_f32 v%d, v41, s56, v%d" % (y + 2, y + 2))
        a("v_and_b32 v42, 0xffff0000, v%d" % u0); a("v_fma_f32 v%d, v42, s56, v%d" % (y + 1, y + 1))
        a("v_lshlrev_b32 v43, 16, v%d" % u0);     a("v_fma_f32 v%d, v43, s56, v%d" % (y + 3, y + 3))
        a("v_cvt_pk_bf16_f32 v%d, v%d, v%d" % (112 + 2 * t, y, y + 2))
        a("v_cvt_pk_bf16_f32 v%d, v%d, v%d" % (113 + 2 * t, y + 1, y + 3))
        a("buffer_store_dwordx2 %s, v11, s[36:39], s52 offen offset:%d sc1" % (v(112 + 2 * t, 2), 512 * t))
    a("s_waitcnt vmcnt(0)")
    a("s_mul_hi_u32 s45, s44, 0x%x" % ((1 << 32) // 144 + 1)); a("s_add_u32 s45, s45, %d" % C3)
    atomic_inc(a, 45)
    stamp(a, 7)
    a("s_branch L_fin")

def phase3(a):
    OB, YB, UB, W8 = 49152, 90112, 102400, 112640
    WA, ST = 20, 92
    a("s_load_dwordx2 s[4:5], s[0:1], 0"); a("s_load_dwordx2 s[6:7], s[0:1], 80")
    a("s_and_b32 s43, s40, 7"); a("s_lshl_b32 s43, s43, 5"); a("s_lshl_b32 s44, s41, 8"); a("s_add_u32 s43, s43, s44")
    a("s_lshr_b32 s44, s40, 3")
    a("v_and_b32 v3, 15, v2"); a("v_lshrrev_b32 v4, 4, v2"); a("v_lshlrev_b32 v5, 4, v2")
    a("s_waitcnt vmcnt(0)")
    a("s_barrier")
    stamp(a, 13)
    a("s_cmp_lg_u32 s42, 0")
    a("s_cbranch_scc1 L3_noarr")
    a("s_add_u32 s52, s41, %d" % C5)
    atomic_inc(a, 52, 14, 15)
    a.label("L3_noarr")
    a("s_cmp_lg_u32 s42, 4")
    a("s_cbranch_scc1 L3_nopollA")
    a("s_lshr_b32 s55, s40, 3"); a("s_add_u32 s55, s55, %d" % C3)
    a("v_mov_b32 v8, s55"); a("v_mov_b32 v9, 144"); a("v_mov_b32 v10, %d" % C4); a("v_mov_b32 v11, 112")
    a("v_cmp_eq_u32 vcc, 0, v2"); a("s_nop 1")
    a("v_cndmask_b32 v8, v10, v8, vcc"); a("v_cndmask_b32 v9, v11, v9, vcc")
    a("v_lshlrev_b32 v8, 7, v8"); a("v_add_u32 v8, 0x%x, v8" % OFF_CNT)
    poll_global(a, 8, 9, vt=10)
    lds_set(a, GO2A, 1, 10)
    a.label("L3_nopollA")
    lds_spin(a, GO2A, 1, 1, 6)
    srd(a, 16, 4, 2048 * 1152); srd(a, 20, 6, 2048 * 1152)
    a("s_mul_i32 s45, s44, 9"); a("s_mul_i32 s47, s44, 288")
    def prefetch():
        a("s_mul_i32 s45, s44, 9"); a("s_add_u32 s46, s45, s42"); a("s_mul_i32 s46, s46, 18*1024"); a("s_add_u32 s46, s46, 0x%x" % OFF_WOF)
        for ks in range(18):
            a("buffer_load_dwordx4 %s, v5, s[36:39], s46 offen offset:%d sc1" % (v(WA + 4 * ks, 4), (ks % 4) * 1024))
            if ks % 4 == 3: a("s_add_u32 s46, s46, 4096")
        a("v_add_u32 v6, s43, v3")
        a("v_mul_u32_u24 v7, 1152, v6"); a("v_lshl_add_u32 v7, v4, 3, v7")
        a("s_mul_i32 s47, s44, 288"); a("s_lshl_b32 s48, s42, 5"); a("s_add_u32 s48, s48, s47")
        a("buffer_load_dwordx2 v[8:9], v7, s[16:19], s48 offen")
        a("s_add_u32 s49, s48, 16*1152"); a("buffer_load_dwordx2 v[10:11], v7, s[16:19], s49 offen")
        a("s_and_b32 s50, s42, 1"); a("s_mul_i32 s50, s50, 16*1152"); a("s_add_u32 s50, s50, s47"); a("s_add_u32 s50, s50, 256")
        a("buffer_load_dwordx2 v[12:13], v7, s[16:19], s50 offen")
        a("v_lshlrev_b32 v14, 2, v6"); a("s_mov_b32 s51, 0x%x" % OFF_G)
        a("buffer_load_dword v16, v14, s[36:39], s51 offen sc1"); a("buffer_load_dword v17, v14, s[36:39], s51 offen offset:64 sc1")
    a("s_cmp_eq_u32 s42, 0")
    a("s_cbranch_scc1 L3_prepO")
    prefetch()
    a("s_cmp_lt_u32 s42, 4")
    a("s_cbranch_scc1 L3_prepO")
    a("s_cmp_lt_u32 s42, 6")
    a("s_cbranch_scc1 L3_prepY")
    a("s_add_u32 s46, s45, 8"); a("s_mul_i32 s46, s46, 18*1024"); a("s_add_u32 s46, s46, 0x%x" % OFF_WOF)
    a("s_sub_u32 s52, s42, 6"); a("s_mul_i32 s52, s52, 9216"); a("s_add_u32 s46, s46, s52")
    for i in range(9):
        a("buffer_load_dwordx4 %s, v5, s[36:39], s46 offen offset:%d sc1" % (v(ST + 4 * i, 4), (i % 4) * 1024))
        if i % 4 == 3: a("s_add_u32 s46, s46, 4096")
    a("s_add_u32 s52, s52, %d" % W8); a("v_add_u32 v14, s52, v5")
    for i in range(9):
        a("s_waitcnt vmcnt(%d)" % (8 - i))
        a("ds_write_b128 v14, %s offset:%d" % (v(ST + 4 * i, 4), 1024 * i))
    a("s_branch L3_prepdone")
    a.label("L3_prepY")
    a("v_lshrrev_b32 v14, 2, v2"); a("v_and_b32 v15, 3, v2")
    a("s_sub_u32 s52, s42, 4"); a("s_mul_i32 s52, s52, 80")
    a("s_mul_i32 s53, s44, 144"); a("s_add_u32 s53, s53, s52")
    a("v_add_u32 v14, s53, v14"); a("v_lshlrev_b32 v14, 12, v14"); a("v_lshl_add_u32 v14, v15, 4, v14")
    a("s_lshl_b32 s53, s43, 1"); a("s_add_u32 s53, s53, 0x%x" % OFF_YT)
    for i in range(5):
        a("buffer_load_dwordx4 %s, v14, s[36:39], s53 offen sc1" % v(ST + 4 * i, 4))
        a("s_add_u32 s53, s53, 16*4096")
    a("s_lshl_b32 s52, s52, 6"); a("s_add_u32 s52, s52, %d" % YB)
    a("v_add_u32 v14, s52, v5")
    for i in range(5):
        a("s_waitcnt vmcnt(%d)" % (4 - i))
        a("ds_write_b128 v14, %s offset:%d" % (v(ST + 4 * i, 4), 1024 * i))
    a("s_branch L3_prepdone")
    a.label("L3_prepO")
    OA_ = 156
    a("s_movk_i32 s52, 7282"); a("s_mul_i32 s54, s42, 288"); a("s_add_u32 s54, s54, %d" % OB)
    for part in range(2):
        for j in range(4):
            r = OA_ + 4 * part + j
            a("v_lshlrev_b32 v14, 2, v2"); a("v_add_u32 v14, %d, v14" % (256 * part + j))
            a("v_mul_u32_u24 v15, s52, v14"); a("v_lshrrev_b32 v15, 16, v15")
            a("v_mul_u32_u24 v18, 9, v15"); a("v_sub_u32 v14, v14, v18")
            a("v_mul_u32_u24 v15, 1168, v15"); a("v_lshl_add_u32 v15, v14, 2, v15")
            a("v_add_u32 v%d, s54, v15" % r)
    assert all((q * 7282 >> 16) == q // 9 for q in range(288))
    a.label("L3_prepdone")
    a("s_cmp_lg_u32 s42, 0")
    a("s_cbranch_scc1 L3_waitgo")
    a("s_add_u32 s52, s41, %d" % C5); a("s_lshl_b32 s52, s52, 7"); a("s_add_u32 s52, s52, 0x%x" % OFF_CNT)
    a("v_mov_b32 v14, s52"); a("v_mov_b32 v15, 32")
    poll_global(a, 14, 15, vt=18)
    lds_set(a, GO2B, 1, 18)
    a("s_branch L3_go")
    a.label("L3_waitgo")
    lds_spin(a, GO2B, 1, 1, 18)
    a.label("L3_go")
    stamp(a, 9)
    a("s_cmp_ge_u32 s42, 4")
    a("s_cbranch_scc1 L3_noO")
    a("s_lshl_b32 s52, s42, 3"); a("s_mul_i32 s53, s52, %d" % O_HEAD); a("s_mul_i32 s54, s43, 36"); a("s_add_u32 s53, s53, s54"); a("s_add_u32 s53, s53, 0x%x" % OFF_O)
    a("v_add_u32 v14, 1024, v5"); a("v_mov_b32 v15, 0x%x" % OOB); a("v_cmp_gt_u32 vcc, 8, v2"); a("s_nop 1"); a("v_cndmask_b32 v14, v15, v14, vcc")
    for hh in range(8):
        a("buffer_load_dwordx4 %s, v5, s[36:39], s53 offen sc1" % v(ST + 8 * hh, 4))
        a("buffer_load_dwordx4 %s, v14, s[36:39], s53 offen sc1" % v(ST + 8 * hh + 4, 4))
        a("s_add_u32 s53, s53, %d" % O_HEAD)
    a("s_cmp_lg_u32 s42, 0")
    a("s_cbranch_scc1 L3_w123")
    prefetch()
    for hh in range(8):
        a("s_waitcnt vmcnt(%d)" % (23 + 15 - 2 * hh))
        for j in range(4): a("ds_write_b32 v%d, v%d offset:%d" % (OA_ + j, ST + 8 * hh + j, 36 * hh))
        a("s_waitcnt vmcnt(%d)" % (23 + 14 - 2 * hh))
        a("s_mov_b64 exec, 0xff")
        for j in range(4): a("ds_write_b32 v%d, v%d offset:%d" % (OA_ + 4 + j, ST + 8 * hh + 4 + j, 36 * hh))
        a("s_mov_b64 exec, -1")
    a("s_branch L3_noO")
    a.label("L3_w123")
    for hh in range(8):
        a("s_waitcnt vmcnt(%d)" % (15 - 2 * hh))
        for j in range(4): a("ds_write_b32 v%d, v%d offset:%d" % (OA_ + j, ST + 8 * hh + j, 36 * hh))
        a("s_waitcnt vmcnt(%d)" % (14 - 2 * hh))
        a("s_mov_b64 exec, 0xff")
        for j in range(4): a("ds_write_b32 v%d, v%d offset:%d" % (OA_ + 4 + j, ST + 8 * hh + 4 + j, 36 * hh))
        a("s_mov_b64 exec, -1")
    a.label("L3_noO")
    a("s_waitcnt vmcnt(0) lgkmcnt(0)")
    a("s_barrier")
    stamp(a, 10)
    a("v_mul_u32_u24 v6, 1168, v3"); a("v_lshl_add_u32 v6, v4, 4, v6"); a("v_add_u32 v6, %d, v6" % OB)
    a("s_and_b32 s52, s42, 1"); a("s_mul_i32 s52, s52, 16*1168"); a("v_add_u32 v7, s52, v6")
    a("v_add_u32 v14, %d, v5" % W8)
    AC = [92, 96, 100]; BFR = [104, 116]; A2 = [128, 132]
    def kloop(three):
        NBUF = 3 if not three else 2
        BB = [104, 112, 120] if not three else BFR
        def rd(ks):
            b = BB[ks % NBUF]
            out = ["ds_read_b128 %s, v6 offset:%d" % (v(b, 4), 64 * ks), "ds_read_b128 %s, v6 offset:%d" % (v(b + 4, 4), 64 * ks + 16 * 1168)]
            if three:
                out += ["ds_read_b128 %s, v7 offset:%d" % (v(b + 8, 4), 64 * ks), "ds_read_b128 %s, v14 offset:%d" % (v(A2[ks & 1], 4), 1024 * ks)]
            return out
        n = 4 if three else 2
        D = NBUF - 1
        for k in range(D):
            for x in rd(k): a(x)
        for ks in range(18):
            if ks + D < 18:
                for x in rd(ks + D): a(x)
            rem = min(D, 17 - ks)
            a("s_waitcnt lgkmcnt(%d)" % (n * rem))
            b = BB[ks % NBUF]
            for t in range(2):
                c = "0" if ks == 0 else v(AC[t], 4)
                a("v_mfma_f32_16x16x32_bf16 %s, %s, %s, %s" % (v(AC[t], 4), v(WA + 4 * ks, 4), v(b + 4 * t, 4), c))
            if three:
                c = "0" if ks == 0 else v(AC[2], 4)
                a("v_mfma_f32_16x16x32_bf16 %s, %s, %s, %s" % (v(AC[2], 4), v(A2[ks & 1], 4), v(b + 8, 4), c))
    def epi(t, mreg_off, n_expr, xr, gr):
        a("v_lshrrev_b32 v136, 2, v2"); a("v_and_b32 v136, 3, v136"); a("v_lshl_add_u32 v136, v4, 2, v136")
        a("v_add_u32 v136, s%d, v136" % mreg_off); a("v_lshlrev_b32 v136, 6, v136")
        a("v_and_b32 v137, 3, v2"); a("v_lshl_add_u32 v136, v137, 3, v136")
        a("s_lshl_b32 s56, s%d, 5" % n_expr); a("s_add_u32 s56, s56, %d" % YB)
        a("v_add_u32 v136, s56, v136")
        a("ds_read_b64_tr_b16 v[138:139], v136")
        a("v_sub_f32 v140, 1.0, v%d" % gr)
        a("s_waitcnt lgkmcnt(0)")
        for r in range(4):
            x_, y_ = xr + r // 2, 138 + r // 2
            if r % 2 == 0:
                a("v_lshlrev_b32 v141, 16, v%d" % x_); a("v_lshlrev_b32 v142, 16, v%d" % y_)
            else:
                a("v_and_b32 v141, 0xffff0000, v%d" % x_); a("v_and_b32 v142, 0xffff0000, v%d" % y_)
            a("v_mul_f32 v141, v141, v142"); a("v_mul_f32 v141, v141, v140")
            a("v_fma_f32 v%d, v%d, v%d, v141" % (AC[t] + r, AC[t] + r, gr))
        a("v_cvt_pk_bf16_f32 v144, v%d, v%d" % (AC[t], AC[t] + 1)); a("v_cvt_pk_bf16_f32 v145, v%d, v%d" % (AC[t] + 2, AC[t] + 3))
        a("s_lshl_b32 s56, s%d, 4" % n_expr); a("v_add_u32 v146, s56, v3"); a("v_mul_u32_u24 v146, 304, v146")
        a("v_lshl_add_u32 v146, v4, 3, v146"); a("s_lshl_b32 s56, s%d, 1" % mreg_off); a("s_add_u32 s56, s56, %d" % UB)
        a("v_add_u32 v146, s56, v146")
        a("ds_write_b64 v146, v[144:145]")
    a("s_cmp_ge_u32 s42, 6")
    a("s_cbranch_scc1 L3_k3")
    kloop(False)
    a("s_branch L3_kdone")
    a.label("L3_k3")
    kloop(True)
    a.label("L3_kdone")
    stamp(a, 11)
    a("s_lshl_b32 s58, s42, 4"); a("s_mov_b32 s59, 0"); a("s_mov_b32 s60, 1"); a("s_nop 4")
    epi(0, 58, 59, 8, 16)
    epi(1, 58, 60, 10, 17)
    a("s_cmp_lt_u32 s42, 6")
    a("s_cbranch_scc1 L3_edone")
    a("s_movk_i32 s58, 128"); a("s_and_b32 s59, s42, 1")
    a("s_cmp_eq_u32 s59, 0"); a("s_cselect_b64 vcc, -1, 0"); a("v_cndmask_b32 v18, v17, v16, vcc")
    epi(2, 58, 59, 12, 18)
    a.label("L3_edone")
    a("s_waitcnt lgkmcnt(0)")
    a("s_barrier")
    a("s_movk_i32 s56, 3641")
    for rep in range(2):
        if rep == 1:
            a("s_cmp_lg_u32 s42, 0"); a("s_cbranch_scc1 L_fin")
        a("s_lshl_b32 s57, s42, 6"); a("v_add_u32 v6, s57, v2")
        if rep == 1: a("v_add_u32 v6, 512, v6")
        a("v_mul_u32_u24 v7, s56, v6"); a("v_lshrrev_b32 v7, 16, v7")
        a("v_mul_u32_u24 v8, 18, v7"); a("v_sub_u32 v8, v6, v8")
        a("v_mul_u32_u24 v9, 304, v7"); a("v_lshl_add_u32 v9, v8, 4, v9"); a("v_add_u32 v9, %d, v9" % UB)
        a("ds_read_b128 v[24:27], v9")
        a("v_add_u32 v7, s43, v7"); a("v_mul_u32_u24 v7, 1152, v7"); a("v_lshl_add_u32 v7, v8, 4, v7")
        a("s_waitcnt lgkmcnt(0)")
        a("buffer_store_dwordx4 v[24:27], v7, s[20:23], s47 offen")
    assert all((x * 3641 >> 16) == x // 18 for x in range(576))

def descriptor(name, nvgpr, nsgpr=100):
    return """.p2align 6
.amdhsa_kernel %s
  .amdhsa_next_free_vgpr %d
  .amdhsa_next_free_sgpr %d
  .amdhsa_accum_offset %d
  .amdhsa_group_segment_fixed_size 0
  .amdhsa_kernarg_size 104
  .amdhsa_user_sgpr_count 2
  .amdhsa_user_sgpr_kernarg_segment_ptr 1
  .amdhsa_system_sgpr_workgroup_id_x 1
  .amdhsa_float_denorm_mode_32 3
.end_amdhsa_kernel
""" % (name, nvgpr, nsgpr, nvgpr)

def main():
    global DIAG
    global RT
    RT = "--rt" in sys.argv
    DIAG = "--diag" in sys.argv or RT
    for x in sys.argv:
        if x.startswith("--exp="): EXP.update(x[6:].split(","))
    args = [x for x in sys.argv[1:] if not x.startswith("--")]
    a = Asm()
    hdr = open("gated_mix__mha_block__ssm_conv_h3__prompt.s.ref").read().split("\n")
    head = [l for l in hdr if l.startswith(";") and "@launch" not in l and "Override" not in l and "grid=ceil" not in l]
    a.raw("\n".join(head))
    a.raw("; @launch grid=(256,1,1) block=(768,1,1) lds=%d" % LDS_TOTAL)
    a.raw('.amdgcn_target "amdgcn-amd-amdhsa--gfx950"')
    a.raw(".text")
    a.raw(".globl %s" % NAME); a.raw(".p2align 8"); a.raw(".type %s,@function" % NAME); a.label(NAME)
    a("s_cmp_ge_u32 s2, 256")
    a("s_cbranch_scc1 L_end")
    phase1(a)
    phase2(a)
    a.label("L_fin")
    stamp(a, 12)
    stamp_store(a)
    a.label("L_end")
    a("s_endpgm")
    a.raw('.section .rodata,"a"')
    a.raw(descriptor(NAME, 168))
    if "nosc1" in EXP:
        a.lines = [l.replace(" sc1", "") if ("buffer_store" in l and "sc0" not in l) else l for l in a.lines]
    if "nosideload" in EXP:
        out_l = []; inside = False
        for l in a.lines:
            if "L1_side:" in l: inside = True
            if "L1_out:" in l: inside = False
            if inside and ("buffer_load_dword" in l or "buffer_load_ushort" in l) and "s[20:23]" not in l: continue
            out_l.append(l)
        a.lines = out_l
    if "nosidestore" in EXP:
        out_l = []; inside = False
        for l in a.lines:
            if "L1_side:" in l: inside = True
            if "L1_out:" in l: inside = False
            if inside and "buffer_store" in l and "s[20:23]" not in l and "v1, s[36:39], 0 offen sc1" not in l: continue
            out_l.append(l)
        a.lines = out_l
    out = args[0] if args else "fused.s"
    open(out, "w").write(a.text())
    probs = check_seq(a.lines, "all")
    for p in probs: print("HAZARD", p)
    print("wrote", out, len(a.lines), "lines")

if __name__ == "__main__":
    main()
```

```python
import sys, struct
from asmlib import *

NAME = "gated_mix__mha_block__ssm_conv_h3__prompt_kernel"
KV_HEAD = 147456
Q_HEAD  = 73728
OFF_KV  = 0
OFF_Q   = OFF_KV + 32 * KV_HEAD
URT_ROW = 4096
OFF_URT = OFF_Q + 32 * Q_HEAD
HP_ROW  = 5120
OFF_HP  = OFF_URT + 576 * URT_ROW
OFF_YT  = OFF_HP + 576 * 2 * HP_ROW
O_HEAD  = 2048 * 36
OFF_O   = OFF_YT + 576 * 4096
OFF_G   = OFF_O + 32 * O_HEAD
OFF_WOF = OFF_G + 2048 * 4
OFF_MX  = OFF_WOF + 648 * 1024
OFF_CNT = OFF_MX + 256 * 8 * 512
WS_USED = OFF_CNT + 256 * 128
WS_SRD_SIZE = 0x2000000
assert WS_USED <= WS_SRD_SIZE and OFF_CNT % 128 == 0
C1, C2, C3, C4, C5 = 0, 128, 140, 144, 145
QSCALE = 1.4426950408889634 / (18.0 ** 0.5)
def f32bits(x): return struct.unpack("<I", struct.pack("<f", x))[0]
OOB = 0x80000000
LDS_KV = 147456
LDS_UR = LDS_KV
LDS_FLAG = LDS_UR + 3 * 4608
FA, FB, FBAD, GO1, CNT, GO2A, GO2B = LDS_FLAG, LDS_FLAG + 4, LDS_FLAG + 8, LDS_FLAG + 12, LDS_FLAG + 16, LDS_FLAG + 32, LDS_FLAG + 36
SB1, SB2, SB3, SB4, SB5 = LDS_FLAG + 40, LDS_FLAG + 44, LDS_FLAG + 48, LDS_FLAG + 52, LDS_FLAG + 56
SBG = LDS_FLAG + 60
INITOK = LDS_FLAG + 64
LDS_TOTAL = LDS_FLAG + 128
VMASK = 0x0003FFFF
SPIN_MAX = 200000
NPRE = 8

DIAG = False
EXP = set()
NST = 16
RT = False
def stamp(a, i):
    if not DIAG: return
    a("%s s[76:77]" % ("s_memrealtime" if RT else "s_memtime")); a("s_waitcnt lgkmcnt(0)"); a("s_mov_b32 s%d, s76" % (80 + i))
def rstamp(a, i):
    if not DIAG or RT: return
    a("s_memrealtime s[76:77]"); a("s_waitcnt lgkmcnt(0)"); a("s_mov_b32 s%d, s76" % (80 + i))
def stamp_init(a):
    if not DIAG: return
    for i in range(NST): a("s_mov_b32 s%d, 0" % (80 + i))
def stamp_store(a):
    if not DIAG: return
    a("s_waitcnt vmcnt(0)")
    a("s_mov_b32 s38, 0x4000000")
    a("v_lshrrev_b32 v1, 6, v0"); a("s_lshl_b32 s78, s2, 4"); a("v_add_u32 v1, s78, v1")
    a("v_lshlrev_b32 v1, 6, v1"); a("v_add_u32 v1, 0x3000000, v1")
    for i in range(NST):
        a("v_mov_b32 v2, s%d" % (80 + i))
        a("buffer_store_dword v2, v1, s[36:39], 0 offen offset:%d" % (4 * i))

def srd(a, dst, ptr, size):
    a("s_mov_b32 s%d, s%d" % (dst, ptr))
    a("s_and_b32 s%d, s%d, 0xffff" % (dst + 1, ptr + 1))
    a("s_mov_b32 s%d, 0x%x" % (dst + 2, size))
    a("s_mov_b32 s%d, 0x20000" % (dst + 3))

def lds_arrive(a, addr, va=1, vb=3):
    a("v_mov_b32 v%d, %d" % (va, addr)); a("v_mov_b32 v%d, 1" % vb)
    a("s_mov_b64 exec, 1"); a("ds_add_u32 v%d, v%d" % (va, vb)); a("s_mov_b64 exec, -1")
def lds_set(a, addr, va=1, vb=3):
    a("v_mov_b32 v%d, %d" % (va, addr)); a("v_mov_b32 v%d, 1" % vb)
    a("ds_write_b32 v%d, v%d" % (va, vb)); a("s_waitcnt lgkmcnt(0)")
def lds_spin(a, addr, target, va=1, vb=3, st=56, sleep=True):
    l = a.uid("Lspin")
    a("v_mov_b32 v%d, %d" % (va, addr))
    a.label(l)
    a("ds_read_b32 v%d, v%d" % (vb, va)); a("s_waitcnt lgkmcnt(0)")
    a("v_readfirstlane_b32 s%d, v%d" % (st, vb))
    a("s_cmp_ge_u32 s%d, %d" % (st, target))
    a("s_cbranch_scc1 %s_x" % l)
    a("s_sleep 1")
    a("s_branch %s" % l)
    a.label(l + "_x")
def soft_barrier(a, addr, n, va=1, vb=3):
    lds_arrive(a, addr, va, vb)
    lds_spin(a, addr, n, va, vb, sleep=False)
def poll_global(a, voff, vtgt, vt=3, sb=57, slp=8):
    l = a.uid("Lpoll")
    a("s_mov_b32 s%d, %d" % (sb, SPIN_MAX))
    a.label(l)
    a("buffer_load_dword v%d, v%d, s[36:39], 0 offen sc1" % (vt, voff))
    a("s_waitcnt vmcnt(0)")
    a("v_cmp_lt_u32 vcc, v%d, v%d" % (vt, vtgt))
    a("s_nop 3")
    a("s_cmp_eq_u64 vcc, 0")
    a("s_cbranch_scc1 %s_x" % l)
    a("s_sleep %d" % slp)
    a("s_sub_u32 s%d, s%d, 1" % (sb, sb))
    a("s_cmp_lg_u32 s%d, 0" % sb)
    a("s_cbranch_scc1 %s" % l)
    a.label(l + "_x")
def atomic_inc(a, sidx, va=1, vb=3):
    a("s_lshl_b32 s57, s%d, 7" % sidx); a("s_add_u32 s57, s57, 0x%x" % OFF_CNT)
    a("v_mov_b32 v%d, s57" % va); a("v_mov_b32 v%d, 1" % vb)
    a("s_mov_b64 exec, 1")
    a("buffer_atomic_add v%d, v%d, s[36:39], 0 offen sc1" % (vb, va))
    a("s_mov_b64 exec, -1")

def hloads(a):
    l = a.uid("Lh")
    a("s_lshl_b32 s61, s43, 8"); a("s_add_u32 s61, s61, s2")
    a("s_cmp_ge_u32 s61, 576"); a("s_cselect_b32 s58, 1, 0"); a("s_cmp_eq_u32 s42, 11"); a("s_cselect_b32 s58, 1, s58")
    a("s_load_dwordx2 s[62:63], s[0:1], 56")
    a("v_lshlrev_b32 v118, 4, v2"); a("v_subrev_u32 v119, 32, v118")
    a("s_waitcnt lgkmcnt(0)")
    a("s_min_u32 s61, s61, 575")
    a("s_lshl_b32 s56, s61, 12")
    a("s_add_u32 s64, s62, s56"); a("s_addc_u32 s65, s63, 0"); a("s_and_b32 s65, s65, 0xffff")
    a("s_mov_b32 s66, 4096"); a("s_mov_b32 s67, 0x20000")
    a("s_cmp_eq_u32 s58, 1"); a("s_cbranch_scc1 %s" % l)
    for it in range(5):
        if it == 0:
            a("buffer_load_dwordx4 v[120:123], v119, s[64:67], 0 offen")
            a("v_add_u32 v117, 16, v119")
            a("buffer_load_dword v124, v117, s[64:67], 0 offen")
        else:
            a("v_add_u32 v117, %d, v119" % (1024 * it))
            a("buffer_load_dwordx4 %s, v117, s[64:67], 0 offen" % v(120 + 8 * it, 4))
            a("buffer_load_dword v%d, v117, s[64:67], 0 offen offset:16" % (124 + 8 * it))
    a.label(l)
def hstores(a):
    l = a.uid("Lhs")
    a("s_cmp_eq_u32 s58, 1"); a("s_cbranch_scc1 %s" % l)
    a("s_mul_i32 s62, s61, %d" % (2 * HP_ROW)); a("s_add_u32 s62, s62, 0x%x" % OFF_HP); a("s_add_u32 s63, s62, %d" % HP_ROW)
    for it in range(5):
        b = 120 + 8 * it; t = 160 + 4 * (it & 1)
        for k in range(4): a("v_alignbit_b32 v%d, v%d, v%d, 16" % (t + k, b + k + 1, b + k))
        if it < 4:
            a("buffer_store_dwordx4 %s, v118, s[36:39], s62 offen offset:%d" % (v(b, 4), 1024 * it))
            a("buffer_store_dwordx4 %s, v118, s[36:39], s63 offen offset:%d" % (v(t, 4), 1024 * it))
        else:
            a("s_add_u32 s56, s62, 4096"); a("buffer_store_dwordx4 %s, v118, s[36:39], s56 offen" % v(b, 4))
            a("s_add_u32 s56, s63, 4096"); a("buffer_store_dwordx4 %s, v118, s[36:39], s56 offen" % v(t, 4))
        a("s_nop 1")
    a.label(l)

def phase1(a):
    a("s_load_dwordx4 s[4:7], s[0:1], 0")
    a("s_load_dwordx4 s[8:11], s[0:1], 32")
    a("s_load_dwordx2 s[12:13], s[0:1], 48")
    a("s_load_dwordx2 s[14:15], s[0:1], 96")
    a("s_and_b32 s40, s2, 1"); a("s_lshl_b32 s40, s40, 3")
    a("s_lshr_b32 s43, s2, 3"); a("s_and_b32 s43, s43, 7")
    a("s_add_u32 s40, s40, s43")
    a("s_lshr_b32 s41, s2, 1"); a("s_and_b32 s41, s41, 3"); a("s_lshl_b32 s41, s41, 2")
    a("s_lshr_b32 s43, s2, 6"); a("s_add_u32 s41, s41, s43")
    a("v_lshrrev_b32 v1, 6, v0")
    a("v_and_b32 v2, 63, v0")
    a("v_readfirstlane_b32 s42, v1")
    a("v_and_b32 v3, 15, v2")
    a("v_lshrrev_b32 v4, 4, v2")
    a("s_waitcnt lgkmcnt(0)")
    srd(a, 36, 14, WS_SRD_SIZE)
    stamp_init(a); stamp(a, 0)
    a("s_cmp_ge_u32 s42, 8")
    a("s_cbranch_scc1 L1_side")
    srd(a, 16, 4, 2048 * 1152)
    srd(a, 20, 6, 576 * 3456)
    a("v_lshrrev_b32 v5, 3, v2"); a("v_and_b32 v6, 7, v2")
    a("s_lshl_b32 s43, s41, 7"); a("s_lshl_b32 s44, s42, 4"); a("s_add_u32 s43, s43, s44")
    a("v_add_u32 v5, s43, v5")
    a("s_movk_i32 s44, 1152")
    a("v_mul_lo_u32 v5, v5, s44")
    a("v_xor_b32 v7, v6, v4")
    a("v_lshl_add_u32 v8, v7, 4, v5")
    a("v_xor_b32 v7, 4, v7")
    a("v_lshl_add_u32 v9, v7, 4, v5")
    a("v_add_u32 v9, 9216, v9")
    a("s_and_b32 s44, s42, 1"); a("s_lshl_b32 s44, s44, 3")
    a("v_lshlrev_b32 v5, 1, v4"); a("v_add_u32 v5, s44, v5"); a("v_xor_b32 v5, v5, v3")
    a("v_min_u32 v5, 13, v5")
    a("s_movk_i32 s44, 3456")
    a("v_mul_lo_u32 v6, v4, s44")
    a("v_lshl_add_u32 v10, v5, 4, v6")
    a("s_mul_i32 s45, s40, 216"); a("s_mul_i32 s46, s42, 8*3456"); a("s_add_u32 s46, s46, s45")
    a("s_mov_b32 s47, 0")
    a("s_lshl_b32 s48, s42, 11")
    def dma_groups():
        g0 = ["s_mov_b32 m0, s48", "s_add_u32 s49, s48, 1024", "buffer_load_dwordx4 v8, s[16:19], s47 offen lds"]
        g1 = ["s_mov_b32 m0, s49", "s_add_u32 s49, s48, 16384", "buffer_load_dwordx4 v9, s[16:19], s47 offen lds"]
        g2 = ["s_mov_b32 m0, s49", "s_add_u32 s49, s48, 17408", "buffer_load_dwordx4 v10, s[20:23], s46 offen lds"]
        g3 = ["s_mov_b32 m0, s49", "s_add_u32 s50, s46, 4*3456", "buffer_load_dwordx4 v10, s[20:23], s50 offen lds",
              "s_add_u32 s46, s46, 64*3456", "s_add_u32 s47, s47, 128", "s_add_u32 s48, s48, 32768", "s_and_b32 s48, s48, 0x1ffff"]
        return [g0, g1, g2, g3]
    def dma_stage():
        for g in dma_groups():
            for x in g: a(x)
    dma_stage()
    a("s_and_b32 s51, s42, 3"); a("s_lshr_b32 s52, s42, 2")
    a("s_lshl_b32 s44, s51, 5")
    a("v_add_u32 v5, s44, v3"); a("v_lshlrev_b32 v5, 7, v5")
    a("v_lshrrev_b32 v6, 1, v3"); a("v_xor_b32 v6, v6, v4")
    a("v_lshl_add_u32 v11, v6, 4, v5")
    a("v_xor_b32 v12, 64, v11")
    a("v_add_u32 v13, 0x10000, v11"); a("v_add_u32 v14, 0x10000, v12")
    AW = 16
    a("v_lshrrev_b32 v6, 2, v2"); a("v_and_b32 v6, 3, v6"); a("v_and_b32 v7, 3, v2")
    a("v_lshl_add_u32 v1, v4, 3, v6"); a("v_lshlrev_b32 v1, 8, v1")
    a("v_and_b32 v5, 1, v7"); a("v_lshl_add_u32 v1, v5, 3, v1")
    a("v_lshrrev_b32 v7, 1, v7"); a("v_lshl_add_u32 v1, v7, 4, v1")
    a("v_add_u32 v1, 16384, v1")
    a("v_and_b32 v5, 1, v4"); a("v_lshlrev_b32 v5, 3, v5"); a("v_lshl_add_u32 v5, v6, 1, v5")
    a("s_lshl_b32 s44, s52, 3")
    for i in range(4):
        a("s_add_u32 s45, s44, %d" % (2 * i))
        a("v_xor_b32 v6, s45, v5")
        a("v_lshl_add_u32 v%d, v6, 4, v1" % (AW + i))
        a("v_add_u32 v%d, 0x10000, v%d" % (AW + 4 + i, AW + i))
    dma_stage()
    ACC, AF, BF = 32, 64, 96
    TA_, TS_ = 112, 120
    a("s_lshl_b32 s44, s51, 5")
    a("v_add_u32 v5, s44, v3")
    a("s_movk_i32 s44, 304")
    a("v_mul_lo_u32 v5, v5, s44")
    a("s_mul_i32 s44, s40, 6"); a("s_sub_i32 s44, 32, s44"); a("s_max_i32 s44, s44, 0"); a("s_min_i32 s44, s44, 6")
    a("s_mul_i32 s54, s44, 18")
    a("s_lshl_b32 s55, s52, 6")
    a("v_lshl_add_u32 v6, v4, 2, s55")
    a("s_movk_i32 s56, 3641")
    a("v_mov_b32 v24, 1.0")
    a("v_mov_b32 v25, 0x%x" % f32bits(QSCALE))
    for i in range(4):
        for p in range(2):
            k = 2 * i + p
            a("v_add_u32 v26, %d, v6" % (16 * i + 2 * p))
            a("v_min_u32 v26, 110, v26")
            a("v_mul_u32_u24 v27, s56, v26")
            a("v_cmp_gt_u32 vcc, s54, v26")
            a("v_lshrrev_b32 v27, 16, v27")
            a("v_mul_u32_u24 v27, 12, v27")
            a("v_cndmask_b32 v%d, v24, v25, vcc" % (TS_ + k))
            a("v_lshl_add_u32 v27, v26, 1, v27")
            a("v_add_u32 v%d, v27, v5" % (TA_ + k))
    dma_stage()
    def reads(u):
        st, kk = divmod(u, 2)
        slot = st & 3; hi = slot >> 1; off = (slot & 1) * 32768; buf = u & 1
        out = []
        bb = (13 if hi else 11) + kk
        out.append("ds_read_b128 %s, v%d offset:%d" % (v(BF + 8 * buf, 4), bb, off))
        out.append("ds_read_b128 %s, v%d offset:%d" % (v(BF + 8 * buf + 4, 4), bb, off + 2048))
        for i in range(4):
            ar = AW + 4 * hi + i
            out.append("ds_read_b64_tr_b16 %s, v%d offset:%d" % (v(AF + 16 * buf + 4 * i, 2), ar, off + kk * 8192))
            out.append("ds_read_b64_tr_b16 %s, v%d offset:%d" % (v(AF + 16 * buf + 4 * i + 2, 2), ar, off + kk * 8192 + 1024))
        return out
    def mf(u, j):
        buf = u & 1; i, n = j >> 1, j & 1
        c = "0" if u == 0 else v(ACC + 8 * i + 4 * n, 4)
        a("v_mfma_f32_16x16x32_bf16 %s, %s, %s, %s" % (v(ACC + 8 * i + 4 * n, 4), v(AF + 16 * buf + 4 * i, 4), v(BF + 8 * buf + 4 * n, 4), c))
    stamp(a, 1)
    a("s_barrier")
    GA, GO_, GP = 28, 29, 30
    a("v_mov_b32 v%d, %d" % (GA, SBG)); a("v_mov_b32 v%d, 1" % GO_)
    def arrive():
        a("s_mov_b64 exec, 1"); a("ds_add_u32 v%d, v%d" % (GA, GO_)); a("s_mov_b64 exec, -1")
    def check(target, tag):
        a("v_readfirstlane_b32 s53, v%d" % GP)
        a("s_cmp_ge_u32 s53, %d" % target); a("s_cbranch_scc1 L1_ok%s" % tag)
        a.label("L1_sp%s" % tag)
        a("ds_read_b32 v%d, v%d" % (GP, GA)); a("s_waitcnt lgkmcnt(0)")
        a("v_readfirstlane_b32 s53, v%d" % GP)
        a("s_cmp_ge_u32 s53, %d" % target); a("s_cbranch_scc1 L1_ok%s" % tag)
        a("s_sleep 1"); a("s_branch L1_sp%s" % tag)
        a.label("L1_ok%s" % tag)
    a("s_waitcnt vmcnt(8)")
    arrive()
    a("ds_read_b32 v%d, v%d" % (GP, GA)); a("s_waitcnt lgkmcnt(0)")
    check(8, "0")
    if RT: stamp(a, 14)
    for x in reads(0): a(x)
    NU = 18
    for u in range(NU):
        st, kk = divmod(u, 2)
        last = (u == NU - 1)
        dg = []
        extra = 0
        if kk == 0 and st < 8:
            a("s_waitcnt vmcnt(%d)" % (4 if st <= 6 else 0))
            arrive(); extra = 1
        if kk == 1:
            a("s_waitcnt lgkmcnt(0)")
            if not last:
                check(8 * (st + 2), str(st + 1))
                if RT and st == 3: stamp(a, 15)
                if st + 3 <= 8: dg = dma_groups()
        nr = [] if last else reads(u + 1)
        if kk == 0: waits = {0: 6 + extra, 2: 8 + extra, 4: 10 + extra, 6: 10 + 2 * extra}
        else: waits = {}
        for j in range(8):
            if j in waits: a("s_waitcnt lgkmcnt(%d)" % waits[j])
            mf(u, j)
            if j < 5 and nr:
                a(nr[2 * j]); a(nr[2 * j + 1])
                if j == 4 and kk == 0 and st < 8: a("ds_read_b32 v%d, v%d" % (GP, GA))
            if dg and j >= 4:
                for x in dg[j - 4]: a(x)
    stamp(a, 2)
    soft_barrier(a, SB1, 8, 1, 5)
    for i in range(4):
        for p in range(2):
            k = 2 * i + p
            for n in range(2):
                r0 = ACC + 8 * i + 4 * n + 2 * p
                a("v_mul_f32 v%d, v%d, v%d" % (r0, TS_ + k, r0))
                a("v_mul_f32 v%d, v%d, v%d" % (r0 + 1, TS_ + k, r0 + 1))
    for i in range(4):
        for p in range(2):
            for n in range(2):
                r0 = ACC + 8 * i + 4 * n + 2 * p
                a("v_cvt_pk_bf16_f32 v%d, v%d, v%d" % (r0, r0, r0 + 1))
    for i in range(4):
        for p in range(2):
            k = 2 * i + p
            for n in range(2):
                r0 = ACC + 8 * i + 4 * n + 2 * p
                a("ds_write_b32 v%d, v%d offset:%d" % (TA_ + k, r0, n * 16 * 304))
    a("s_waitcnt lgkmcnt(0)")
    a("s_branch L1_out")

    a.label("L1_side")
    a("s_sub_u32 s43, s42, 8")
    a("s_cmp_lg_u32 s42, 8")
    a("s_cbranch_scc1 L1_noflag")
    a("v_lshlrev_b32 v1, 2, v2"); a("v_add_u32 v1, %d, v1" % LDS_FLAG)
    a("v_mov_b32 v5, 0"); a("v_mov_b32 v6, 2")
    a("v_cmp_le_u32 vcc, 4, v2"); a("s_nop 1"); a("v_cndmask_b32 v5, v5, v6, vcc")
    a("v_cmp_le_u32 vcc, 8, v2"); a("v_mov_b32 v6, 0"); a("s_nop 0"); a("v_cndmask_b32 v5, v5, v6, vcc")
    a("s_mov_b32 exec_hi, 0")
    a("ds_write_b32 v1, v5")
    a("s_mov_b64 exec, -1")
    a.label("L1_noflag")
    a("s_waitcnt lgkmcnt(0)")
    a("s_barrier")
    a("s_cmp_eq_u32 s42, 11")
    a("s_cbranch_scc0 L1_kv")
    a("s_load_dwordx2 s[16:17], s[0:1], 88")
    a("s_waitcnt lgkmcnt(0)")
    srd(a, 20, 16, 256)
    a("s_cmp_lg_u32 s2, 0")
    a("s_cbranch_scc1 L1_noinit")
    a("v_lshlrev_b32 v1, 7, v2"); a("v_add_u32 v1, 0x%x, v1" % OFF_CNT); a("v_mov_b32 v5, 0")
    for q in range(4):
        a("buffer_store_dword v5, v1, s[36:39], 0 offen sc1")
        a("v_add_u32 v1, 8192, v1")
    a("s_waitcnt vmcnt(0)")
    a("v_mov_b32 v1, 0"); a("v_mov_b32 v5, 1")
    a("s_mov_b64 exec, 1")
    a("buffer_store_dword v5, v1, s[20:23], 0 offen sc1")
    a("s_mov_b64 exec, -1")
    a.label("L1_noinit")
    a("v_mov_b32 v28, 0"); a("s_mov_b32 s57, %d" % SPIN_MAX)
    a.label("L1_ip")
    a("buffer_load_dword v7, v28, s[20:23], 0 offen sc1"); a("s_waitcnt vmcnt(0)"); a("v_readfirstlane_b32 s56, v7")
    a("s_cmp_eq_u32 s56, 1"); a("s_cbranch_scc1 L1_ipx")
    a("s_sleep 8"); a("s_sub_u32 s57, s57, 1"); a("s_cmp_lg_u32 s57, 0"); a("s_cbranch_scc1 L1_ip")
    a.label("L1_ipx")
    lds_set(a, INITOK, 1, 7)
    loader(a)
    stamp(a, 6)
    a("s_setprio 1")
    a("s_load_dwordx2 s[4:5], s[0:1], 0"); a("s_load_dwordx2 s[16:17], s[0:1], 16"); a("s_load_dwordx2 s[18:19], s[0:1], 72")
    a("s_waitcnt lgkmcnt(0)")
    srd(a, 24, 4, 2048 * 1152); srd(a, 28, 18, 1152); srd(a, 32, 16, 576 * 1152)
    a("v_and_b32 v3, 15, v2"); a("v_lshrrev_b32 v4, 4, v2")
    a("v_lshrrev_b32 v5, 3, v2"); a("v_and_b32 v6, 7, v2")
    a("s_lshl_b32 s45, s2, 3"); a("v_add_u32 v9, s45, v5")
    a("v_mul_u32_u24 v7, 1152, v9"); a("v_lshlrev_b32 v8, 4, v6"); a("v_add_u32 v7, v7, v8")
    a("v_mul_u32_u24 v120, 8*1152, v4"); a("v_lshl_add_u32 v120, v3, 1, v120"); a("v_add_u32 v121, 4608, v120"); a("v_lshlrev_b32 v122, 4, v2")
    for c in range(9):
        a("buffer_load_dwordx4 %s, v7, s[24:27], 0 offen offset:%d" % (v(12 + 4 * c, 4), 128 * c))
        a("buffer_load_dwordx4 %s, v8, s[28:31], 0 offen offset:%d" % (v(48 + 4 * c, 4), 128 * c))
    for r in range(3):
        a("s_add_u32 s45, s2, %d" % (256 * r))
        a("s_mul_hi_u32 s46, s45, 0x%x" % ((1 << 32) // 18 + 1))
        a("s_mul_i32 s47, s46, 18"); a("s_sub_u32 s47, s45, s47")
        a("s_mul_i32 s47, s47, 32*1152"); a("s_lshl_b32 s46, s46, 5"); a("s_add_u32 s47, s47, s46")
        a("s_cmp_lt_u32 s45, 648"); a("s_cselect_b32 s47, s47, 0")
        for j in range(8):
            a("buffer_load_ushort v%d, v%d, s[32:35], s47 offen offset:%d" % (92 + 8 * r + j, 120 if j < 4 else 121, 1152 * (j % 4)))
    a("s_waitcnt vmcnt(0)")
    a("v_mov_b32 v84, 0")
    for r in range(36): a("v_dot2_f32_bf16 v84, v%d, v%d, v84" % (12 + r, 48 + r))
    a("s_nop 3")
    for d in (1, 2, 4):
        a("s_nop 1")
        if d == 1: a("v_mov_b32_dpp v85, v84 quad_perm:[1,0,3,2] row_mask:0xf bank_mask:0xf")
        elif d == 2: a("v_mov_b32_dpp v85, v84 quad_perm:[2,3,0,1] row_mask:0xf bank_mask:0xf")
        else: a("v_mov_b32_dpp v85, v84 row_half_mirror row_mask:0xf bank_mask:0xf")
        a("s_nop 1")
        a("v_add_f32 v84, v84, v85")
    a("v_mul_f32 v84, 0xbfb8aa3b, v84"); a("v_exp_f32 v84, v84"); a("s_nop 0")
    a("v_add_f32 v84, 1.0, v84"); a("v_rcp_f32 v84, v84")
    a("v_lshlrev_b32 v85, 2, v9"); a("v_mov_b32 v86, 0x%x" % OOB)
    a("v_cmp_eq_u32 vcc, 0, v6"); a("s_mov_b32 s46, 0x%x" % OFF_G); a("s_nop 0")
    a("v_cndmask_b32 v85, v86, v85, vcc")
    a("buffer_store_dword v84, v85, s[36:39], s46 offen sc1")
    for r in range(3):
        for j in range(4): a("v_lshl_or_b32 v%d, v%d, 16, v%d" % (124 + 4 * r + j, 93 + 8 * r + 2 * j, 92 + 8 * r + 2 * j))
        a("s_add_u32 s45, s2, %d" % (256 * r))
        a("s_lshl_b32 s46, s45, 10"); a("s_add_u32 s46, s46, 0x%x" % OFF_WOF)
        a("s_cmp_lt_u32 s45, 648"); a("s_cbranch_scc0 L1_nw%d" % r)
        a("buffer_store_dwordx4 %s, v122, s[36:39], s46 offen sc1" % v(124 + 4 * r, 4))
        a.label("L1_nw%d" % r)
    a("s_waitcnt vmcnt(0)")
    a("s_mov_b32 s45, %d" % C4)
    atomic_inc(a, 45, 1, 4)
    a("s_branch L_fin")
    a.label("L1_kv")
    if "atFA" in EXP: lds_spin(a, FA, 8, 1, 7)
    elif "early" in EXP: lds_spin(a, INITOK, 1, 1, 7)
    elif "atG1" in EXP: lds_spin(a, SB3, 8, 1, 7)
    elif "atGO1" in EXP: lds_spin(a, GO1, 1, 1, 7)
    elif "atB6" in EXP: lds_spin(a, SBG, 8 * 7, 1, 7)
    else: lds_spin(a, FA, 8, 1, 7)
    a("s_setprio 3")
    srd(a, 24, 8, 2048 * 1152); srd(a, 28, 10, 2048 * 1152); srd(a, 32, 12, 576 * 8)
    a("s_mul_hi_u32 s44, s2, 0x%x" % ((1 << 32) // 12 + 1))
    a("s_mul_i32 s45, s44, 12"); a("s_sub_u32 s45, s2, s45")
    a("s_lshl_b32 s46, s43, 6"); a("v_add_u32 v8, s46, v2")
    a("s_movk_i32 s46, 5462"); a("v_mul_u32_u24 v9, s46, v8"); a("v_lshrrev_b32 v9, 16, v9")
    a("v_mul_u32_u24 v10, 12, v9"); a("v_sub_u32 v10, v8, v10")
    a("s_lshl_b32 s46, s44, 7"); a("v_lshl_add_u32 v11, v9, 3, s46")
    a("s_mul_i32 s46, s45, 96"); a("v_lshl_add_u32 v12, v10, 3, s46")
    a("s_movk_i32 s46, 1152")
    a("v_mul_lo_u32 v13, v11, s46"); a("v_add_u32 v13, v13, v12")
    a("v_subrev_u32 v14, 3456, v13")
    a("v_mov_b32 v15, 0x%x" % OOB)
    a("v_cmp_eq_u32 vcc, 0, v11")
    a("s_mul_i32 s46, s45, 384"); a("v_lshl_add_u32 v16, v10, 5, s46")
    a("v_cndmask_b32 v14, v14, v15, vcc")
    a("s_mul_i32 s46, s45, 48"); a("v_lshl_add_u32 v17, v10, 2, s46"); a("v_lshlrev_b32 v17, 12, v17")
    a("v_sub_u32 v18, 15, v9"); a("v_lshl_add_u32 v17, v18, 4, v17")
    a("s_lshl_b32 s47, s44, 8"); a("s_sub_u32 s47, 3840, s47"); a("s_add_u32 s47, s47, 0x%x" % OFF_URT)
    a("s_cmp_lt_u32 s2, 192"); a("s_cbranch_scc1 L1_kvact")
    a("v_mov_b32 v13, v15"); a("v_mov_b32 v14, v15"); a("v_mov_b32 v16, v15"); a("v_mov_b32 v17, v15"); a("s_mov_b32 s47, 0")
    a.label("L1_kvact")
    KR, VR, WR = 32, 54, 70
    a("s_movk_i32 s48, 4608")
    for i in range(3): a("buffer_load_dwordx2 %s, v14, s[24:27], 0 offen offset:%d" % (v(KR + 2 * i, 2), 1152 * i))
    for i in range(8): a("buffer_load_dwordx2 %s, v13, s[24:27], %s offen offset:%d" % (v(KR + 6 + 2 * i, 2), "0" if i < 4 else "s48", 1152 * (i % 4)))
    a("buffer_load_dwordx4 %s, v16, s[32:35], 0 offen" % v(WR, 4)); a("buffer_load_dwordx4 %s, v16, s[32:35], 0 offen offset:16" % v(WR + 4, 4))
    for i in range(8): a("buffer_load_dwordx2 %s, v13, s[28:31], %s offen offset:%d" % (v(VR + 2 * i, 2), "0" if i < 4 else "s48", 1152 * (i % 4)))
    hloads(a)
    a("s_waitcnt vmcnt(0)")
    if "stFA" in EXP: lds_spin(a, FA, 8, 1, 7)
    WF, KF, PK = 80, 96, 140
    hstores(a)
    for c in range(4):
        for p in range(2):
            src = WR + 2 * c + p
            a("v_lshlrev_b32 v%d, 16, v%d" % (WF + 4 * c + 2 * p, src))
            a("v_and_b32 v%d, 0xffff0000, v%d" % (WF + 4 * c + 2 * p + 1, src))
    for c in range(4):
        for i in range(11):
            src = KR + 2 * i + (c >> 1)
            if c & 1: a("v_and_b32 v%d, 0xffff0000, v%d" % (KF + i, src))
            else: a("v_lshlrev_b32 v%d, 16, v%d" % (KF + i, src))
        R_ = 108
        for i in range(8): a("v_mul_f32 v%d, v%d, v%d" % (R_ + i, KF + i, WF + 4 * c + 3))
        for t in (2, 1, 0):
            for i in range(8): a("v_fmac_f32 v%d, v%d, v%d" % (R_ + i, KF + i + 3 - t, WF + 4 * c + t))
        for i in range(8):
            src = VR + 2 * i + (c >> 1)
            if c & 1: a("v_and_b32 v%d, 0xffff0000, v%d" % (KF + i, src))
            else: a("v_lshlrev_b32 v%d, 16, v%d" % (KF + i, src))
        for i in range(8): a("v_mul_f32 v%d, v%d, v%d" % (R_ + i, R_ + i, KF + i))
        for e in range(4): a("v_cvt_pk_bf16_f32 v%d, v%d, v%d" % (PK + 4 * c + e, R_ + 7 - 2 * e, R_ + 6 - 2 * e))
        a("s_add_u32 s46, s47, %d" % (4096 * c))
        a("buffer_store_dwordx4 %s, v17, s[36:39], s46 offen sc1" % v(PK + 4 * c, 4))
    a("s_waitcnt vmcnt(0)")
    lds_arrive(a, SB4, 1, 4)
    a("s_cmp_lg_u32 s42, 8"); a("s_cbranch_scc1 L2_conv")
    a("s_cmp_lt_u32 s2, 192"); a("s_cbranch_scc0 L2_conv")
    lds_spin(a, SB4, 3, 1, 4)
    a("s_add_u32 s45, s45, %d" % C2)
    atomic_inc(a, 45, 1, 4)
    a("s_branch L2_conv")
    a.label("L1_out")
    soft_barrier(a, SB2, 8, 1, 5)
    stamp(a, 3)
    a("s_cmp_ge_u32 s42, 6")
    a("s_cbranch_scc1 L1_fin")
    a("s_mul_i32 s53, s40, 6"); a("s_add_u32 s53, s53, s42")
    a("s_lshr_b32 s54, s53, 5"); a("s_and_b32 s56, s53, 31")
    a("s_mul_i32 s57, s42, 48")
    a("s_lshr_b32 s50, s41, 1"); a("s_mul_i32 s50, s50, 18432")
    a("s_mul_i32 s51, s56, %d" % KV_HEAD); a("s_add_u32 s50, s50, s51")
    a("s_and_b32 s52, s41, 1")
    a("s_movk_i32 s61, 304")
    a("s_cmp_eq_u32 s54, 2")
    a("s_cbranch_scc1 L1_vout")
    a("s_cmp_eq_u32 s54, 0")
    a("s_cbranch_scc0 L1_kdest")
    a("s_mul_i32 s58, s56, %d" % Q_HEAD); a("s_add_u32 s58, s58, 0x%x" % OFF_Q)
    a("s_lshl_b32 s60, s41, 9"); a("s_add_u32 s59, s58, s60"); a("s_add_u32 s59, s59, 65536")
    a("s_lshl_b32 s60, s41, 12"); a("s_add_u32 s58, s58, s60")
    a("s_branch L1_destdone")
    a.label("L1_kdest")
    a("s_lshl_b32 s60, s52, 9"); a("s_add_u32 s59, s50, s60"); a("s_add_u32 s59, s59, 8192")
    a("s_lshl_b32 s60, s52, 12"); a("s_add_u32 s58, s50, s60")
    a.label("L1_destdone")
    a("v_and_b32 v5, 31, v2"); a("v_lshrrev_b32 v6, 5, v2")
    a("v_mul_lo_u32 v7, v5, s61"); a("v_lshl_add_u32 v7, v6, 4, v7"); a("v_add_u32 v7, s57, v7")
    for i in range(4): a("ds_read_b128 %s, v7 offset:%d" % (v(24 + 4 * i, 4), i * 32 * 304))
    a("v_lshlrev_b32 v8, 2, v5"); a("v_mul_lo_u32 v8, v8, s61"); a("v_add_u32 v8, s57, v8")
    for j in range(4): a("ds_read_b32 v%d, v8 offset:%d" % (40 + j, 32 + 304 * j))
    a("v_lshlrev_b32 v11, 4, v2")
    a("v_mov_b32 v12, 0x%x" % OOB); a("v_cmp_gt_u32 vcc, 32, v2"); a("s_nop 1"); a("v_cndmask_b32 v12, v12, v11, vcc")
    for i in range(4):
        a("s_waitcnt lgkmcnt(%d)" % (7 - i))
        a("buffer_store_dwordx4 %s, v11, s[36:39], s58 offen offset:%d sc1" % (v(24 + 4 * i, 4), 1024 * i))
    a("s_waitcnt lgkmcnt(0)")
    a("buffer_store_dwordx4 v[40:43], v12, s[36:39], s59 offen sc1")
    a("s_branch L1_fin")
    a.label("L1_vout")
    a("v_lshrrev_b32 v9, 2, v2"); a("v_and_b32 v9, 3, v9")
    a("v_and_b32 v10, 1, v4")
    a("v_lshl_add_u32 v9, v10, 2, v9")
    a("v_mul_lo_u32 v9, v9, s61")
    a("v_and_b32 v13, 3, v2"); a("v_lshl_add_u32 v9, v13, 3, v9")
    a("v_lshrrev_b32 v13, 1, v4"); a("v_lshl_add_u32 v9, v13, 5, v9")
    a("v_add_u32 v9, s57, v9")
    a("s_mul_i32 s60, s52, 8*576"); a("s_add_u32 s63, s50, s60"); a("s_add_u32 s63, s63, 9216")
    a("v_lshl_add_u32 v14, v13, 4, v3")
    a("v_mul_u32_u24 v13, 288, v10"); a("v_lshl_add_u32 v13, v14, 4, v13")
    a("v_mov_b32 v15, 0x%x" % OOB); a("v_cmp_le_u32 vcc, 18, v14"); a("s_nop 1"); a("v_cndmask_b32 v13, v13, v15, vcc")
    for half in range(2):
        for b in range(4):
            beta = 4 * half + b
            a("ds_read_b64_tr_b16 %s, v9 offset:%d" % (v(24 + 16 * half + 4 * b, 2), beta * 16 * 304))
            a("ds_read_b64_tr_b16 %s, v9 offset:%d" % (v(26 + 16 * half + 4 * b, 2), beta * 16 * 304 + 8 * 304))
        for b in range(4):
            beta = 4 * half + b
            a("s_waitcnt lgkmcnt(%d)" % (6 - 2 * b))
            a("buffer_store_dwordx4 %s, v13, s[36:39], s63 offen offset:%d sc1" % (v(24 + 16 * half + 4 * b, 4), beta * 576))
    a.label("L1_fin")
    a("s_waitcnt vmcnt(0) lgkmcnt(0)")
    stamp(a, 4)
    soft_barrier(a, SB3, 8, 1, 5)
    a("s_cmp_lg_u32 s42, 0")
    a("s_cbranch_scc1 L2_entry")
    lds_spin(a, INITOK, 1, 1, 5)
    a("s_lshl_b32 s44, s40, 3"); a("s_lshr_b32 s45, s41, 1"); a("s_add_u32 s44, s44, s45")
    atomic_inc(a, 44)
    a.label("L2_entry")

def attn_regs():
    R = {}
    R["QA1"], R["QA2"], R["QB1"], R["QB2"] = 8, 12, 14, 18
    R["SA"], R["SB"] = 20, 36
    R["PA"], R["PB"] = 52, 60
    R["OA"], R["OB"] = 68, 84
    R["K1"] = [100, 104]; R["K2"] = [108, 110]; R["V"] = [112, 120]
    R["NA"], R["NB"] = 128, 144
    return R

def phase2(a):
    R = attn_regs()
    a("s_and_b32 s40, s2, 31"); a("s_lshr_b32 s41, s2, 5")
    a("v_lshlrev_b32 v3, 4, v2")
    a("s_mul_i32 s43, s40, %d" % KV_HEAD)
    a("s_cmp_lg_u32 s42, 0")
    a("s_cbranch_scc1 L2_waitgo")
    a("v_min_u32 v5, 4, v2")
    a("v_add_u32 v6, 1, v5"); a("v_lshrrev_b32 v6, 1, v6")
    a("v_and_b32 v7, 1, v5"); a("v_sub_u32 v7, 2, v7"); a("v_cmp_eq_u32 vcc, 0, v5"); a("v_mov_b32 v8, 0"); a("s_nop 0")
    a("v_cndmask_b32 v7, v7, v8, vcc")
    a("v_lshlrev_b32 v7, 5, v7"); a("v_add_u32 v7, s40, v7"); a("v_mul_u32_u24 v7, 0x2aab, v7"); a("v_lshrrev_b32 v7, 16, v7")
    a("v_subrev_u32 v6, 1, v6"); a("v_mov_b32 v8, s41"); a("v_cndmask_b32 v6, v6, v8, vcc")
    a("v_lshl_add_u32 v5, v7, 3, v6")
    a("v_lshlrev_b32 v5, 7, v5"); a("v_add_u32 v5, 0x%x, v5" % (OFF_CNT + 128 * C1))
    a("v_mov_b32 v6, 2")
    poll_global(a, 5, 6, vt=7)
    lds_set(a, GO1, 1, 7)
    a("s_branch L2_go")
    a.label("L2_waitgo")
    lds_spin(a, GO1, 1, 1, 7)
    a.label("L2_go")
    stamp(a, 5)
    a("s_cmp_lt_u32 s42, 4"); a("s_cbranch_scc0 L2_young"); a("s_setprio 2"); a.label("L2_young")
    a("s_lshr_b32 s46, s42, 2")
    if "samesimd" in EXP: a("s_and_b32 s45, s42, 3")
    else:
        a("s_mul_i32 s45, s46, 3"); a("s_add_u32 s45, s45, s42"); a("s_and_b32 s45, s45, 3")
    a("s_lshl_b32 s44, s42, 10"); a("s_add_u32 s43, s43, s44")
    a("v_mov_b32 v9, 0x%x" % OOB)
    a("s_cmp_lt_u32 s42, 4"); a("s_cselect_b64 vcc, -1, 0"); a("v_cndmask_b32 v9, v9, v3, vcc")
    for q in range(5):
        a("buffer_load_dwordx4 %s, v%d, s[36:39], s43 offen sc1" % (v(20 + 4 * q, 4), 3 if q < 4 else 9))
        if q < 4: a("s_add_u32 s43, s43, 8192")
    a("s_lshl_b32 s47, s41, 3"); a("s_lshl_b32 s48, s45, 1"); a("s_add_u32 s47, s47, s48")
    a("s_mul_i32 s48, s40, %d" % Q_HEAD); a("s_add_u32 s48, s48, 0x%x" % OFF_Q)
    a("s_lshl_b32 s49, s47, 10"); a("s_add_u32 s49, s49, s48")
    a("s_lshl_b32 s50, s47, 7"); a("s_add_u32 s50, s50, s48"); a("s_add_u32 s50, s50, 65536")
    a("v_and_b32 v4, 31, v2"); a("v_lshrrev_b32 v5, 5, v2"); a("v_lshlrev_b32 v6, 2, v4")
    a("v_mov_b32 v7, 0x%x" % OOB)
    a("v_cmp_eq_u32 vcc, 0, v5")
    a("buffer_load_dwordx4 %s, v3, s[36:39], s49 offen sc1" % v(R["QA1"], 4))
    a("buffer_load_dwordx4 %s, v3, s[36:39], s49 offen offset:1024 sc1" % v(R["QB1"], 4))
    a("v_cndmask_b32 v7, v7, v6, vcc")
    a("buffer_load_dword v%d, v7, s[36:39], s50 offen sc1" % R["QA2"])
    a("buffer_load_dword v%d, v7, s[36:39], s50 offen offset:128 sc1" % R["QB2"])
    a("v_mov_b32 v%d, 0" % (R["QA2"] + 1)); a("v_mov_b32 v%d, 0" % (R["QB2"] + 1))
    a("v_mov_b32 v%d, 0" % (R["K2"][0] + 1)); a("v_mov_b32 v%d, 0" % (R["K2"][1] + 1))
    a("v_mov_b32 v1, 0x3f803f80"); a("v_cmp_eq_u32 vcc, 18, v4"); a("v_mov_b32 v7, 0"); a("s_nop 0")
    a("v_cndmask_b32 v1, v7, v1, vcc")
    for b in range(2):
        for r in range(8): a("v_mov_b32 v%d, v1" % (R["V"][b] + r))
    for r in range(16):
        a("v_mov_b32 v%d, 0" % (R["NA"] + r)); a("v_mov_b32 v%d, 0" % (R["NB"] + r))
    LK1, LK2, LV = 160, 161, 162
    AK1, AK2, AV = 163, 164, 165
    CA, CO, NX = 166, 167, 7
    a("v_lshlrev_b32 v%d, 4, v2" % LK1)
    a("v_add_u32 v%d, 8192, v6" % LK2)
    a("v_mul_u32_u24 v%d, 288, v5" % LV); a("v_lshl_add_u32 v%d, v4, 4, v%d" % (LV, LV)); a("v_add_u32 v%d, 9216, v%d" % (LV, LV))
    a("s_mov_b32 s52, 0x%x" % VMASK); a("s_mov_b32 s53, 0x%x" % VMASK)
    a("s_mov_b32 s60, 0"); a("s_mov_b32 s61, 2")
    a("s_lshl_b32 s62, s45, 2"); a("s_add_u32 s62, s62, %d" % CNT)
    a("v_mov_b32 v%d, s62" % CA); a("v_mov_b32 v%d, 1" % CO)
    a("v_add_u32 v3, s44, v3")
    for q in range(5):
        a("s_waitcnt vmcnt(%d)" % (4 + 4 - q))
        if q == 4:
            a("s_cmp_ge_u32 s42, 4"); a("s_cbranch_scc1 L2_no5")
        a("ds_write_b128 v3, %s offset:%d" % (v(20 + 4 * q, 4), 8192 * q))
    a.label("L2_no5")
    a("s_waitcnt vmcnt(0) lgkmcnt(0)")
    lds_arrive(a, FA, 1, 3)
    lds_spin(a, FA, 8, 1, 3, sleep=False)
    stamp(a, 6)
    rstamp(a, 14)

    def mS1(S, kb, Q1, N): return "v_mfma_f32_32x32x16_bf16 %s, %s, %s, %s" % (v(S, 16), v(R["K1"][kb], 4), v(Q1, 4), v(N, 16))
    def mS2(S, kb, Q2): return "v_mfma_f32_32x32x8_bf16 %s, %s, %s, %s" % (v(S, 16), v(R["K2"][kb], 2), v(Q2, 2), v(S, 16))
    def mP(O, vb, h, P): return "v_mfma_f32_32x32x16_bf16 %s, %s, %s, %s" % (v(O, 16), v(R["V"][vb] + 4 * h, 4), v(P + 4 * h, 4), v(O, 16))
    def phase(S, P, Sn, Q1, Q2, Nn, kb, On, Pn, vb, loads):
        ex = ["v_exp_f32 v%d, v%d" % (S + i, S + i) for i in range(16)]
        cv = ["v_cvt_pk_bf16_f32 v%d, v%d, v%d" % (P + i, S + 2 * i, S + 2 * i + 1) for i in range(8)]
        l0, l1 = loads
        return ([mS1(Sn, kb, Q1, Nn)] + l0 + ex[0:4] + [mP(On, vb, 0, Pn)] + ex[4:6] + cv[0:1] + ex[6:8] + cv[1:2] + l1 + ex[8:9] +
                [mS2(Sn, kb, Q2)] + ex[9:10] + cv[2:3] + ex[10:12] + cv[3:4] + [mP(On, vb, 1, Pn)] + ex[12:14] + cv[4:5] + ex[14:16] + cv[5:8])
    a.label("L2_main")
    for r in range(16):
        a("v_mov_b32 v%d, 0" % (R["OA"] + r)); a("v_mov_b32 v%d, 0" % (R["OB"] + r))
    for r in range(8): a("v_mov_b32 v%d, 0" % (R["PB"] + r))
    NT = 4
    def item_bases(q, dk1, dk2, dv):
        a("s_lshr_b32 s56, s%d, 1" % q); a("s_mul_i32 s56, s56, 18432"); a("s_and_b32 s59, s%d, 1" % q)
        a("s_lshl_b32 s%d, s59, 12" % dk1); a("s_add_u32 s%d, s%d, s56" % (dk1, dk1))
        a("s_lshl_b32 s%d, s59, 9" % dk2); a("s_add_u32 s%d, s%d, s56" % (dk2, dk2))
        a("s_mul_i32 s%d, s59, 4608" % dv); a("s_add_u32 s%d, s%d, s56" % (dv, dv))
    a("s_mov_b32 s54, s46")
    item_bases(54, 57, 58, 63)
    a("v_add_u32 v%d, s57, v%d" % (AK1, LK1)); a("v_add_u32 v%d, s58, v%d" % (AK2, LK2)); a("v_add_u32 v%d, s63, v%d" % (AV, LV))
    a("ds_read_b128 %s, v%d" % (v(R["K1"][0], 4), AK1))
    a("ds_read_b32 v%d, v%d" % (R["K2"][0], AK2))
    a("s_waitcnt lgkmcnt(0)")
    a(mS1(R["SA"], 0, R["QA1"], R["NA"]))
    a(mS2(R["SA"], 0, R["QA2"]))
    a("s_nop 7"); a("s_nop 3")
    a.label("L2_stage")
    body = []
    for i in range(NT):
        kb = i & 1; kn = kb ^ 1; vb = i & 1; vp = vb ^ 1
        off = (i + 1) if i < NT - 1 else 0
        lk = ["ds_read_b128 %s, v%d offset:%d" % (v(R["K1"][kn], 4), AK1, off * 1024),
              "ds_read_b32 v%d, v%d offset:%d" % (R["K2"][kn], AK2, off * 128)]
        lv = ["s_mov_b64 exec, s[52:53]",
              "ds_read_b128 %s, v%d offset:%d" % (v(R["V"][vb], 4), AV, (2 * i) * 576),
              "ds_read_b128 %s, v%d offset:%d" % (v(R["V"][vb] + 4, 4), AV, (2 * i + 1) * 576),
              "s_mov_b64 exec, -1"]
        if i == NT - 2:
            lv = lv[:-1] + ["s_mov_b64 exec, 1", "ds_add_rtn_u32 v%d, v%d, v%d" % (NX, CA, CO), "s_mov_b64 exec, -1"]
        body += phase(R["SA"], R["PA"], R["SB"], R["QB1"], R["QB2"], R["NB"], kb, R["OB"], R["PB"], vp, (lv, lk))
        body.append("s_waitcnt lgkmcnt(0)")
        if i == NT - 2: body.append("NEXT")
        body += phase(R["SB"], R["PB"], R["SA"], R["QA1"], R["QA2"], R["NA"], kn, R["OA"], R["PA"], vb, ([], []))
    for x in body:
        if x == "NEXT":
            a("v_readfirstlane_b32 s55, v%d" % NX)
            a("s_cmp_lt_u32 s55, 16")
            a("s_cselect_b32 s64, s55, s54")
            item_bases(64, 57, 58, 63)
            a("s_lshr_b32 s64, s64, 1")
            a("s_cmp_lt_u32 s64, s61"); a("s_cbranch_scc1 L2_landed")
            a("v_mov_b32 v1, %d" % FB)
            a.label("L2_spinL")
            a("ds_read_b32 v3, v1"); a("s_waitcnt lgkmcnt(0)")
            a("v_readfirstlane_b32 s61, v3")
            a("s_cmp_lt_u32 s64, s61"); a("s_cbranch_scc1 L2_landed")
            a("s_sleep 1"); a("s_branch L2_spinL")
            a.label("L2_landed")
            a("v_add_u32 v%d, s57, v%d" % (AK1, LK1)); a("v_add_u32 v%d, s58, v%d" % (AK2, LK2))
        else:
            a(x)
    a("v_add_u32 v%d, s63, v%d" % (AV, LV))
    a("s_mov_b32 s54, s55")
    a("s_cmp_lt_u32 s54, 16")
    a("s_cbranch_scc1 L2_stage")
    a(mP(R["OB"], 1, 0, R["PB"])); a(mP(R["OB"], 1, 1, R["PB"]))
    stamp(a, 7)
    rstamp(a, 15)
    a("s_nop 7"); a("s_nop 3")
    a("s_cmp_lg_u32 s60, 0")
    a("s_cbranch_scc1 L2_combine")
    a("v_mov_b32 v1, 0x21800000"); a("v_mov_b32 v3, 0x5d800000")
    a("v_cmp_le_f32 s[56:57], v1, v%d" % (R["OA"] + 10)); a("v_cmp_ge_f32 s[58:59], v3, v%d" % (R["OA"] + 10))
    a("s_and_b64 s[56:57], s[56:57], s[58:59]")
    a("v_cmp_le_f32 s[58:59], v1, v%d" % (R["OB"] + 10)); a("s_and_b64 s[56:57], s[56:57], s[58:59]")
    a("v_cmp_ge_f32 s[58:59], v3, v%d" % (R["OB"] + 10)); a("s_and_b64 s[56:57], s[56:57], s[58:59]")
    a("s_cmp_eq_u32 s56, -1")
    a("s_cbranch_scc1 L2_ok")
    lds_set(a, FBAD, 1, 3)
    a.label("L2_ok")
    a("s_barrier")
    a("v_mov_b32 v1, %d" % FBAD); a("ds_read_b32 v3, v1"); a("s_waitcnt lgkmcnt(0)")
    a("v_readfirstlane_b32 s56, v3")
    a("s_cmp_eq_u32 s56, 0")
    a("s_cbranch_scc1 L2_exch")
    a("s_mov_b32 s60, 1")
    MA, MB = 166, 167
    a("v_mov_b32 v%d, 0xff800000" % MA); a("v_mov_b32 v%d, 0xff800000" % MB)
    a("s_lshl_b32 s54, s46, 2"); a("s_add_u32 s58, s54, 4")
    a.label("L2_maxstage")
    a("s_mul_i32 s55, s54, 18432")
    a("v_add_u32 v1, s55, v%d" % LK1); a("v_add_u32 v3, s55, v%d" % LK2)
    a("s_mov_b32 s55, 0")
    a.label("L2_maxtile")
    a("ds_read_b128 %s, v1" % v(R["K1"][0], 4)); a("ds_read_b32 v%d, v3" % R["K2"][0])
    a("s_waitcnt lgkmcnt(0)")
    a("v_mfma_f32_32x32x16_bf16 %s, %s, %s, 0" % (v(R["SA"], 16), v(R["K1"][0], 4), v(R["QA1"], 4)))
    a("v_mfma_f32_32x32x16_bf16 %s, %s, %s, 0" % (v(R["SB"], 16), v(R["K1"][0], 4), v(R["QB1"], 4)))
    a(mS2(R["SA"], 0, R["QA2"])); a(mS2(R["SB"], 0, R["QB2"]))
    a("s_nop 7"); a("s_nop 7")
    for r in range(16):
        a("v_max_f32 v%d, v%d, v%d" % (MA, MA, R["SA"] + r)); a("v_max_f32 v%d, v%d, v%d" % (MB, MB, R["SB"] + r))
    a("v_add_u32 v1, 1024, v1"); a("v_add_u32 v3, 128, v3")
    a("s_add_u32 s55, s55, 1"); a("s_cmp_lt_u32 s55, 8"); a("s_cbranch_scc1 L2_maxtile")
    a("s_add_u32 s54, s54, 1"); a("s_cmp_lt_u32 s54, s58"); a("s_cbranch_scc1 L2_maxstage")
    a("v_xor_b32 v1, 32, v2"); a("v_lshlrev_b32 v1, 2, v1")
    a("ds_bpermute_b32 v3, v1, v%d" % MA); a("s_waitcnt lgkmcnt(0)"); a("v_max_f32 v%d, v%d, v3" % (MA, MA))
    a("ds_bpermute_b32 v3, v1, v%d" % MB); a("s_waitcnt lgkmcnt(0)"); a("v_max_f32 v%d, v%d, v3" % (MB, MB))
    a("s_lshl_b32 s55, s2, 2"); a("s_add_u32 s55, s55, s45"); a("s_lshl_b32 s55, s55, 1"); a("s_add_u32 s55, s55, s46"); a("s_lshl_b32 s55, s55, 9"); a("s_add_u32 s55, s55, 0x%x" % OFF_MX)
    a("v_lshlrev_b32 v1, 3, v2")
    a("buffer_store_dwordx2 v[%d:%d], v1, s[36:39], s55 offen sc0 sc1" % (MA, MB))
    a("v_mov_b32 v3, s62"); a("v_mov_b32 v6, 2"); a("ds_write_b32 v3, v6")
    a("s_waitcnt vmcnt(0) lgkmcnt(0)")
    a("s_barrier")
    a("s_xor_b32 s56, s55, 512")
    a("buffer_load_dwordx2 v[6:7], v1, s[36:39], s56 offen sc0 sc1")
    a("s_waitcnt vmcnt(0)")
    a("v_max_f32 v%d, v%d, v6" % (MA, MA)); a("v_max_f32 v%d, v%d, v7" % (MB, MB))
    for r in range(16):
        a("v_sub_f32 v%d, 0, v%d" % (R["NA"] + r, MA)); a("v_sub_f32 v%d, 0, v%d" % (R["NB"] + r, MB))
    a("v_mov_b32 v%d, s62" % CA); a("v_mov_b32 v%d, 1" % CO)
    a("s_branch L2_main")
    a.label("L2_combine")
    a("s_barrier")
    a.label("L2_exch")
    a("s_mul_i32 s55, s45, 6144")
    a("v_lshlrev_b32 v1, 4, v2"); a("v_add_u32 v1, s55, v1")
    a("s_cmp_eq_u32 s46, 0")
    a("s_cbranch_scc1 L2_recv")
    for t, O in enumerate((R["OA"], R["OB"])):
        for c in range(3): a("ds_write_b128 v1, %s offset:%d" % (v(O + 4 * c, 4), (3 * t + c) * 1024))
    a("s_waitcnt lgkmcnt(0)")
    a("s_barrier")
    a("s_cmp_lg_u32 s42, 4"); a("s_cbranch_scc1 L2_noC4")
    a("v_mov_b32 v8, 0x%x" % (OFF_CNT + 128 * C4)); a("v_mov_b32 v9, 256")
    poll_global(a, 8, 9, vt=10, slp=4)
    lds_set(a, GO2A, 1, 10)
    a.label("L2_noC4")
    a("s_barrier")
    a("s_branch L2_ostore")
    a.label("L2_recv")
    a("s_barrier")
    for t in range(2):
        for c in range(3): a("ds_read_b128 %s, v1 offset:%d" % (v(R["SA"] + 12 * t + 4 * c, 4), (3 * t + c) * 1024))
    a("s_waitcnt lgkmcnt(0)")
    for t, O in enumerate((R["OA"], R["OB"])):
        for r in range(12): a("v_add_f32 v%d, v%d, v%d" % (O + r, O + r, R["SA"] + 12 * t + r))
    for t, O in enumerate((R["OA"], R["OB"])):
        a("v_mov_b32 v%d, v%d" % (52 + 2 * t, O + 10)); a("v_mov_b32 v%d, v%d" % (53 + 2 * t, O + 10))
    a("s_nop 1")
    a("v_permlane32_swap_b32 v52, v53"); a("v_permlane32_swap_b32 v54, v55")
    a("s_nop 1")
    a("v_rcp_f32 v52, v52"); a("v_rcp_f32 v54, v54")
    a("s_lshl_b32 s55, s45, 6")
    a("v_add_u32 v3, s55, v4"); a("v_mul_u32_u24 v3, 36, v3"); a("v_lshl_add_u32 v3, v5, 3, v3"); a("v_add_u32 v3, 32768, v3")
    a("v_cmp_eq_u32 vcc, 0, v5")
    for t, O in enumerate((R["OA"], R["OB"])):
        rc = 52 + 2 * t
        for r in range(10): a("v_mul_f32 v%d, v%d, v%d" % (O + r, O + r, rc))
        for c in range(5): a("v_cvt_pk_bf16_f32 v%d, v%d, v%d" % (56 + 5 * t + c, O + 2 * c, O + 2 * c + 1))
    for t in range(2):
        off = t * 32 * 36; b = 56 + 5 * t
        a("ds_write_b32 v3, v%d offset:%d" % (b, off + 0)); a("ds_write_b32 v3, v%d offset:%d" % (b + 1, off + 4))
        a("ds_write_b32 v3, v%d offset:%d" % (b + 2, off + 16)); a("ds_write_b32 v3, v%d offset:%d" % (b + 3, off + 20))
    a("s_and_saveexec_b64 s[56:57], vcc")
    a("ds_write_b32 v3, v60 offset:32"); a("ds_write_b32 v3, v65 offset:%d" % (32 * 36 + 32))
    a("s_mov_b64 exec, s[56:57]")
    a("s_waitcnt lgkmcnt(0)")
    a("s_barrier")
    a.label("L2_ostore")
    a("s_lshl_b32 s55, s42, 10")
    a("v_lshlrev_b32 v1, 4, v2"); a("v_add_u32 v1, s55, v1")
    a("v_add_u32 v3, 32768, v1")
    a("ds_read_b128 v[8:11], v3")
    a("s_mul_i32 s57, s40, %d" % O_HEAD); a("s_mul_i32 s58, s41, 9216"); a("s_add_u32 s57, s57, s58"); a("s_add_u32 s57, s57, 0x%x" % OFF_O)
    a("s_cmp_lg_u32 s42, 0")
    a("s_cbranch_scc1 L2_o1")
    a("ds_read_b128 v[12:15], v3 offset:8192")
    a("s_waitcnt lgkmcnt(0)")
    a("v_add_u32 v6, 8192, v1")
    a("buffer_store_dwordx4 v[12:15], v6, s[36:39], s57 offen sc1")
    a.label("L2_o1")
    a("s_waitcnt lgkmcnt(0)")
    a("buffer_store_dwordx4 v[8:11], v1, s[36:39], s57 offen sc1")
    stamp(a, 8)
    phase3(a)
    a("s_branch L_fin")

    a.label("L2_conv")
    conv(a)

def loader(a):
    a("s_and_b32 s40, s2, 31"); a("s_mul_i32 s43, s40, %d" % KV_HEAD); a("v_lshlrev_b32 v3, 4, v2")
    a("s_setprio 3")
    lds_spin(a, SB3, 8, 1, 4)
    a("v_and_b32 v5, 1, v2"); a("v_add_u32 v5, 1, v5"); a("v_lshlrev_b32 v5, 5, v5"); a("v_add_u32 v5, s40, v5")
    a("v_mul_u32_u24 v5, 0x2aab, v5"); a("v_lshrrev_b32 v5, 16, v5"); a("v_lshlrev_b32 v5, 10, v5")
    a("v_add_u32 v5, 0x%x, v5" % (OFF_CNT + 128 * C1 + 2 * 128)); a("v_mov_b32 v6, 2")
    a("s_add_u32 s43, s43, 2*18432"); a("v_add_u32 v4, 2*18432, v3")
    a("s_mov_b32 s44, 2")
    a.label("L2_ldstage")
    poll_global(a, 5, 6, vt=7)
    for q in range(18):
        a("buffer_load_dwordx4 %s, v3, s[36:39], s43 offen offset:%d sc1" % (v(8 + 4 * q, 4), (q % 4) * 1024))
        if q % 4 == 3 or q == 17: a("s_add_u32 s43, s43, %d" % (4096 if q % 4 == 3 else 2048))
    for q in range(18):
        a("s_waitcnt vmcnt(%d)" % (17 - q))
        a("ds_write_b128 v4, %s offset:%d" % (v(8 + 4 * q, 4), 1024 * q))
    a("v_add_u32 v4, 18432, v4"); a("v_add_u32 v5, 128, v5")
    a("s_add_u32 s44, s44, 1")
    a("s_waitcnt lgkmcnt(0)")
    a("v_mov_b32 v1, %d" % FB); a("v_mov_b32 v7, s44"); a("ds_write_b32 v1, v7")
    a("s_cmp_lt_u32 s44, 8"); a("s_cbranch_scc1 L2_ldstage")
    a("s_waitcnt lgkmcnt(0)")

def conv(a):
    a("s_sub_u32 s43, s42, 8")
    a("s_lshl_b32 s44, s43, 8"); a("s_add_u32 s44, s44, s2")
    a("s_cmp_ge_u32 s44, 576")
    a("s_cbranch_scc1 L_fin")
    a("s_load_dwordx2 s[10:11], s[0:1], 64")
    a("s_setprio 1")
    a("s_mul_hi_u32 s45, s44, 0x%x" % ((1 << 32) // 48 + 1)); a("s_add_u32 s45, s45, %d" % C2); a("s_lshl_b32 s45, s45, 7"); a("s_add_u32 s45, s45, 0x%x" % OFF_CNT)
    a("v_mov_b32 v5, s45"); a("v_mov_b32 v6, 16")
    poll_global(a, 5, 6, vt=7, slp=6)
    stamp(a, 6)
    a("v_lshlrev_b32 v3, 4, v2")
    a("s_lshl_b32 s46, s44, 12"); a("s_add_u32 s46, s46, 0x%x" % OFF_URT)
    a("s_mul_i32 s47, s43, 4608"); a("s_add_u32 s47, s47, %d" % LDS_UR)
    for q in range(4): a("buffer_load_dwordx4 %s, v3, s[36:39], s46 offen offset:%d sc1" % (v(8 + 4 * q, 4), 1024 * q))
    a("s_mul_i32 s48, s44, %d" % (2 * HP_ROW)); a("s_add_u32 s48, s48, 0x%x" % OFF_HP)
    a("v_and_b32 v4, 15, v2"); a("v_lshrrev_b32 v5, 4, v2")
    a("v_and_b32 v6, 7, v4"); a("v_lshlrev_b32 v6, 1, v6")
    a("v_lshrrev_b32 v7, 3, v4")
    a("v_lshl_add_u32 v6, v7, 1, v6"); a("v_lshl_add_u32 v6, v5, 3, v6"); a("v_lshlrev_b32 v6, 1, v6")
    a("v_mov_b32 v24, %d" % HP_ROW); a("v_cmp_eq_u32 vcc, 0, v7"); a("v_mov_b32 v25, 0"); a("s_nop 0")
    a("v_cndmask_b32 v24, v25, v24, vcc"); a("v_add_u32 v6, v6, v24")
    a("v_lshlrev_b32 v7, 5, v4"); a("v_lshlrev_b32 v24, 4, v5"); a("v_sub_u32 v7, v24, v7")
    a("v_add_u32 v7, s47, v7"); a("v_add_u32 v7, 4064, v7")
    AF, AG, BF, Y = 16, 112, 48, 80
    for mu in range(8): a("buffer_load_dwordx4 %s, v6, s[36:39], s48 offen offset:%d" % (v(AG + 4 * mu, 4), 512 * mu))
    a("v_add_u32 v26, s47, v3")
    for q in range(4):
        a("s_waitcnt vmcnt(%d)" % (8 + 3 - q))
        a("ds_write_b128 v26, %s offset:%d" % (v(8 + 4 * q, 4), 1024 * q))
    for r in range(4): a("v_mov_b32 v%d, 0" % (28 + r))
    a("s_mov_b32 exec_hi, 0")
    a("ds_write_b128 v26, v[28:31] offset:4096")
    a("s_mov_b64 exec, -1")
    for r in range(32): a("v_mov_b32 v%d, 0" % (Y + r))
    a("s_waitcnt lgkmcnt(0)")
    a("s_mov_b32 s51, 0")
    a.label("L2c_rho")
    for half, (cur, nxt) in enumerate(((AG, AF), (AF, AG))):
        a("s_add_u32 s52, s51, %d" % half); a("s_lshl_b32 s52, s52, 6")
        a("v_add_u32 v8, s52, v7"); a("v_subrev_u32 v8, %d, v8" % (512 * 7))
        for sg in range(8): a("ds_read_b128 %s, v8 offset:%d" % (v(BF + 4 * sg, 4), 512 * (7 - sg)))
        a("s_add_u32 s53, s52, 64"); a("s_and_b32 s53, s53, 0x1ff"); a("s_add_u32 s53, s53, s48")
        for mu in range(8): a("buffer_load_dwordx4 %s, v6, s[36:39], s53 offen offset:%d" % (v(nxt + 4 * mu, 4), 512 * mu))
        a("s_waitcnt lgkmcnt(0)")
        for mu in range(8):
            a("s_waitcnt vmcnt(%d)" % (8 + 7 - mu))
            for sg in range(8 - mu):
                t = mu + sg
                a("v_mfma_f32_16x16x32_bf16 %s, %s, %s, %s" % (v(Y + 4 * t, 4), v(cur + 4 * mu, 4), v(BF + 4 * sg, 4), v(Y + 4 * t, 4)))
    a("s_add_u32 s51, s51, 2"); a("s_cmp_lt_u32 s51, 8"); a("s_cbranch_scc1 L2c_rho")
    a("s_waitcnt vmcnt(0)")
    a("s_lshl_b32 s52, s44, 1"); a("s_and_b32 s53, s52, 0xfffffffc")
    a("s_add_u32 s54, s10, s53"); a("s_addc_u32 s55, s11, 0")
    a("s_load_dword s56, s[54:55], 0")
    a("s_waitcnt lgkmcnt(0)")
    a("s_and_b32 s57, s52, 2"); a("s_lshl_b32 s57, s57, 3"); a("s_lshr_b32 s56, s56, s57"); a("s_lshl_b32 s56, s56, 16")
    a("v_and_b32 v8, 1, v5"); a("v_lshrrev_b32 v9, 1, v5")
    a("v_lshlrev_b32 v10, 4, v4"); a("v_lshl_add_u32 v10, v8, 3, v10"); a("v_lshl_add_u32 v10, v9, 2, v10")
    a("v_lshlrev_b32 v11, 1, v10")
    a("v_sub_u32 v12, 0, v11"); a("v_add_u32 v12, s47, v12"); a("v_add_u32 v12, %d, v12" % (2 * 2044 - 512 * 7))
    for t in range(8): a("ds_read_b64 %s, v12 offset:%d" % (v(AF + 2 * t, 2), 512 * (7 - t)))
    a("s_lshl_b32 s52, s44, 12"); a("s_add_u32 s52, s52, 0x%x" % OFF_YT)
    a("s_nop 7")
    for t in range(8):
        y = Y + 4 * t
        a("v_permlane32_swap_b32 v%d, v%d" % (y, y + 2)); a("v_permlane32_swap_b32 v%d, v%d" % (y + 1, y + 3))
    a("s_waitcnt lgkmcnt(0)")
    for t in range(8):
        y = Y + 4 * t; u0, u1 = AF + 2 * t, AF + 2 * t + 1
        a("v_and_b32 v40, 0xffff0000, v%d" % u1); a("v_fma_f32 v%d, v40, s56, v%d" % (y, y))
        a("v_lshlrev_b32 v41, 16, v%d" % u1);     a("v_fma_f32 v%d, v41, s56, v%d" % (y + 2, y + 2))
        a("v_and_b32 v42, 0xffff0000, v%d" % u0); a("v_fma_f32 v%d, v42, s56, v%d" % (y + 1, y + 1))
        a("v_lshlrev_b32 v43, 16, v%d" % u0);     a("v_fma_f32 v%d, v43, s56, v%d" % (y + 3, y + 3))
        a("v_cvt_pk_bf16_f32 v%d, v%d, v%d" % (112 + 2 * t, y, y + 2))
        a("v_cvt_pk_bf16_f32 v%d, v%d, v%d" % (113 + 2 * t, y + 1, y + 3))
        a("buffer_store_dwordx2 %s, v11, s[36:39], s52 offen offset:%d sc1" % (v(112 + 2 * t, 2), 512 * t))
    a("s_waitcnt vmcnt(0)")
    a("s_mul_hi_u32 s45, s44, 0x%x" % ((1 << 32) // 144 + 1)); a("s_add_u32 s45, s45, %d" % C3)
    atomic_inc(a, 45)
    stamp(a, 7)
    a("s_branch L_fin")

def phase3(a):
    OB, YB, UB, W8 = 49152, 90112, 102400, 112640
    WA, ST = 20, 92
    a("s_load_dwordx2 s[4:5], s[0:1], 0"); a("s_load_dwordx2 s[6:7], s[0:1], 80")
    a("s_and_b32 s43, s40, 7"); a("s_lshl_b32 s43, s43, 5"); a("s_lshl_b32 s44, s41, 8"); a("s_add_u32 s43, s43, s44")
    a("s_lshr_b32 s44, s40, 3")
    a("v_and_b32 v3, 15, v2"); a("v_lshrrev_b32 v4, 4, v2"); a("v_lshlrev_b32 v5, 4, v2")
    a("s_waitcnt vmcnt(0)")
    a("s_barrier")
    stamp(a, 13)
    a("s_cmp_lg_u32 s42, 0")
    a("s_cbranch_scc1 L3_noarr")
    a("s_add_u32 s52, s41, %d" % C5)
    atomic_inc(a, 52, 14, 15)
    a.label("L3_noarr")
    lds_spin(a, GO2A, 1, 1, 6)
    srd(a, 16, 4, 2048 * 1152); srd(a, 20, 6, 2048 * 1152)
    a("s_mul_i32 s45, s44, 9"); a("s_mul_i32 s47, s44, 288")
    XB = 131072
    def prefetch():
        a("s_mul_i32 s45, s44, 9"); a("s_add_u32 s46, s45, s42"); a("s_mul_i32 s46, s46, 18*1024"); a("s_add_u32 s46, s46, 0x%x" % OFF_WOF)
        for ks in range(18):
            a("buffer_load_dwordx4 %s, v5, s[36:39], s46 offen offset:%d sc1" % (v(WA + 4 * ks, 4), (ks % 4) * 1024))
            if ks % 4 == 3: a("s_add_u32 s46, s46, 4096")
        a("v_add_u32 v6, s43, v3")
        a("v_lshlrev_b32 v14, 2, v6"); a("s_mov_b32 s51, 0x%x" % OFF_G)
        a("buffer_load_dword v16, v14, s[36:39], s51 offen sc1"); a("buffer_load_dword v17, v14, s[36:39], s51 offen offset:64 sc1")
    NPF = 20
    a("s_cmp_eq_u32 s42, 0")
    a("s_cbranch_scc1 L3_prepO")
    a("s_cmp_lt_u32 s42, 4")
    a("s_cbranch_scc0 L3_w47")
    a("s_movk_i32 s52, 3641"); a("s_sub_u32 s53, s42, 1"); a("s_mul_i32 s53, s53, 192")
    for i in range(3):
        a("v_add_u32 v8, s53, v2"); a("v_add_u32 v8, %d, v8" % (64 * i))
        a("v_mul_u32_u24 v9, s52, v8"); a("v_lshrrev_b32 v9, 16, v9")
        a("v_mul_u32_u24 v10, 18, v9"); a("v_sub_u32 v10, v8, v10")
        a("v_mul_u32_u24 v11, 304, v9"); a("v_lshl_add_u32 v%d, v10, 4, v11" % (148 + i)); a("v_add_u32 v%d, %d, v%d" % (148 + i, XB, 148 + i))
        a("v_add_u32 v9, s43, v9"); a("v_mul_u32_u24 v9, 1152, v9"); a("v_lshl_add_u32 v9, v10, 4, v9")
        a("buffer_load_dwordx4 %s, v9, s[16:19], s47 offen" % v(ST + 4 * i, 4))
    prefetch()
    for i in range(3):
        a("s_waitcnt vmcnt(%d)" % (NPF + 2 - i))
        a("ds_write_b128 v%d, %s" % (148 + i, v(ST + 4 * i, 4)))
    a("s_branch L3_prepdone")
    a.label("L3_w47")
    a("s_cmp_lt_u32 s42, 6")
    a("s_cbranch_scc1 L3_prepY")
    a("s_add_u32 s46, s45, 8"); a("s_mul_i32 s46, s46, 18*1024"); a("s_add_u32 s46, s46, 0x%x" % OFF_WOF)
    a("s_sub_u32 s52, s42, 6"); a("s_mul_i32 s52, s52, 9216"); a("s_add_u32 s46, s46, s52")
    for i in range(9):
        a("buffer_load_dwordx4 %s, v5, s[36:39], s46 offen offset:%d sc1" % (v(ST + 4 * i, 4), (i % 4) * 1024))
        if i % 4 == 3: a("s_add_u32 s46, s46, 4096")
    a("s_add_u32 s52, s52, %d" % W8); a("v_add_u32 v12, s52, v5")
    prefetch()
    for i in range(9):
        a("s_waitcnt vmcnt(%d)" % (NPF + 8 - i))
        a("ds_write_b128 v12, %s offset:%d" % (v(ST + 4 * i, 4), 1024 * i))
    a("s_branch L3_prepdone")
    a.label("L3_prepY")
    a("s_add_u32 s55, s44, %d" % C3); a("s_lshl_b32 s55, s55, 7"); a("s_add_u32 s55, s55, 0x%x" % OFF_CNT)
    a("v_mov_b32 v8, s55"); a("v_mov_b32 v9, 144")
    poll_global(a, 8, 9, vt=10, slp=4)
    a("v_lshrrev_b32 v14, 2, v2"); a("v_and_b32 v15, 3, v2")
    a("s_sub_u32 s52, s42, 4"); a("s_mul_i32 s52, s52, 80")
    a("s_mul_i32 s53, s44, 144"); a("s_add_u32 s53, s53, s52")
    a("v_add_u32 v14, s53, v14"); a("v_lshlrev_b32 v14, 12, v14"); a("v_lshl_add_u32 v14, v15, 4, v14")
    a("s_lshl_b32 s53, s43, 1"); a("s_add_u32 s53, s53, 0x%x" % OFF_YT)
    for i in range(5):
        a("buffer_load_dwordx4 %s, v14, s[36:39], s53 offen sc1" % v(ST + 4 * i, 4))
        a("s_add_u32 s53, s53, 16*4096")
    a("s_lshl_b32 s52, s52, 6"); a("s_add_u32 s52, s52, %d" % YB)
    a("v_add_u32 v12, s52, v5")
    prefetch()
    for i in range(5):
        a("s_waitcnt vmcnt(%d)" % (NPF + 4 - i))
        a("ds_write_b128 v12, %s offset:%d" % (v(ST + 4 * i, 4), 1024 * i))
    a("s_branch L3_prepdone")
    a.label("L3_prepO")
    a.label("L3_prepdone")
    OA_ = 156
    a("s_movk_i32 s52, 7282"); a("s_mul_i32 s54, s42, 144"); a("s_add_u32 s54, s54, %d" % OB)
    for part in range(2):
        for j in range(4):
            r = OA_ + 4 * part + j
            a("v_lshlrev_b32 v14, 2, v2"); a("v_add_u32 v14, %d, v14" % (256 * part + j))
            a("v_mul_u32_u24 v15, s52, v14"); a("v_lshrrev_b32 v15, 16, v15")
            a("v_mul_u32_u24 v18, 9, v15"); a("v_sub_u32 v14, v14, v18")
            a("v_mul_u32_u24 v15, 1168, v15"); a("v_lshl_add_u32 v15, v14, 2, v15")
            a("v_add_u32 v%d, s54, v15" % r)
    assert all((q * 7282 >> 16) == q // 9 for q in range(288))
    a("s_lshl_b32 s52, s42, 2"); a("s_mul_i32 s53, s52, %d" % O_HEAD); a("s_mul_i32 s54, s43, 36"); a("s_add_u32 s53, s53, s54"); a("s_add_u32 s53, s53, 0x%x" % OFF_O)
    a("v_add_u32 v14, 1024, v5"); a("v_mov_b32 v15, 0x%x" % OOB); a("v_cmp_gt_u32 vcc, 8, v2"); a("s_nop 1"); a("v_cndmask_b32 v19, v15, v14, vcc")
    a("s_cmp_lg_u32 s42, 0")
    a("s_cbranch_scc1 L3_waitgo")
    a("s_add_u32 s52, s41, %d" % C5); a("s_lshl_b32 s52, s52, 7"); a("s_add_u32 s52, s52, 0x%x" % OFF_CNT)
    a("v_mov_b32 v14, s52"); a("v_mov_b32 v15, 32")
    poll_global(a, 14, 15, vt=18, slp=4)
    lds_set(a, GO2B, 1, 18)
    a("s_branch L3_go")
    a.label("L3_waitgo")
    lds_spin(a, GO2B, 1, 1, 18)
    a.label("L3_go")
    stamp(a, 9)
    for hh in range(4):
        a("buffer_load_dwordx4 %s, v5, s[36:39], s53 offen sc1" % v(ST + 8 * hh, 4))
        a("buffer_load_dwordx4 %s, v19, s[36:39], s53 offen sc1" % v(ST + 8 * hh + 4, 4))
        a("s_add_u32 s53, s53, %d" % O_HEAD)
    def scatter(extra):
        for hh in range(4):
            a("s_waitcnt vmcnt(%d)" % (extra + 7 - 2 * hh))
            for j in range(4): a("ds_write_b32 v%d, v%d offset:%d" % (OA_ + j, ST + 8 * hh + j, 36 * hh))
            a("s_waitcnt vmcnt(%d)" % (extra + 6 - 2 * hh))
            a("s_mov_b64 exec, 0xff")
            for j in range(4): a("ds_write_b32 v%d, v%d offset:%d" % (OA_ + 4 + j, ST + 8 * hh + 4 + j, 36 * hh))
            a("s_mov_b64 exec, -1")
    a("s_cmp_lg_u32 s42, 0")
    a("s_cbranch_scc1 L3_w17")
    prefetch()
    scatter(NPF)
    a("s_branch L3_noO")
    a.label("L3_w17")
    scatter(0)
    a.label("L3_noO")
    a("s_waitcnt vmcnt(0) lgkmcnt(0)")
    a("s_barrier")
    stamp(a, 10)
    a("v_mul_u32_u24 v6, 1168, v3"); a("v_lshl_add_u32 v6, v4, 4, v6"); a("v_add_u32 v6, %d, v6" % OB)
    a("s_and_b32 s52, s42, 1"); a("s_mul_i32 s52, s52, 16*1168"); a("v_add_u32 v7, s52, v6")
    a("v_add_u32 v14, %d, v5" % W8)
    AC = [92, 96, 100]; BFR = [104, 116]; A2 = [128, 132]
    TM, YR = 136, 148
    a("v_lshrrev_b32 v154, 2, v2"); a("v_and_b32 v154, 3, v154"); a("v_lshl_add_u32 v154, v4, 2, v154"); a("v_lshlrev_b32 v154, 6, v154")
    a("v_and_b32 v155, 3, v2"); a("v_lshl_add_u32 v154, v155, 3, v154"); a("v_add_u32 v154, %d, v154" % YB)
    a("s_lshl_b32 s56, s42, 10"); a("v_add_u32 v155, s56, v154")
    a("ds_read_b64_tr_b16 %s, v155" % v(YR, 2)); a("ds_read_b64_tr_b16 %s, v155 offset:32" % v(YR + 2, 2))
    a("s_and_b32 s59, s42, 1"); a("s_lshl_b32 s56, s59, 5"); a("s_add_u32 s56, s56, 8*1024"); a("v_add_u32 v155, s56, v154")
    a("ds_read_b64_tr_b16 %s, v155" % v(YR + 4, 2))
    a("v_mul_u32_u24 v8, 304, v3"); a("v_lshl_add_u32 v8, v4, 3, v8"); a("v_add_u32 v15, %d, v8" % XB)
    a("s_lshl_b32 s56, s42, 5"); a("v_add_u32 v19, s56, v15")
    a("ds_read_b64 v[8:9], v19"); a("ds_read_b64 v[10:11], v19 offset:%d" % (16 * 304))
    a("s_mul_i32 s56, s59, 16*304"); a("s_add_u32 s56, s56, 256"); a("v_add_u32 v19, s56, v15")
    a("ds_read_b64 v[12:13], v19")
    a("s_cmp_eq_u32 s59, 0"); a("s_cselect_b64 vcc, -1, 0"); a("v_cndmask_b32 v18, v17, v16, vcc")
    GR = [16, 17, 18]; XR = [8, 10, 12]
    terms = []
    for t in range(3):
        terms.append("v_sub_f32 v%d, 1.0, v%d" % (164 + t, GR[t]))
        for r in range(4):
            x_, y_ = XR[t] + r // 2, YR + 2 * t + r // 2
            if r % 2 == 0:
                terms += ["v_lshlrev_b32 v%d, 16, v%d" % (TM + 4 * t + r, x_), "v_lshlrev_b32 v167, 16, v%d" % y_]
            else:
                terms += ["v_and_b32 v%d, 0xffff0000, v%d" % (TM + 4 * t + r, x_), "v_and_b32 v167, 0xffff0000, v%d" % y_]
            terms += ["v_mul_f32 v%d, v%d, v167" % (TM + 4 * t + r, TM + 4 * t + r), "v_mul_f32 v%d, v%d, v%d" % (TM + 4 * t + r, TM + 4 * t + r, 164 + t)]
    def kloop(three):
        NBUF = 3 if not three else 2
        BB = [104, 112, 120] if not three else BFR
        tl = list(terms)
        def rd(ks):
            b = BB[ks % NBUF]
            out = ["ds_read_b128 %s, v6 offset:%d" % (v(b, 4), 64 * ks), "ds_read_b128 %s, v6 offset:%d" % (v(b + 4, 4), 64 * ks + 16 * 1168)]
            if three:
                out += ["ds_read_b128 %s, v7 offset:%d" % (v(b + 8, 4), 64 * ks), "ds_read_b128 %s, v14 offset:%d" % (v(A2[ks & 1], 4), 1024 * ks)]
            return out
        n = 4 if three else 2
        D = NBUF - 1
        for k in range(D):
            for x in rd(k): a(x)
        for ks in range(18):
            if ks + D < 18:
                for x in rd(ks + D): a(x)
            rem = min(D, 17 - ks)
            a("s_waitcnt lgkmcnt(%d)" % (n * rem))
            b = BB[ks % NBUF]
            for t in range(2):
                c = "0" if ks == 0 else v(AC[t], 4)
                a("v_mfma_f32_16x16x32_bf16 %s, %s, %s, %s" % (v(AC[t], 4), v(WA + 4 * ks, 4), v(b + 4 * t, 4), c))
            if three:
                c = "0" if ks == 0 else v(AC[2], 4)
                a("v_mfma_f32_16x16x32_bf16 %s, %s, %s, %s" % (v(AC[2], 4), v(A2[ks & 1], 4), v(b + 8, 4), c))
            for x in tl[:4]: a(x)
            tl = tl[4:]
        for x in tl: a(x)
    def epi(t, moff, noff):
        for r in range(4): a("v_fma_f32 v%d, v%d, v%d, v%d" % (AC[t] + r, AC[t] + r, GR[t], TM + 4 * t + r))
        a("v_cvt_pk_bf16_f32 v%d, v%d, v%d" % (104 + 2 * t, AC[t], AC[t] + 1)); a("v_cvt_pk_bf16_f32 v%d, v%d, v%d" % (105 + 2 * t, AC[t] + 2, AC[t] + 3))
    a("s_cmp_ge_u32 s42, 6")
    a("s_cbranch_scc1 L3_k3")
    kloop(False)
    a("s_branch L3_kdone")
    a.label("L3_k3")
    kloop(True)
    a.label("L3_kdone")
    stamp(a, 11)
    a("v_mul_u32_u24 v154, 304, v3"); a("v_lshl_add_u32 v154, v4, 3, v154"); a("v_add_u32 v154, %d, v154" % UB)
    a("s_lshl_b32 s56, s42, 5"); a("v_add_u32 v155, s56, v154")
    a("s_nop 2")
    epi(0, 0, 0); epi(1, 0, 0)
    a("ds_write_b64 v155, v[104:105]"); a("ds_write_b64 v155, v[106:107] offset:%d" % (16 * 304))
    a("s_cmp_lt_u32 s42, 6")
    a("s_cbranch_scc1 L3_edone")
    epi(2, 0, 0)
    a("s_mul_i32 s56, s59, 16*304"); a("s_add_u32 s56, s56, 256"); a("v_add_u32 v155, s56, v154")
    a("ds_write_b64 v155, v[108:109]")
    a.label("L3_edone")
    a("s_waitcnt lgkmcnt(0)")
    a("s_barrier")
    a("s_movk_i32 s56, 3641")
    for rep in range(2):
        if rep == 1:
            a("s_cmp_lg_u32 s42, 0"); a("s_cbranch_scc1 L_fin")
        a("s_lshl_b32 s57, s42, 6"); a("v_add_u32 v6, s57, v2")
        if rep == 1: a("v_add_u32 v6, 512, v6")
        a("v_mul_u32_u24 v7, s56, v6"); a("v_lshrrev_b32 v7, 16, v7")
        a("v_mul_u32_u24 v8, 18, v7"); a("v_sub_u32 v8, v6, v8")
        a("v_mul_u32_u24 v9, 304, v7"); a("v_lshl_add_u32 v9, v8, 4, v9"); a("v_add_u32 v9, %d, v9" % UB)
        a("ds_read_b128 v[24:27], v9")
        a("v_add_u32 v7, s43, v7"); a("v_mul_u32_u24 v7, 1152, v7"); a("v_lshl_add_u32 v7, v8, 4, v7")
        a("s_waitcnt lgkmcnt(0)")
        a("buffer_store_dwordx4 v[24:27], v7, s[20:23], s47 offen")
    assert all((x * 3641 >> 16) == x // 18 for x in range(576))

def descriptor(name, nvgpr, nsgpr=100):
    return """.p2align 6
.amdhsa_kernel %s
  .amdhsa_next_free_vgpr %d
  .amdhsa_next_free_sgpr %d
  .amdhsa_accum_offset %d
  .amdhsa_group_segment_fixed_size 0
  .amdhsa_kernarg_size 104
  .amdhsa_user_sgpr_count 2
  .amdhsa_user_sgpr_kernarg_segment_ptr 1
  .amdhsa_system_sgpr_workgroup_id_x 1
  .amdhsa_float_denorm_mode_32 3
.end_amdhsa_kernel
""" % (name, nvgpr, nsgpr, nvgpr)

def main():
    global DIAG
    global RT
    RT = "--rt" in sys.argv
    DIAG = "--diag" in sys.argv or RT
    for x in sys.argv:
        if x.startswith("--exp="): EXP.update(x[6:].split(","))
    args = [x for x in sys.argv[1:] if not x.startswith("--")]
    a = Asm()
    hdr = open("gated_mix__mha_block__ssm_conv_h3__prompt.s.ref").read().split("\n")
    head = [l for l in hdr if l.startswith(";") and "@launch" not in l and "Override" not in l and "grid=ceil" not in l]
    a.raw("\n".join(head))
    a.raw("; @launch grid=(256,1,1) block=(768,1,1) lds=%d" % LDS_TOTAL)
    a.raw('.amdgcn_target "amdgcn-amd-amdhsa--gfx950"')
    a.raw(".text")
    a.raw(".globl %s" % NAME); a.raw(".p2align 8"); a.raw(".type %s,@function" % NAME); a.label(NAME)
    a("s_cmp_ge_u32 s2, 256")
    a("s_cbranch_scc1 L_end")
    phase1(a)
    phase2(a)
    a.label("L_fin")
    stamp(a, 12)
    stamp_store(a)
    a.label("L_end")
    a("s_endpgm")
    a.raw('.section .rodata,"a"')
    a.raw(descriptor(NAME, 168))
    if "plainld" in EXP:
        out_l = []
        for k, l in enumerate(a.lines):
            if "buffer_load" in l and " sc1" in l and "sc0" not in l:
                nxt = a.lines[k + 1] if k + 1 < len(a.lines) else ""
                is_poll = ("buffer_load_dword v" in l and ", 0 offen sc1" in l and "offset" not in l and "s_waitcnt vmcnt(0)" in nxt)
                if not is_poll: l = l.replace(" sc1", "")
            out_l.append(l)
        a.lines = out_l
    if "nosc1" in EXP:
        a.lines = [l.replace(" sc1", "") if ("buffer_store" in l and "sc0" not in l) else l for l in a.lines]
    if "nosideload" in EXP:
        out_l = []; inside = False
        for l in a.lines:
            if "L1_side:" in l: inside = True
            if "L1_out:" in l: inside = False
            if inside and ("buffer_load_dword" in l or "buffer_load_ushort" in l) and "s[20:23]" not in l: continue
            out_l.append(l)
        a.lines = out_l
    if "nosidestore" in EXP:
        out_l = []; inside = False
        for l in a.lines:
            if "L1_side:" in l: inside = True
            if "L1_out:" in l: inside = False
            if inside and "buffer_store" in l and "s[20:23]" not in l and "v1, s[36:39], 0 offen sc1" not in l: continue
            out_l.append(l)
        a.lines = out_l
    out = args[0] if args else "fused3.s"
    open(out, "w").write(a.text())
    probs = check_seq(a.lines, "all")
    for p in probs: print("HAZARD", p)
    print("wrote", out, len(a.lines), "lines")

if __name__ == "__main__":
    main()
```

```python
import sys, struct
from asmlib import *

NAME = "gated_mix__mha_block__ssm_conv_h3__prompt_kernel"
KV_HEAD = 147456
Q_HEAD  = 73728
OFF_KV  = 0
OFF_Q   = OFF_KV + 32 * KV_HEAD
URT_ROW = 4096
OFF_URT = OFF_Q + 32 * Q_HEAD
HP_ROW  = 5120
OFF_HP  = OFF_URT + 576 * URT_ROW
OFF_YT  = OFF_HP + 576 * 2 * HP_ROW
O_HEAD  = 2048 * 36
OFF_O   = OFF_YT + 576 * 4096
OFF_G   = OFF_O + 32 * O_HEAD
OFF_WOF = OFF_G + 2048 * 4
OFF_MX  = OFF_WOF + 648 * 1024
OFF_CNT = OFF_MX + 256 * 8 * 512
WS_USED = OFF_CNT + 256 * 128
WS_SRD_SIZE = 0x2000000
assert WS_USED <= WS_SRD_SIZE and OFF_CNT % 128 == 0
C1, C2, C3, C4, C5 = 0, 128, 140, 144, 145
QSCALE = 1.4426950408889634 / (18.0 ** 0.5)
def f32bits(x): return struct.unpack("<I", struct.pack("<f", x))[0]
OOB = 0x80000000
LDS_KV = 147456
LDS_UR = LDS_KV
LDS_FLAG = LDS_UR + 3 * 4608
FA, FB, FBAD, GO1, CNT, GO2A, GO2B = LDS_FLAG, LDS_FLAG + 4, LDS_FLAG + 8, LDS_FLAG + 12, LDS_FLAG + 16, LDS_FLAG + 32, LDS_FLAG + 36
SB1, SB2, SB3, SB4, SB5 = LDS_FLAG + 40, LDS_FLAG + 44, LDS_FLAG + 48, LDS_FLAG + 52, LDS_FLAG + 56
SBG = LDS_FLAG + 60
INITOK = LDS_FLAG + 64
LDS_TOTAL = LDS_FLAG + 128
VMASK = 0x0003FFFF
SPIN_MAX = 200000
TB_ = 32768
NPRE = 8

DIAG = False
USE_NEG = False
EXP = set()
NST = 16
RT = False
def stamp(a, i):
    if not DIAG: return
    a("%s s[76:77]" % ("s_memrealtime" if RT else "s_memtime")); a("s_waitcnt lgkmcnt(0)"); a("s_mov_b32 s%d, s76" % (80 + i))
def rstamp(a, i):
    if not DIAG or RT: return
    a("s_memrealtime s[76:77]"); a("s_waitcnt lgkmcnt(0)"); a("s_mov_b32 s%d, s76" % (80 + i))
def stamp_init(a):
    if not DIAG: return
    for i in range(NST): a("s_mov_b32 s%d, 0" % (80 + i))
def stamp_store(a):
    if not DIAG: return
    a("s_waitcnt vmcnt(0)")
    a("s_mov_b32 s38, 0x4000000")
    a("v_lshrrev_b32 v1, 6, v0"); a("s_lshl_b32 s78, s2, 4"); a("v_add_u32 v1, s78, v1")
    a("v_lshlrev_b32 v1, 6, v1"); a("v_add_u32 v1, 0x3000000, v1")
    for i in range(NST):
        a("v_mov_b32 v2, s%d" % (80 + i))
        a("buffer_store_dword v2, v1, s[36:39], 0 offen offset:%d" % (4 * i))

def srd(a, dst, ptr, size):
    a("s_mov_b32 s%d, s%d" % (dst, ptr))
    a("s_and_b32 s%d, s%d, 0xffff" % (dst + 1, ptr + 1))
    a("s_mov_b32 s%d, 0x%x" % (dst + 2, size))
    a("s_mov_b32 s%d, 0x20000" % (dst + 3))

def lds_arrive(a, addr, va=1, vb=3):
    a("v_mov_b32 v%d, %d" % (va, addr)); a("v_mov_b32 v%d, 1" % vb)
    a("s_mov_b64 exec, 1"); a("ds_add_u32 v%d, v%d" % (va, vb)); a("s_mov_b64 exec, -1")
def lds_set(a, addr, va=1, vb=3):
    a("v_mov_b32 v%d, %d" % (va, addr)); a("v_mov_b32 v%d, 1" % vb)
    a("ds_write_b32 v%d, v%d" % (va, vb)); a("s_waitcnt lgkmcnt(0)")
def lds_spin(a, addr, target, va=1, vb=3, st=56, sleep=True):
    l = a.uid("Lspin")
    a("v_mov_b32 v%d, %d" % (va, addr))
    a.label(l)
    a("ds_read_b32 v%d, v%d" % (vb, va)); a("s_waitcnt lgkmcnt(0)")
    a("v_readfirstlane_b32 s%d, v%d" % (st, vb))
    a("s_cmp_ge_u32 s%d, %d" % (st, target))
    a("s_cbranch_scc1 %s_x" % l)
    a("s_sleep 1")
    a("s_branch %s" % l)
    a.label(l + "_x")
def soft_barrier(a, addr, n, va=1, vb=3):
    lds_arrive(a, addr, va, vb)
    lds_spin(a, addr, n, va, vb, sleep=False)
def poll_global(a, voff, vtgt, vt=3, sb=57, slp=None):
    if slp is None: slp = 2 if 'slp2' in EXP else (4 if 'slp4' in EXP else (16 if 'slp16' in EXP else 3))
    l = a.uid("Lpoll")
    a("s_mov_b32 s%d, %d" % (sb, SPIN_MAX))
    a.label(l)
    a("buffer_load_dword v%d, v%d, s[36:39], 0 offen sc1" % (vt, voff))
    a("s_waitcnt vmcnt(0)")
    a("v_cmp_lt_u32 vcc, v%d, v%d" % (vt, vtgt))
    a("s_nop 3")
    a("s_cmp_eq_u64 vcc, 0")
    a("s_cbranch_scc1 %s_x" % l)
    a("s_sleep %d" % slp)
    a("s_sub_u32 s%d, s%d, 1" % (sb, sb))
    a("s_cmp_lg_u32 s%d, 0" % sb)
    a("s_cbranch_scc1 %s" % l)
    a.label(l + "_x")
def atomic_inc(a, sidx, va=1, vb=3):
    a("s_lshl_b32 s57, s%d, 7" % sidx); a("s_add_u32 s57, s57, 0x%x" % OFF_CNT)
    a("v_mov_b32 v%d, s57" % va); a("v_mov_b32 v%d, 1" % vb)
    a("s_mov_b64 exec, 1")
    a("buffer_atomic_add v%d, v%d, s[36:39], 0 offen sc1" % (vb, va))
    a("s_mov_b64 exec, -1")

def hloads(a):
    l = a.uid("Lh")
    a("s_lshl_b32 s61, s43, 8"); a("s_add_u32 s61, s61, s2")
    a("s_cmp_eq_u32 s43, 2"); a("s_cbranch_scc0 %s" % (lbl := a.uid("Lch")))
    a("s_add_u32 s61, s2, 320"); a("s_cmp_lt_u32 s2, 192"); a("s_cselect_b32 s61, 0xffff, s61")
    a.label(lbl)
    a("s_cmp_ge_u32 s61, 576"); a("s_cselect_b32 s58, 1, 0"); a("s_cmp_eq_u32 s42, 11"); a("s_cselect_b32 s58, 1, s58")
    a("s_load_dwordx2 s[62:63], s[0:1], 56")
    a("v_lshlrev_b32 v118, 4, v2"); a("v_subrev_u32 v119, 32, v118")
    a("s_waitcnt lgkmcnt(0)")
    a("s_min_u32 s61, s61, 575")
    a("s_lshl_b32 s56, s61, 12")
    a("s_add_u32 s64, s62, s56"); a("s_addc_u32 s65, s63, 0"); a("s_and_b32 s65, s65, 0xffff")
    a("s_mov_b32 s66, 4096"); a("s_mov_b32 s67, 0x20000")
    a("s_cmp_eq_u32 s58, 1"); a("s_cbranch_scc1 %s" % l)
    for it in range(5):
        if it == 0:
            a("buffer_load_dwordx4 v[120:123], v119, s[64:67], 0 offen")
            a("v_add_u32 v117, 16, v119")
            a("buffer_load_dword v124, v117, s[64:67], 0 offen")
        else:
            a("v_add_u32 v117, %d, v119" % (1024 * it))
            a("buffer_load_dwordx4 %s, v117, s[64:67], 0 offen" % v(120 + 8 * it, 4))
            a("buffer_load_dword v%d, v117, s[64:67], 0 offen offset:16" % (124 + 8 * it))
    a.label(l)
def hstores(a):
    l = a.uid("Lhs")
    a("s_cmp_eq_u32 s58, 1"); a("s_cbranch_scc1 %s" % l)
    a("s_mul_i32 s62, s61, %d" % (2 * HP_ROW)); a("s_add_u32 s62, s62, 0x%x" % OFF_HP); a("s_add_u32 s63, s62, %d" % HP_ROW)
    for it in range(5):
        b = 120 + 8 * it; t = 160 + 4 * (it & 1)
        for k in range(4): a("v_alignbit_b32 v%d, v%d, v%d, 16" % (t + k, b + k + 1, b + k))
        if it < 4:
            a("buffer_store_dwordx4 %s, v118, s[36:39], s62 offen offset:%d" % (v(b, 4), 1024 * it))
            a("buffer_store_dwordx4 %s, v118, s[36:39], s63 offen offset:%d" % (v(t, 4), 1024 * it))
        else:
            a("s_add_u32 s56, s62, 4096"); a("buffer_store_dwordx4 %s, v118, s[36:39], s56 offen" % v(b, 4))
            a("s_add_u32 s56, s63, 4096"); a("buffer_store_dwordx4 %s, v118, s[36:39], s56 offen" % v(t, 4))
        a("s_nop 1")
    a.label(l)

def phase1(a):
    a("s_load_dwordx4 s[4:7], s[0:1], 0")
    a("s_load_dwordx4 s[8:11], s[0:1], 32")
    a("s_load_dwordx2 s[12:13], s[0:1], 48")
    a("s_load_dwordx2 s[14:15], s[0:1], 96")
    a("s_and_b32 s40, s2, 1"); a("s_lshl_b32 s40, s40, 3")
    a("s_lshr_b32 s43, s2, 3"); a("s_and_b32 s43, s43, 7")
    a("s_add_u32 s40, s40, s43")
    a("s_lshr_b32 s41, s2, 1"); a("s_and_b32 s41, s41, 3"); a("s_lshl_b32 s41, s41, 2")
    a("s_lshr_b32 s43, s2, 6"); a("s_add_u32 s41, s41, s43")
    a("v_lshrrev_b32 v1, 6, v0")
    a("v_and_b32 v2, 63, v0")
    a("v_readfirstlane_b32 s42, v1")
    a("v_and_b32 v3, 15, v2")
    a("v_lshrrev_b32 v4, 4, v2")
    a("s_waitcnt lgkmcnt(0)")
    srd(a, 36, 14, WS_SRD_SIZE)
    stamp_init(a); stamp(a, 0)
    a("s_cmp_ge_u32 s42, 8")
    a("s_cbranch_scc1 L1_side")
    srd(a, 16, 4, 2048 * 1152)
    srd(a, 20, 6, 576 * 3456)
    a("v_lshrrev_b32 v5, 3, v2"); a("v_and_b32 v6, 7, v2")
    a("s_lshl_b32 s43, s41, 7"); a("s_lshl_b32 s44, s42, 4"); a("s_add_u32 s43, s43, s44")
    a("v_add_u32 v5, s43, v5")
    a("s_movk_i32 s44, 1152")
    a("v_mul_lo_u32 v5, v5, s44")
    a("v_xor_b32 v7, v6, v4")
    a("v_lshl_add_u32 v8, v7, 4, v5")
    a("v_xor_b32 v7, 4, v7")
    a("v_lshl_add_u32 v9, v7, 4, v5")
    a("v_add_u32 v9, 9216, v9")
    a("s_and_b32 s44, s42, 1"); a("s_lshl_b32 s44, s44, 3")
    a("v_lshlrev_b32 v5, 1, v4"); a("v_add_u32 v5, s44, v5"); a("v_xor_b32 v5, v5, v3")
    a("v_min_u32 v5, 13, v5")
    a("s_movk_i32 s44, 3456")
    a("v_mul_lo_u32 v6, v4, s44")
    a("v_lshl_add_u32 v10, v5, 4, v6")
    a("s_mul_i32 s45, s40, 216"); a("s_mul_i32 s46, s42, 8*3456"); a("s_add_u32 s46, s46, s45")
    a("s_mov_b32 s47, 0")
    a("s_lshl_b32 s48, s42, 11")
    def dma_groups():
        g0 = ["s_mov_b32 m0, s48", "s_add_u32 s49, s48, 1024", "buffer_load_dwordx4 v8, s[16:19], s47 offen lds"]
        g1 = ["s_mov_b32 m0, s49", "s_add_u32 s49, s48, 16384", "buffer_load_dwordx4 v9, s[16:19], s47 offen lds"]
        g2 = ["s_mov_b32 m0, s49", "s_add_u32 s49, s48, 17408", "buffer_load_dwordx4 v10, s[20:23], s46 offen lds"]
        g3 = ["s_mov_b32 m0, s49", "s_add_u32 s50, s46, 4*3456", "buffer_load_dwordx4 v10, s[20:23], s50 offen lds",
              "s_add_u32 s46, s46, 64*3456", "s_add_u32 s47, s47, 128", "s_add_u32 s48, s48, 32768", "s_and_b32 s48, s48, 0x1ffff"]
        return [g0, g1, g2, g3]
    def dma_stage():
        for g in dma_groups():
            for x in g: a(x)
    dma_stage()
    a("s_and_b32 s51, s42, 3"); a("s_lshr_b32 s52, s42, 2")
    a("s_lshl_b32 s44, s51, 5")
    a("v_add_u32 v5, s44, v3"); a("v_lshlrev_b32 v5, 7, v5")
    a("v_lshrrev_b32 v6, 1, v3"); a("v_xor_b32 v6, v6, v4")
    a("v_lshl_add_u32 v11, v6, 4, v5")
    a("v_xor_b32 v12, 64, v11")
    a("v_add_u32 v13, 0x10000, v11"); a("v_add_u32 v14, 0x10000, v12")
    AW = 16
    a("v_lshrrev_b32 v6, 2, v2"); a("v_and_b32 v6, 3, v6"); a("v_and_b32 v7, 3, v2")
    a("v_lshl_add_u32 v1, v4, 3, v6"); a("v_lshlrev_b32 v1, 8, v1")
    a("v_and_b32 v5, 1, v7"); a("v_lshl_add_u32 v1, v5, 3, v1")
    a("v_lshrrev_b32 v7, 1, v7"); a("v_lshl_add_u32 v1, v7, 4, v1")
    a("v_add_u32 v1, 16384, v1")
    a("v_and_b32 v5, 1, v4"); a("v_lshlrev_b32 v5, 3, v5"); a("v_lshl_add_u32 v5, v6, 1, v5")
    a("s_lshl_b32 s44, s52, 3")
    for i in range(4):
        a("s_add_u32 s45, s44, %d" % (2 * i))
        a("v_xor_b32 v6, s45, v5")
        a("v_lshl_add_u32 v%d, v6, 4, v1" % (AW + i))
        a("v_add_u32 v%d, 0x10000, v%d" % (AW + 4 + i, AW + i))
    dma_stage()
    ACC, AF, BF = 32, 64, 96
    TA_, TS_ = 112, 120
    a("s_lshl_b32 s44, s51, 5")
    a("v_add_u32 v5, s44, v3")
    a("s_movk_i32 s44, 304")
    a("v_mul_lo_u32 v5, v5, s44")
    a("s_mul_i32 s44, s40, 6"); a("s_sub_i32 s44, 32, s44"); a("s_max_i32 s44, s44, 0"); a("s_min_i32 s44, s44, 6")
    a("s_mul_i32 s54, s44, 18")
    a("s_lshl_b32 s55, s52, 6")
    a("v_lshl_add_u32 v6, v4, 2, s55")
    a("s_movk_i32 s56, 3641")
    a("v_mov_b32 v24, 1.0")
    a("v_mov_b32 v25, 0x%x" % f32bits(QSCALE))
    for i in range(4):
        for p in range(2):
            k = 2 * i + p
            a("v_add_u32 v26, %d, v6" % (16 * i + 2 * p))
            a("v_min_u32 v26, 110, v26")
            a("v_mul_u32_u24 v27, s56, v26")
            a("v_cmp_gt_u32 vcc, s54, v26")
            a("v_lshrrev_b32 v27, 16, v27")
            a("v_mul_u32_u24 v27, 12, v27")
            a("v_cndmask_b32 v%d, v24, v25, vcc" % (TS_ + k))
            a("v_lshl_add_u32 v27, v26, 1, v27")
            a("v_add_u32 v%d, v27, v5" % (TA_ + k))
            a("v_add_u32 v%d, %d, v%d" % (TA_ + k, TB_, TA_ + k))
    dma_stage()
    def reads(u):
        st, kk = divmod(u, 2)
        slot = st & 3; hi = slot >> 1; off = (slot & 1) * 32768; buf = u & 1
        out = []
        bb = (13 if hi else 11) + kk
        out.append("ds_read_b128 %s, v%d offset:%d" % (v(BF + 8 * buf, 4), bb, off))
        out.append("ds_read_b128 %s, v%d offset:%d" % (v(BF + 8 * buf + 4, 4), bb, off + 2048))
        for i in range(4):
            ar = AW + 4 * hi + i
            out.append("ds_read_b64_tr_b16 %s, v%d offset:%d" % (v(AF + 16 * buf + 4 * i, 2), ar, off + kk * 8192))
            out.append("ds_read_b64_tr_b16 %s, v%d offset:%d" % (v(AF + 16 * buf + 4 * i + 2, 2), ar, off + kk * 8192 + 1024))
        if "p1halfA" in EXP: out = [x if (k < 2 or k % 2 == 0) else "ds_read_b32 v31, v28" for k, x in enumerate(out)]
        if "p1noA" in EXP: out = [x if k < 2 else "ds_read_b32 v31, v28" for k, x in enumerate(out)]
        return out
    def mf(u, j):
        buf = u & 1; i, n = j >> 1, j & 1
        c = "0" if u == 0 else v(ACC + 8 * i + 4 * n, 4)
        if "p1nomfma" in EXP and j >= 2: return
        a("v_mfma_f32_16x16x32_bf16 %s, %s, %s, %s" % (v(ACC + 8 * i + 4 * n, 4), v(AF + 16 * buf + 4 * i, 4), v(BF + 8 * buf + 4 * n, 4), c))
    stamp(a, 1)
    a("s_barrier")
    GA, GO_, GP = 28, 29, 30
    a("v_mov_b32 v%d, %d" % (GA, SBG)); a("v_mov_b32 v%d, 1" % GO_)
    def arrive():
        a("s_mov_b64 exec, 1"); a("ds_add_u32 v%d, v%d" % (GA, GO_)); a("s_mov_b64 exec, -1")
    def check(target, tag):
        a("v_readfirstlane_b32 s53, v%d" % GP)
        a("s_cmp_ge_u32 s53, %d" % target); a("s_cbranch_scc1 L1_ok%s" % tag)
        a.label("L1_sp%s" % tag)
        a("ds_read_b32 v%d, v%d" % (GP, GA)); a("s_waitcnt lgkmcnt(0)")
        a("v_readfirstlane_b32 s53, v%d" % GP)
        a("s_cmp_ge_u32 s53, %d" % target); a("s_cbranch_scc1 L1_ok%s" % tag)
        a("s_sleep 1"); a("s_branch L1_sp%s" % tag)
        a.label("L1_ok%s" % tag)
    a("s_waitcnt vmcnt(8)")
    arrive()
    a("ds_read_b32 v%d, v%d" % (GP, GA)); a("s_waitcnt lgkmcnt(0)")
    check(8, "0")
    if RT: stamp(a, 14)
    for x in reads(0): a(x)
    NU = 18
    for u in range(NU):
        st, kk = divmod(u, 2)
        last = (u == NU - 1)
        dg = []
        extra = 0
        if kk == 0 and st < 8:
            a("s_waitcnt vmcnt(%d)" % (4 if st <= 6 else 0))
            arrive(); extra = 1
        if kk == 1:
            a("s_waitcnt lgkmcnt(0)")
            if not last:
                check(8 * (st + 2), str(st + 1))
                if RT and st == 3: stamp(a, 15)
                if st + 3 <= 8: dg = dma_groups()
        nr = [] if last else reads(u + 1)
        if kk == 0: waits = {0: 6 + extra, 2: 8 + extra, 4: 10 + extra, 6: 10 + 2 * extra}
        else: waits = {}
        for j in range(8):
            if j in waits: a("s_waitcnt lgkmcnt(%d)" % waits[j])
            mf(u, j)
            if j < 5 and nr:
                a(nr[2 * j]); a(nr[2 * j + 1])
                if j == 4 and kk == 0 and st < 8: a("ds_read_b32 v%d, v%d" % (GP, GA))
            if dg and j >= 4:
                for x in dg[j - 4]: a(x)
    stamp(a, 2)
    lds_arrive(a, SB1, 1, 5)
    for i in range(4):
        for p in range(2):
            k = 2 * i + p
            for n in range(2):
                r0 = ACC + 8 * i + 4 * n + 2 * p
                a("v_mul_f32 v%d, v%d, v%d" % (r0, TS_ + k, r0))
                a("v_mul_f32 v%d, v%d, v%d" % (r0 + 1, TS_ + k, r0 + 1))
    for i in range(4):
        for p in range(2):
            for n in range(2):
                r0 = ACC + 8 * i + 4 * n + 2 * p
                a("v_cvt_pk_bf16_f32 v%d, v%d, v%d" % (r0, r0, r0 + 1))
    for i in range(4):
        for p in range(2):
            k = 2 * i + p
            for n in range(2):
                r0 = ACC + 8 * i + 4 * n + 2 * p
                a("ds_write_b32 v%d, v%d offset:%d" % (TA_ + k, r0, n * 16 * 304))
    a("s_waitcnt lgkmcnt(0)")
    a("s_branch L1_out")

    a.label("L1_side")
    a("s_sub_u32 s43, s42, 8")
    a("s_cmp_lg_u32 s42, 8")
    a("s_cbranch_scc1 L1_noflag")
    a("v_lshlrev_b32 v1, 2, v2"); a("v_add_u32 v1, %d, v1" % LDS_FLAG)
    a("v_mov_b32 v5, 0"); a("v_mov_b32 v6, 2")
    a("v_cmp_le_u32 vcc, 4, v2"); a("s_nop 1"); a("v_cndmask_b32 v5, v5, v6, vcc")
    a("v_cmp_le_u32 vcc, 8, v2"); a("v_mov_b32 v6, 0"); a("s_nop 0"); a("v_cndmask_b32 v5, v5, v6, vcc")
    a("s_mov_b32 exec_hi, 0")
    a("ds_write_b32 v1, v5")
    a("s_mov_b64 exec, -1")
    a.label("L1_noflag")
    a("s_waitcnt lgkmcnt(0)")
    a("s_barrier")
    a("s_cmp_eq_u32 s42, 11")
    a("s_cbranch_scc0 L1_kv")
    a("s_load_dwordx2 s[16:17], s[0:1], 88")
    a("s_waitcnt lgkmcnt(0)")
    srd(a, 20, 16, 256)
    a("s_cmp_lg_u32 s2, 0")
    a("s_cbranch_scc1 L1_noinit")
    a("v_lshlrev_b32 v1, 7, v2"); a("v_add_u32 v1, 0x%x, v1" % OFF_CNT); a("v_mov_b32 v5, 0")
    for q in range(4):
        a("buffer_store_dword v5, v1, s[36:39], 0 offen sc1")
        a("v_add_u32 v1, 8192, v1")
    a("s_waitcnt vmcnt(0)")
    a("v_mov_b32 v1, 0"); a("v_mov_b32 v5, 1")
    a("s_mov_b64 exec, 1")
    a("buffer_store_dword v5, v1, s[20:23], 0 offen sc1")
    a("s_mov_b64 exec, -1")
    a.label("L1_noinit")
    a("v_mov_b32 v28, 0"); a("s_mov_b32 s57, %d" % SPIN_MAX)
    a.label("L1_ip")
    a("buffer_load_dword v7, v28, s[20:23], 0 offen sc1"); a("s_waitcnt vmcnt(0)"); a("v_readfirstlane_b32 s56, v7")
    a("s_cmp_eq_u32 s56, 1"); a("s_cbranch_scc1 L1_ipx")
    a("s_sleep 8"); a("s_sub_u32 s57, s57, 1"); a("s_cmp_lg_u32 s57, 0"); a("s_cbranch_scc1 L1_ip")
    a.label("L1_ipx")
    lds_set(a, INITOK, 1, 7)
    loader(a)
    stamp(a, 6)
    a("s_setprio 1")
    a("s_load_dwordx2 s[4:5], s[0:1], 0"); a("s_load_dwordx2 s[16:17], s[0:1], 16"); a("s_load_dwordx2 s[18:19], s[0:1], 72")
    a("s_waitcnt lgkmcnt(0)")
    srd(a, 24, 4, 2048 * 1152); srd(a, 28, 18, 1152); srd(a, 32, 16, 576 * 1152)
    a("v_and_b32 v3, 15, v2"); a("v_lshrrev_b32 v4, 4, v2")
    a("v_lshrrev_b32 v5, 3, v2"); a("v_and_b32 v6, 7, v2")
    a("s_lshl_b32 s45, s2, 3"); a("v_add_u32 v9, s45, v5")
    a("v_mul_u32_u24 v7, 1152, v9"); a("v_lshlrev_b32 v8, 4, v6"); a("v_add_u32 v7, v7, v8")
    a("v_mul_u32_u24 v120, 8*1152, v4"); a("v_lshl_add_u32 v120, v3, 1, v120"); a("v_add_u32 v121, 4608, v120"); a("v_lshlrev_b32 v122, 4, v2")
    for c in range(9):
        a("buffer_load_dwordx4 %s, v7, s[24:27], 0 offen offset:%d" % (v(12 + 4 * c, 4), 128 * c))
        a("buffer_load_dwordx4 %s, v8, s[28:31], 0 offen offset:%d" % (v(48 + 4 * c, 4), 128 * c))
    for r in range(3):
        a("s_add_u32 s45, s2, %d" % (256 * r))
        a("s_mul_hi_u32 s46, s45, 0x%x" % ((1 << 32) // 18 + 1))
        a("s_mul_i32 s47, s46, 18"); a("s_sub_u32 s47, s45, s47")
        a("s_mul_i32 s47, s47, 32*1152"); a("s_lshl_b32 s46, s46, 5"); a("s_add_u32 s47, s47, s46")
        a("s_cmp_lt_u32 s45, 648"); a("s_cselect_b32 s47, s47, 0")
        for j in range(8):
            a("buffer_load_ushort v%d, v%d, s[32:35], s47 offen offset:%d" % (92 + 8 * r + j, 120 if j < 4 else 121, 1152 * (j % 4)))
    a("s_waitcnt vmcnt(0)")
    a("v_mov_b32 v84, 0")
    for r in range(36): a("v_dot2_f32_bf16 v84, v%d, v%d, v84" % (12 + r, 48 + r))
    a("s_nop 3")
    for d in (1, 2, 4):
        a("s_nop 1")
        if d == 1: a("v_mov_b32_dpp v85, v84 quad_perm:[1,0,3,2] row_mask:0xf bank_mask:0xf")
        elif d == 2: a("v_mov_b32_dpp v85, v84 quad_perm:[2,3,0,1] row_mask:0xf bank_mask:0xf")
        else: a("v_mov_b32_dpp v85, v84 row_half_mirror row_mask:0xf bank_mask:0xf")
        a("s_nop 1")
        a("v_add_f32 v84, v84, v85")
    a("v_mul_f32 v84, 0xbfb8aa3b, v84"); a("v_exp_f32 v84, v84"); a("s_nop 0")
    a("v_add_f32 v84, 1.0, v84"); a("v_rcp_f32 v84, v84")
    a("v_lshlrev_b32 v85, 2, v9"); a("v_mov_b32 v86, 0x%x" % OOB)
    a("v_cmp_eq_u32 vcc, 0, v6"); a("s_mov_b32 s46, 0x%x" % OFF_G); a("s_nop 0")
    a("v_cndmask_b32 v85, v86, v85, vcc")
    a("buffer_store_dword v84, v85, s[36:39], s46 offen sc1")
    for r in range(3):
        for j in range(4): a("v_lshl_or_b32 v%d, v%d, 16, v%d" % (124 + 4 * r + j, 93 + 8 * r + 2 * j, 92 + 8 * r + 2 * j))
        a("s_add_u32 s45, s2, %d" % (256 * r))
        a("s_lshl_b32 s46, s45, 10"); a("s_add_u32 s46, s46, 0x%x" % OFF_WOF)
        a("s_cmp_lt_u32 s45, 648"); a("s_cbranch_scc0 L1_nw%d" % r)
        a("buffer_store_dwordx4 %s, v122, s[36:39], s46 offen sc1" % v(124 + 4 * r, 4))
        a.label("L1_nw%d" % r)
    a("s_waitcnt vmcnt(0)")
    a("s_mov_b32 s45, %d" % C4)
    atomic_inc(a, 45, 1, 4)
    a("s_branch L_fin")
    a.label("L1_kv")
    if "atFA" in EXP: lds_spin(a, FA, 8, 1, 7)
    elif "early" in EXP: lds_spin(a, INITOK, 1, 1, 7)
    elif "atG1" in EXP: lds_spin(a, SB3, 8, 1, 7)
    elif "atGO1" in EXP: lds_spin(a, GO1, 1, 1, 7)
    elif "atB6" in EXP: lds_spin(a, SBG, 8 * 7, 1, 7)
    else: lds_spin(a, FA, 8, 1, 7)
    a("s_setprio 3")
    srd(a, 24, 8, 2048 * 1152); srd(a, 28, 10, 2048 * 1152); srd(a, 32, 12, 576 * 8)
    a("s_mul_hi_u32 s44, s2, 0x%x" % ((1 << 32) // 12 + 1))
    a("s_mul_i32 s45, s44, 12"); a("s_sub_u32 s45, s2, s45")
    a("s_lshl_b32 s46, s43, 6"); a("v_add_u32 v8, s46, v2")
    a("s_movk_i32 s46, 5462"); a("v_mul_u32_u24 v9, s46, v8"); a("v_lshrrev_b32 v9, 16, v9")
    a("v_mul_u32_u24 v10, 12, v9"); a("v_sub_u32 v10, v8, v10")
    a("s_lshl_b32 s46, s44, 7"); a("v_lshl_add_u32 v11, v9, 3, s46")
    a("s_mul_i32 s46, s45, 96"); a("v_lshl_add_u32 v12, v10, 3, s46")
    a("s_movk_i32 s46, 1152")
    a("v_mul_lo_u32 v13, v11, s46"); a("v_add_u32 v13, v13, v12")
    a("v_subrev_u32 v14, 3456, v13")
    a("v_mov_b32 v15, 0x%x" % OOB)
    a("v_cmp_eq_u32 vcc, 0, v11")
    a("s_mul_i32 s46, s45, 384"); a("v_lshl_add_u32 v16, v10, 5, s46")
    a("v_cndmask_b32 v14, v14, v15, vcc")
    a("s_mul_i32 s46, s45, 48"); a("v_lshl_add_u32 v17, v10, 2, s46"); a("v_lshlrev_b32 v17, 12, v17")
    a("v_sub_u32 v18, 15, v9"); a("v_lshl_add_u32 v17, v18, 4, v17")
    a("s_lshl_b32 s47, s44, 8"); a("s_sub_u32 s47, 3840, s47"); a("s_add_u32 s47, s47, 0x%x" % OFF_URT)
    a("s_cmp_lt_u32 s2, 192"); a("s_cbranch_scc1 L1_kvact")
    a("v_mov_b32 v13, v15"); a("v_mov_b32 v14, v15"); a("v_mov_b32 v16, v15"); a("v_mov_b32 v17, v15"); a("s_mov_b32 s47, 0")
    a.label("L1_kvact")
    KR, VR, WR = 32, 54, 70
    a("s_movk_i32 s48, 4608")
    for i in range(3): a("buffer_load_dwordx2 %s, v14, s[24:27], 0 offen offset:%d" % (v(KR + 2 * i, 2), 1152 * i))
    for i in range(8): a("buffer_load_dwordx2 %s, v13, s[24:27], %s offen offset:%d" % (v(KR + 6 + 2 * i, 2), "0" if i < 4 else "s48", 1152 * (i % 4)))
    a("buffer_load_dwordx4 %s, v16, s[32:35], 0 offen" % v(WR, 4)); a("buffer_load_dwordx4 %s, v16, s[32:35], 0 offen offset:16" % v(WR + 4, 4))
    for i in range(8): a("buffer_load_dwordx2 %s, v13, s[28:31], %s offen offset:%d" % (v(VR + 2 * i, 2), "0" if i < 4 else "s48", 1152 * (i % 4)))
    stamp(a, 1)
    hloads(a)
    a("s_waitcnt vmcnt(0)")
    stamp(a, 2)
    if "stFA" in EXP: lds_spin(a, FA, 8, 1, 7)
    WF, KF, PK = 80, 96, 140
    hstores(a)
    for c in range(4):
        for p in range(2):
            src = WR + 2 * c + p
            a("v_lshlrev_b32 v%d, 16, v%d" % (WF + 4 * c + 2 * p, src))
            a("v_and_b32 v%d, 0xffff0000, v%d" % (WF + 4 * c + 2 * p + 1, src))
    for c in range(4):
        for i in range(11):
            src = KR + 2 * i + (c >> 1)
            if c & 1: a("v_and_b32 v%d, 0xffff0000, v%d" % (KF + i, src))
            else: a("v_lshlrev_b32 v%d, 16, v%d" % (KF + i, src))
        R_ = 108
        for i in range(8): a("v_mul_f32 v%d, v%d, v%d" % (R_ + i, KF + i, WF + 4 * c + 3))
        for t in (2, 1, 0):
            for i in range(8): a("v_fmac_f32 v%d, v%d, v%d" % (R_ + i, KF + i + 3 - t, WF + 4 * c + t))
        for i in range(8):
            src = VR + 2 * i + (c >> 1)
            if c & 1: a("v_and_b32 v%d, 0xffff0000, v%d" % (KF + i, src))
            else: a("v_lshlrev_b32 v%d, 16, v%d" % (KF + i, src))
        for i in range(8): a("v_mul_f32 v%d, v%d, v%d" % (R_ + i, R_ + i, KF + i))
        for e in range(4): a("v_cvt_pk_bf16_f32 v%d, v%d, v%d" % (PK + 4 * c + e, R_ + 7 - 2 * e, R_ + 6 - 2 * e))
        a("s_add_u32 s46, s47, %d" % (4096 * c))
        a("buffer_store_dwordx4 %s, v17, s[36:39], s46 offen sc1" % v(PK + 4 * c, 4))
    stamp(a, 3)
    a("s_waitcnt vmcnt(0)")
    stamp(a, 4)
    lds_arrive(a, SB4, 1, 4)
    a("s_cmp_lg_u32 s42, 8"); a("s_cbranch_scc1 L2_conv")
    a("s_cmp_lt_u32 s2, 192"); a("s_cbranch_scc0 L2_conv")
    lds_spin(a, SB4, 3, 1, 4)
    a("s_add_u32 s45, s45, %d" % C2)
    atomic_inc(a, 45, 1, 4)
    a("s_branch L2_conv")
    a.label("L1_out")
    soft_barrier(a, SB2, 8, 1, 5)
    stamp(a, 3)
    a("s_cmp_ge_u32 s42, 6")
    a("s_cbranch_scc1 L1_fin")
    a("s_mul_i32 s53, s40, 6"); a("s_add_u32 s53, s53, s42")
    a("s_lshr_b32 s54, s53, 5"); a("s_and_b32 s56, s53, 31")
    a("s_mul_i32 s57, s42, 48"); a("s_add_u32 s57, s57, %d" % TB_)
    a("s_lshr_b32 s50, s41, 1"); a("s_mul_i32 s50, s50, 18432")
    a("s_mul_i32 s51, s56, %d" % KV_HEAD); a("s_add_u32 s50, s50, s51")
    a("s_and_b32 s52, s41, 1")
    a("s_movk_i32 s61, 304")
    a("s_cmp_eq_u32 s54, 2")
    a("s_cbranch_scc1 L1_vout")
    a("s_cmp_eq_u32 s54, 0")
    a("s_cbranch_scc0 L1_kdest")
    a("s_mul_i32 s58, s56, %d" % Q_HEAD); a("s_add_u32 s58, s58, 0x%x" % OFF_Q)
    a("s_lshl_b32 s60, s41, 9"); a("s_add_u32 s59, s58, s60"); a("s_add_u32 s59, s59, 65536")
    a("s_lshl_b32 s60, s41, 12"); a("s_add_u32 s58, s58, s60")
    a("s_branch L1_destdone")
    a.label("L1_kdest")
    a("s_lshl_b32 s60, s52, 9"); a("s_add_u32 s59, s50, s60"); a("s_add_u32 s59, s59, 8192")
    a("s_lshl_b32 s60, s52, 12"); a("s_add_u32 s58, s50, s60")
    a.label("L1_destdone")
    a("v_and_b32 v5, 31, v2"); a("v_lshrrev_b32 v6, 5, v2")
    a("v_mul_lo_u32 v7, v5, s61"); a("v_lshl_add_u32 v7, v6, 4, v7"); a("v_add_u32 v7, s57, v7")
    for i in range(4): a("ds_read_b128 %s, v7 offset:%d" % (v(24 + 4 * i, 4), i * 32 * 304))
    a("v_lshlrev_b32 v8, 2, v5"); a("v_mul_lo_u32 v8, v8, s61"); a("v_add_u32 v8, s57, v8")
    for j in range(4): a("ds_read_b32 v%d, v8 offset:%d" % (40 + j, 32 + 304 * j))
    a("v_lshlrev_b32 v11, 4, v2")
    a("v_mov_b32 v12, 0x%x" % OOB); a("v_cmp_gt_u32 vcc, 32, v2"); a("s_nop 1"); a("v_cndmask_b32 v12, v12, v11, vcc")
    for i in range(4):
        a("s_waitcnt lgkmcnt(%d)" % (7 - i))
        a("buffer_store_dwordx4 %s, v11, s[36:39], s58 offen offset:%d sc1" % (v(24 + 4 * i, 4), 1024 * i))
    a("s_waitcnt lgkmcnt(0)")
    a("buffer_store_dwordx4 v[40:43], v12, s[36:39], s59 offen sc1")
    a("s_branch L1_fin")
    a.label("L1_vout")
    a("v_lshrrev_b32 v9, 2, v2"); a("v_and_b32 v9, 3, v9")
    a("v_and_b32 v10, 1, v4")
    a("v_lshl_add_u32 v9, v10, 2, v9")
    a("v_mul_lo_u32 v9, v9, s61")
    a("v_and_b32 v13, 3, v2"); a("v_lshl_add_u32 v9, v13, 3, v9")
    a("v_lshrrev_b32 v13, 1, v4"); a("v_lshl_add_u32 v9, v13, 5, v9")
    a("v_add_u32 v9, s57, v9")
    a("s_mul_i32 s60, s52, 8*576"); a("s_add_u32 s63, s50, s60"); a("s_add_u32 s63, s63, 9216")
    a("v_lshl_add_u32 v14, v13, 4, v3")
    a("v_mul_u32_u24 v13, 288, v10"); a("v_lshl_add_u32 v13, v14, 4, v13")
    a("v_mov_b32 v15, 0x%x" % OOB); a("v_cmp_le_u32 vcc, 18, v14"); a("s_nop 1"); a("v_cndmask_b32 v13, v13, v15, vcc")
    for half in range(2):
        for b in range(4):
            beta = 4 * half + b
            a("ds_read_b64_tr_b16 %s, v9 offset:%d" % (v(24 + 16 * half + 4 * b, 2), beta * 16 * 304))
            a("ds_read_b64_tr_b16 %s, v9 offset:%d" % (v(26 + 16 * half + 4 * b, 2), beta * 16 * 304 + 8 * 304))
        for b in range(4):
            beta = 4 * half + b
            a("s_waitcnt lgkmcnt(%d)" % (6 - 2 * b))
            a("buffer_store_dwordx4 %s, v13, s[36:39], s63 offen offset:%d sc1" % (v(24 + 16 * half + 4 * b, 4), beta * 576))
    a.label("L1_fin")
    a("s_waitcnt vmcnt(0) lgkmcnt(0)")
    stamp(a, 4)
    soft_barrier(a, SB3, 8, 1, 5)
    a("s_cmp_lg_u32 s42, 0")
    a("s_cbranch_scc1 L2_entry")
    lds_spin(a, INITOK, 1, 1, 5)
    a("s_lshl_b32 s44, s40, 3"); a("s_lshr_b32 s45, s41, 1"); a("s_add_u32 s44, s44, s45")
    atomic_inc(a, 44)
    a.label("L2_entry")

def attn_regs():
    R = {}
    R["QA1"], R["QA2"], R["QB1"], R["QB2"] = 8, 12, 14, 18
    R["SA"], R["SB"] = 20, 36
    R["PA"], R["PB"] = 52, 60
    R["OA"], R["OB"] = 68, 84
    R["K1"] = [100, 104]; R["K2"] = [108, 110]; R["V"] = [112, 120]
    R["NA"], R["NB"] = 128, 144
    return R

def phase2(a):
    R = attn_regs()
    a("s_and_b32 s40, s2, 31"); a("s_lshr_b32 s41, s2, 5")
    a("v_lshlrev_b32 v3, 4, v2")
    a("s_mul_i32 s43, s40, %d" % KV_HEAD)
    a("s_cmp_lg_u32 s42, 0")
    a("s_cbranch_scc1 L2_waitgo")
    a("v_min_u32 v5, 4, v2")
    a("v_add_u32 v6, 1, v5"); a("v_lshrrev_b32 v6, 1, v6")
    a("v_and_b32 v7, 1, v5"); a("v_sub_u32 v7, 2, v7"); a("v_cmp_eq_u32 vcc, 0, v5"); a("v_mov_b32 v8, 0"); a("s_nop 0")
    a("v_cndmask_b32 v7, v7, v8, vcc")
    a("v_lshlrev_b32 v7, 5, v7"); a("v_add_u32 v7, s40, v7"); a("v_mul_u32_u24 v7, 0x2aab, v7"); a("v_lshrrev_b32 v7, 16, v7")
    a("v_subrev_u32 v6, 1, v6"); a("v_mov_b32 v8, s41"); a("v_cndmask_b32 v6, v6, v8, vcc")
    a("v_lshl_add_u32 v5, v7, 3, v6")
    a("v_lshlrev_b32 v5, 7, v5"); a("v_add_u32 v5, 0x%x, v5" % (OFF_CNT + 128 * C1))
    a("v_mov_b32 v6, 2")
    poll_global(a, 5, 6, vt=7)
    lds_set(a, GO1, 1, 7)
    a("s_branch L2_go")
    a.label("L2_waitgo")
    lds_spin(a, GO1, 1, 1, 7)
    a.label("L2_go")
    stamp(a, 5)
    if "prioA" in EXP: a("s_setprio 2")
    elif "prioB" in EXP: pass
    elif "prioC" in EXP:
        a("s_setprio 1"); a("s_cmp_lt_u32 s42, 4"); a("s_cbranch_scc0 L2_young"); a("s_setprio 3"); a.label("L2_young")
    else:
        a("s_cmp_lt_u32 s42, 4"); a("s_cbranch_scc0 L2_young"); a("s_setprio 2"); a.label("L2_young")
    a("s_lshr_b32 s46, s42, 2")
    if "samesimd" in EXP: a("s_and_b32 s45, s42, 3")
    else:
        a("s_mul_i32 s45, s46, 3"); a("s_add_u32 s45, s45, s42"); a("s_and_b32 s45, s45, 3")
    a("s_lshl_b32 s44, s42, 10"); a("s_add_u32 s43, s43, s44")
    a("v_mov_b32 v9, 0x%x" % OOB)
    a("s_cmp_lt_u32 s42, 4"); a("s_cselect_b64 vcc, -1, 0"); a("v_cndmask_b32 v9, v9, v3, vcc")
    for q in range(5):
        a("buffer_load_dwordx4 %s, v%d, s[36:39], s43 offen sc1" % (v(20 + 4 * q, 4), 3 if q < 4 else 9))
        if q < 4: a("s_add_u32 s43, s43, 8192")
    a("s_lshl_b32 s47, s41, 3"); a("s_lshl_b32 s48, s45, 1"); a("s_add_u32 s47, s47, s48")
    a("s_mul_i32 s48, s40, %d" % Q_HEAD); a("s_add_u32 s48, s48, 0x%x" % OFF_Q)
    a("s_lshl_b32 s49, s47, 10"); a("s_add_u32 s49, s49, s48")
    a("s_lshl_b32 s50, s47, 7"); a("s_add_u32 s50, s50, s48"); a("s_add_u32 s50, s50, 65536")
    a("v_and_b32 v4, 31, v2"); a("v_lshrrev_b32 v5, 5, v2"); a("v_lshlrev_b32 v6, 2, v4")
    a("v_mov_b32 v7, 0x%x" % OOB)
    a("v_cmp_eq_u32 vcc, 0, v5")
    a("buffer_load_dwordx4 %s, v3, s[36:39], s49 offen sc1" % v(R["QA1"], 4))
    a("buffer_load_dwordx4 %s, v3, s[36:39], s49 offen offset:1024 sc1" % v(R["QB1"], 4))
    a("v_cndmask_b32 v7, v7, v6, vcc")
    a("buffer_load_dword v%d, v7, s[36:39], s50 offen sc1" % R["QA2"])
    a("buffer_load_dword v%d, v7, s[36:39], s50 offen offset:128 sc1" % R["QB2"])
    a("v_mov_b32 v%d, 0" % (R["QA2"] + 1)); a("v_mov_b32 v%d, 0" % (R["QB2"] + 1))
    a("v_mov_b32 v%d, 0" % (R["K2"][0] + 1)); a("v_mov_b32 v%d, 0" % (R["K2"][1] + 1))
    a("v_mov_b32 v1, 0x3f803f80"); a("v_cmp_eq_u32 vcc, 18, v4"); a("v_mov_b32 v7, 0"); a("s_nop 0")
    a("v_cndmask_b32 v1, v7, v1, vcc")
    for b in range(2):
        for r in range(8): a("v_mov_b32 v%d, v1" % (R["V"][b] + r))
    LK1, LK2, LV = 160, 161, 162
    AK1, AK2, AV = 163, 164, 165
    CA, CO, NX = 166, 167, 7
    a("v_lshlrev_b32 v%d, 4, v2" % LK1)
    a("v_add_u32 v%d, 8192, v6" % LK2)
    a("v_mul_u32_u24 v%d, 288, v5" % LV); a("v_lshl_add_u32 v%d, v4, 4, v%d" % (LV, LV)); a("v_add_u32 v%d, 9216, v%d" % (LV, LV))
    a("s_mov_b32 s52, 0x%x" % VMASK); a("s_mov_b32 s53, 0x%x" % VMASK)
    a("s_mov_b32 s60, 0"); a("s_mov_b32 s61, 2")
    a("s_lshl_b32 s62, s45, 2"); a("s_add_u32 s62, s62, %d" % CNT)
    a("v_mov_b32 v%d, s62" % CA); a("v_mov_b32 v%d, 1" % CO)
    a("v_add_u32 v3, s44, v3")
    for q in range(5):
        a("s_waitcnt vmcnt(%d)" % (4 + 4 - q))
        if q == 4:
            a("s_cmp_ge_u32 s42, 4"); a("s_cbranch_scc1 L2_no5")
        a("ds_write_b128 v3, %s offset:%d" % (v(20 + 4 * q, 4), 8192 * q))
    a.label("L2_no5")
    a("s_waitcnt vmcnt(0) lgkmcnt(0)")
    lds_arrive(a, FA, 1, 3)
    lds_spin(a, FA, 8, 1, 3, sleep=False)
    stamp(a, 6)
    rstamp(a, 14)

    def mS1(S, kb, Q1, N): return "v_mfma_f32_32x32x16_bf16 %s, %s, %s, %s" % (v(S, 16), v(R["K1"][kb], 4), v(Q1, 4), v(N, 16) if USE_NEG else "0")
    def mS2(S, kb, Q2): return "v_mfma_f32_32x32x8_bf16 %s, %s, %s, %s" % (v(S, 16), v(R["K2"][kb], 2), v(Q2, 2), v(S, 16))
    def mP(O, vb, h, P): return "v_mfma_f32_32x32x16_bf16 %s, %s, %s, %s" % (v(O, 16), v(R["V"][vb] + 4 * h, 4), v(P + 4 * h, 4), v(O, 16))
    def phase(S, P, Sn, Q1, Q2, Nn, kb, On, Pn, vb, loads):
        ex = ["v_exp_f32 v%d, v%d" % (S + i, S + i) for i in range(16)]
        cv = ["v_cvt_pk_bf16_f32 v%d, v%d, v%d" % (P + i, S + 2 * i, S + 2 * i + 1) for i in range(8)]
        l0, l1 = loads
        return ([mS1(Sn, kb, Q1, Nn)] + l0 + ex[0:4] + [mP(On, vb, 0, Pn)] + ex[4:6] + cv[0:1] + ex[6:8] + cv[1:2] + l1 + ex[8:9] +
                [mS2(Sn, kb, Q2)] + ex[9:10] + cv[2:3] + ex[10:12] + cv[3:4] + [mP(On, vb, 1, Pn)] + ex[12:14] + cv[4:5] + ex[14:16] + cv[5:8])
    def mainloop(tag, neg):
        global USE_NEG
        USE_NEG = neg
        for r in range(16):
            a("v_mov_b32 v%d, 0" % (R["OA"] + r)); a("v_mov_b32 v%d, 0" % (R["OB"] + r))
        for r in range(8): a("v_mov_b32 v%d, 0" % (R["PB"] + r))
        NT = 4
        def item_bases(q, dk1, dk2, dv):
            a("s_lshr_b32 s56, s%d, 1" % q); a("s_mul_i32 s56, s56, 18432"); a("s_and_b32 s59, s%d, 1" % q)
            a("s_lshl_b32 s%d, s59, 12" % dk1); a("s_add_u32 s%d, s%d, s56" % (dk1, dk1))
            a("s_lshl_b32 s%d, s59, 9" % dk2); a("s_add_u32 s%d, s%d, s56" % (dk2, dk2))
            a("s_mul_i32 s%d, s59, 4608" % dv); a("s_add_u32 s%d, s%d, s56" % (dv, dv))
        a("s_mov_b32 s54, s46")
        item_bases(54, 57, 58, 63)
        a("v_add_u32 v%d, s57, v%d" % (AK1, LK1)); a("v_add_u32 v%d, s58, v%d" % (AK2, LK2)); a("v_add_u32 v%d, s63, v%d" % (AV, LV))
        a("ds_read_b128 %s, v%d" % (v(R["K1"][0], 4), AK1))
        a("ds_read_b32 v%d, v%d" % (R["K2"][0], AK2))
        a("s_waitcnt lgkmcnt(0)")
        a(mS1(R["SA"], 0, R["QA1"], R["NA"]))
        a(mS2(R["SA"], 0, R["QA2"]))
        a("s_nop 7"); a("s_nop 3")
        a.label("L2_stage" + tag)
        body = []
        for i in range(NT):
            kb = i & 1; kn = kb ^ 1; vb = i & 1; vp = vb ^ 1
            off = (i + 1) if i < NT - 1 else 0
            lk = ["ds_read_b128 %s, v%d offset:%d" % (v(R["K1"][kn], 4), AK1, off * 1024),
                  "ds_read_b32 v%d, v%d offset:%d" % (R["K2"][kn], AK2, off * 128)]
            lv = ["s_mov_b64 exec, s[52:53]",
                  "ds_read_b128 %s, v%d offset:%d" % (v(R["V"][vb], 4), AV, (2 * i) * 576),
                  "ds_read_b128 %s, v%d offset:%d" % (v(R["V"][vb] + 4, 4), AV, (2 * i + 1) * 576),
                  "s_mov_b64 exec, -1"]
            if i == NT - 2:
                lv = lv[:-1] + ["s_mov_b64 exec, 1", "ds_add_rtn_u32 v%d, v%d, v%d" % (NX, CA, CO), "s_mov_b64 exec, -1"]
            body += phase(R["SA"], R["PA"], R["SB"], R["QB1"], R["QB2"], R["NB"], kb, R["OB"], R["PB"], vp, (lv, lk))
            body.append("s_waitcnt lgkmcnt(0)")
            if i == NT - 2: body.append("NEXT")
            body += phase(R["SB"], R["PB"], R["SA"], R["QA1"], R["QA2"], R["NA"], kn, R["OA"], R["PA"], vb, ([], []))
        for x in body:
            if x == "NEXT":
                a("v_readfirstlane_b32 s55, v%d" % NX)
                a("s_cmp_lt_u32 s55, 16")
                a("s_cselect_b32 s64, s55, s54")
                a("s_cbranch_scc1 L2_more" + tag); a("s_setprio 3"); a.label("L2_more" + tag)
                item_bases(64, 57, 58, 63)
                a("s_lshr_b32 s64, s64, 1")
                a("s_cmp_lt_u32 s64, s61"); a("s_cbranch_scc1 L2_landed" + tag)
                a("v_mov_b32 v1, %d" % FB)
                a.label("L2_spinL" + tag)
                a("ds_read_b32 v3, v1"); a("s_waitcnt lgkmcnt(0)")
                a("v_readfirstlane_b32 s61, v3")
                a("s_cmp_lt_u32 s64, s61"); a("s_cbranch_scc1 L2_landed" + tag)
                a("s_sleep 1"); a("s_branch L2_spinL" + tag)
                a.label("L2_landed" + tag)
                a("v_add_u32 v%d, s57, v%d" % (AK1, LK1)); a("v_add_u32 v%d, s58, v%d" % (AK2, LK2))
            else:
                a(x)
        a("v_add_u32 v%d, s63, v%d" % (AV, LV))
        a("s_mov_b32 s54, s55")
        a("s_cmp_lt_u32 s54, 16")
        a("s_cbranch_scc1 L2_stage" + tag)
        a(mP(R["OB"], 1, 0, R["PB"])); a(mP(R["OB"], 1, 1, R["PB"]))
    mainloop("0", False)
    stamp(a, 7)
    rstamp(a, 15)
    a("s_nop 7"); a("s_nop 3")
    a("v_mov_b32 v1, 0x21800000"); a("v_mov_b32 v3, 0x5d800000")
    a("v_cmp_le_f32 s[56:57], v1, v%d" % (R["OA"] + 10)); a("v_cmp_ge_f32 s[58:59], v3, v%d" % (R["OA"] + 10))
    a("s_and_b64 s[56:57], s[56:57], s[58:59]")
    a("v_cmp_le_f32 s[58:59], v1, v%d" % (R["OB"] + 10)); a("s_and_b64 s[56:57], s[56:57], s[58:59]")
    a("v_cmp_ge_f32 s[58:59], v3, v%d" % (R["OB"] + 10)); a("s_and_b64 s[56:57], s[56:57], s[58:59]")
    a("s_cmp_eq_u32 s56, -1")
    a("s_cbranch_scc1 L2_ok")
    lds_set(a, FBAD, 1, 3)
    a.label("L2_ok")
    a("s_barrier")
    a("v_mov_b32 v1, %d" % FBAD); a("ds_read_b32 v3, v1"); a("s_waitcnt lgkmcnt(0)")
    a("v_readfirstlane_b32 s56, v3")
    a("s_cmp_eq_u32 s56, 0")
    a("s_cbranch_scc1 L2_exch")
    a("s_mov_b32 s60, 1")
    MA, MB = 166, 167
    a("v_mov_b32 v%d, 0xff800000" % MA); a("v_mov_b32 v%d, 0xff800000" % MB)
    a("s_lshl_b32 s54, s46, 2"); a("s_add_u32 s58, s54, 4")
    a.label("L2_maxstage")
    a("s_mul_i32 s55, s54, 18432")
    a("v_add_u32 v1, s55, v%d" % LK1); a("v_add_u32 v3, s55, v%d" % LK2)
    a("s_mov_b32 s55, 0")
    a.label("L2_maxtile")
    a("ds_read_b128 %s, v1" % v(R["K1"][0], 4)); a("ds_read_b32 v%d, v3" % R["K2"][0])
    a("s_waitcnt lgkmcnt(0)")
    a("v_mfma_f32_32x32x16_bf16 %s, %s, %s, 0" % (v(R["SA"], 16), v(R["K1"][0], 4), v(R["QA1"], 4)))
    a("v_mfma_f32_32x32x16_bf16 %s, %s, %s, 0" % (v(R["SB"], 16), v(R["K1"][0], 4), v(R["QB1"], 4)))
    a(mS2(R["SA"], 0, R["QA2"])); a(mS2(R["SB"], 0, R["QB2"]))
    a("s_nop 7"); a("s_nop 7")
    for r in range(16):
        a("v_max_f32 v%d, v%d, v%d" % (MA, MA, R["SA"] + r)); a("v_max_f32 v%d, v%d, v%d" % (MB, MB, R["SB"] + r))
    a("v_add_u32 v1, 1024, v1"); a("v_add_u32 v3, 128, v3")
    a("s_add_u32 s55, s55, 1"); a("s_cmp_lt_u32 s55, 8"); a("s_cbranch_scc1 L2_maxtile")
    a("s_add_u32 s54, s54, 1"); a("s_cmp_lt_u32 s54, s58"); a("s_cbranch_scc1 L2_maxstage")
    a("v_xor_b32 v1, 32, v2"); a("v_lshlrev_b32 v1, 2, v1")
    a("ds_bpermute_b32 v3, v1, v%d" % MA); a("s_waitcnt lgkmcnt(0)"); a("v_max_f32 v%d, v%d, v3" % (MA, MA))
    a("ds_bpermute_b32 v3, v1, v%d" % MB); a("s_waitcnt lgkmcnt(0)"); a("v_max_f32 v%d, v%d, v3" % (MB, MB))
    a("s_lshl_b32 s55, s2, 2"); a("s_add_u32 s55, s55, s45"); a("s_lshl_b32 s55, s55, 1"); a("s_add_u32 s55, s55, s46"); a("s_lshl_b32 s55, s55, 9"); a("s_add_u32 s55, s55, 0x%x" % OFF_MX)
    a("v_lshlrev_b32 v1, 3, v2")
    a("buffer_store_dwordx2 v[%d:%d], v1, s[36:39], s55 offen sc0 sc1" % (MA, MB))
    a("v_mov_b32 v3, s62"); a("v_mov_b32 v6, 2"); a("ds_write_b32 v3, v6")
    a("s_waitcnt vmcnt(0) lgkmcnt(0)")
    a("s_barrier")
    a("s_xor_b32 s56, s55, 512")
    a("buffer_load_dwordx2 v[6:7], v1, s[36:39], s56 offen sc0 sc1")
    a("s_waitcnt vmcnt(0)")
    a("v_max_f32 v%d, v%d, v6" % (MA, MA)); a("v_max_f32 v%d, v%d, v7" % (MB, MB))
    for r in range(16):
        a("v_sub_f32 v%d, 0, v%d" % (R["NA"] + r, MA)); a("v_sub_f32 v%d, 0, v%d" % (R["NB"] + r, MB))
    a("v_mov_b32 v%d, s62" % CA); a("v_mov_b32 v%d, 1" % CO)
    mainloop("1", True)
    a("s_nop 7"); a("s_nop 3")
    a.label("L2_combine")
    a("s_barrier")
    a.label("L2_exch")
    a("s_mul_i32 s55, s45, 6144")
    a("v_lshlrev_b32 v1, 4, v2"); a("v_add_u32 v1, s55, v1")
    a("s_cmp_eq_u32 s46, 0")
    a("s_cbranch_scc1 L2_recv")
    for t, O in enumerate((R["OA"], R["OB"])):
        for c in range(3): a("ds_write_b128 v1, %s offset:%d" % (v(O + 4 * c, 4), (3 * t + c) * 1024))
    a("s_waitcnt lgkmcnt(0)")
    a("s_barrier")
    a("s_cmp_lg_u32 s42, 4"); a("s_cbranch_scc1 L2_noC4")
    a("v_mov_b32 v8, 0x%x" % (OFF_CNT + 128 * C4)); a("v_mov_b32 v9, 256")
    poll_global(a, 8, 9, vt=10, slp=4)
    lds_set(a, GO2A, 1, 10)
    a.label("L2_noC4")
    a("s_barrier")
    a("s_branch L2_ostore")
    a.label("L2_recv")
    a("s_barrier")
    for t in range(2):
        for c in range(3): a("ds_read_b128 %s, v1 offset:%d" % (v(R["SA"] + 12 * t + 4 * c, 4), (3 * t + c) * 1024))
    a("s_waitcnt lgkmcnt(0)")
    for t, O in enumerate((R["OA"], R["OB"])):
        for r in range(12): a("v_add_f32 v%d, v%d, v%d" % (O + r, O + r, R["SA"] + 12 * t + r))
    for t, O in enumerate((R["OA"], R["OB"])):
        a("v_mov_b32 v%d, v%d" % (52 + 2 * t, O + 10)); a("v_mov_b32 v%d, v%d" % (53 + 2 * t, O + 10))
    a("s_nop 1")
    a("v_permlane32_swap_b32 v52, v53"); a("v_permlane32_swap_b32 v54, v55")
    a("s_nop 1")
    a("v_rcp_f32 v52, v52"); a("v_rcp_f32 v54, v54")
    a("s_lshl_b32 s55, s45, 6")
    a("v_add_u32 v3, s55, v4"); a("v_mul_u32_u24 v3, 36, v3"); a("v_lshl_add_u32 v3, v5, 3, v3"); a("v_add_u32 v3, 32768, v3")
    a("v_cmp_eq_u32 vcc, 0, v5")
    for t, O in enumerate((R["OA"], R["OB"])):
        rc = 52 + 2 * t
        for r in range(10): a("v_mul_f32 v%d, v%d, v%d" % (O + r, O + r, rc))
        for c in range(5): a("v_cvt_pk_bf16_f32 v%d, v%d, v%d" % (56 + 5 * t + c, O + 2 * c, O + 2 * c + 1))
    for t in range(2):
        off = t * 32 * 36; b = 56 + 5 * t
        a("ds_write_b32 v3, v%d offset:%d" % (b, off + 0)); a("ds_write_b32 v3, v%d offset:%d" % (b + 1, off + 4))
        a("ds_write_b32 v3, v%d offset:%d" % (b + 2, off + 16)); a("ds_write_b32 v3, v%d offset:%d" % (b + 3, off + 20))
    a("s_and_saveexec_b64 s[56:57], vcc")
    a("ds_write_b32 v3, v60 offset:32"); a("ds_write_b32 v3, v65 offset:%d" % (32 * 36 + 32))
    a("s_mov_b64 exec, s[56:57]")
    a("s_waitcnt lgkmcnt(0)")
    a("s_barrier")
    a.label("L2_ostore")
    a("s_lshl_b32 s55, s42, 10")
    a("v_lshlrev_b32 v1, 4, v2"); a("v_add_u32 v1, s55, v1")
    a("v_add_u32 v3, 32768, v1")
    a("ds_read_b128 v[8:11], v3")
    a("s_mul_i32 s57, s40, %d" % O_HEAD); a("s_mul_i32 s58, s41, 9216"); a("s_add_u32 s57, s57, s58"); a("s_add_u32 s57, s57, 0x%x" % OFF_O)
    a("s_cmp_lg_u32 s42, 0")
    a("s_cbranch_scc1 L2_o1")
    a("ds_read_b128 v[12:15], v3 offset:8192")
    a("s_waitcnt lgkmcnt(0)")
    a("v_add_u32 v6, 8192, v1")
    a("buffer_store_dwordx4 v[12:15], v6, s[36:39], s57 offen sc1")
    a.label("L2_o1")
    a("s_waitcnt lgkmcnt(0)")
    a("buffer_store_dwordx4 v[8:11], v1, s[36:39], s57 offen sc1")
    stamp(a, 8)
    phase3(a)
    a("s_branch L_fin")

    a.label("L2_conv")
    conv(a)

def loader(a):
    a("s_and_b32 s40, s2, 31"); a("s_mul_i32 s43, s40, %d" % KV_HEAD); a("v_lshlrev_b32 v3, 4, v2")
    a("s_setprio 3")
    lds_spin(a, SB3, 8, 1, 4)
    a("v_and_b32 v5, 1, v2"); a("v_add_u32 v5, 1, v5"); a("v_lshlrev_b32 v5, 5, v5"); a("v_add_u32 v5, s40, v5")
    a("v_mul_u32_u24 v5, 0x2aab, v5"); a("v_lshrrev_b32 v5, 16, v5"); a("v_lshlrev_b32 v5, 10, v5")
    a("v_add_u32 v5, 0x%x, v5" % (OFF_CNT + 128 * C1 + 2 * 128)); a("v_mov_b32 v6, 2")
    a("s_add_u32 s43, s43, 2*18432"); a("v_add_u32 v4, 2*18432, v3")
    a("s_mov_b32 s44, 2")
    a.label("L2_ldstage")
    poll_global(a, 5, 6, vt=7)
    for q in range(18):
        a("buffer_load_dwordx4 %s, v3, s[36:39], s43 offen offset:%d sc1" % (v(8 + 4 * q, 4), (q % 4) * 1024))
        if q % 4 == 3 or q == 17: a("s_add_u32 s43, s43, %d" % (4096 if q % 4 == 3 else 2048))
    for q in range(18):
        a("s_waitcnt vmcnt(%d)" % (17 - q))
        a("ds_write_b128 v4, %s offset:%d" % (v(8 + 4 * q, 4), 1024 * q))
    a("v_add_u32 v4, 18432, v4"); a("v_add_u32 v5, 128, v5")
    a("s_add_u32 s44, s44, 1")
    a("s_waitcnt lgkmcnt(0)")
    a("v_mov_b32 v1, %d" % FB); a("v_mov_b32 v7, s44"); a("ds_write_b32 v1, v7")
    a("s_cmp_lt_u32 s44, 8"); a("s_cbranch_scc1 L2_ldstage")
    a("s_waitcnt lgkmcnt(0)")

def conv(a):
    a("s_sub_u32 s43, s42, 8")
    a("s_lshl_b32 s44, s43, 8"); a("s_add_u32 s44, s44, s2")
    a("s_cmp_eq_u32 s43, 2"); a("s_cbranch_scc0 %s" % (lbl := a.uid("Lch")))
    a("s_add_u32 s44, s2, 320"); a("s_cmp_lt_u32 s2, 192"); a("s_cselect_b32 s44, 0xffff, s44")
    a.label(lbl)
    a("s_cmp_ge_u32 s44, 576")
    a("s_cbranch_scc1 L_fin")
    a("s_load_dwordx2 s[10:11], s[0:1], 64")
    a("s_mul_hi_u32 s45, s44, 0x%x" % ((1 << 32) // 48 + 1)); a("s_add_u32 s45, s45, %d" % C2); a("s_lshl_b32 s45, s45, 7"); a("s_add_u32 s45, s45, 0x%x" % OFF_CNT)
    a("v_mov_b32 v5, s45"); a("v_mov_b32 v6, 16")
    poll_global(a, 5, 6, vt=7, slp=6)
    stamp(a, 6)
    a("v_lshlrev_b32 v3, 4, v2")
    a("s_lshl_b32 s46, s44, 12"); a("s_add_u32 s46, s46, 0x%x" % OFF_URT)
    a("s_mul_i32 s47, s43, 4608"); a("s_add_u32 s47, s47, %d" % LDS_UR)
    for q in range(4): a("buffer_load_dwordx4 %s, v3, s[36:39], s46 offen offset:%d sc1" % (v(8 + 4 * q, 4), 1024 * q))
    a("s_mul_i32 s48, s44, %d" % (2 * HP_ROW)); a("s_add_u32 s48, s48, 0x%x" % OFF_HP)
    a("v_and_b32 v4, 15, v2"); a("v_lshrrev_b32 v5, 4, v2")
    a("v_and_b32 v6, 7, v4"); a("v_lshlrev_b32 v6, 1, v6")
    a("v_lshrrev_b32 v7, 3, v4")
    a("v_lshl_add_u32 v6, v7, 1, v6"); a("v_lshl_add_u32 v6, v5, 3, v6"); a("v_lshlrev_b32 v6, 1, v6")
    a("v_mov_b32 v24, %d" % HP_ROW); a("v_cmp_eq_u32 vcc, 0, v7"); a("v_mov_b32 v25, 0"); a("s_nop 0")
    a("v_cndmask_b32 v24, v25, v24, vcc"); a("v_add_u32 v6, v6, v24")
    a("v_lshlrev_b32 v7, 5, v4"); a("v_lshlrev_b32 v24, 4, v5"); a("v_sub_u32 v7, v24, v7")
    a("v_add_u32 v7, s47, v7"); a("v_add_u32 v7, 4064, v7")
    AF, AG, BF, Y = 16, 112, 48, 80
    for mu in range(8): a("buffer_load_dwordx4 %s, v6, s[36:39], s48 offen offset:%d" % (v(AG + 4 * mu, 4), 512 * mu))
    a("v_add_u32 v26, s47, v3")
    for q in range(4):
        a("s_waitcnt vmcnt(%d)" % (8 + 3 - q))
        a("ds_write_b128 v26, %s offset:%d" % (v(8 + 4 * q, 4), 1024 * q))
    for r in range(4): a("v_mov_b32 v%d, 0" % (28 + r))
    a("s_mov_b32 exec_hi, 0")
    a("ds_write_b128 v26, v[28:31] offset:4096")
    a("s_mov_b64 exec, -1")
    for r in range(32): a("v_mov_b32 v%d, 0" % (Y + r))
    a("s_waitcnt lgkmcnt(0)")
    stamp(a, 8)
    a("s_setprio %d" % (2 if "conv2" in EXP else (0 if "conv0" in EXP else 1)))
    a("s_mov_b32 s51, 0")
    a.label("L2c_rho")
    for half, (cur, nxt) in enumerate(((AG, AF), (AF, AG))):
        a("s_add_u32 s52, s51, %d" % half); a("s_lshl_b32 s52, s52, 6")
        a("v_add_u32 v8, s52, v7"); a("v_subrev_u32 v8, %d, v8" % (512 * 7))
        for sg in range(8): a("ds_read_b128 %s, v8 offset:%d" % (v(BF + 4 * sg, 4), 512 * (7 - sg)))
        a("s_add_u32 s53, s52, 64"); a("s_and_b32 s53, s53, 0x1ff"); a("s_add_u32 s53, s53, s48")
        for mu in range(8): a("buffer_load_dwordx4 %s, v6, s[36:39], s53 offen offset:%d" % (v(nxt + 4 * mu, 4), 512 * mu))
        a("s_waitcnt lgkmcnt(0)")
        for mu in range(8):
            a("s_waitcnt vmcnt(%d)" % (8 + 7 - mu))
            for sg in range(8 - mu):
                t = mu + sg
                a("v_mfma_f32_16x16x32_bf16 %s, %s, %s, %s" % (v(Y + 4 * t, 4), v(cur + 4 * mu, 4), v(BF + 4 * sg, 4), v(Y + 4 * t, 4)))
    a("s_add_u32 s51, s51, 2"); a("s_cmp_lt_u32 s51, 8"); a("s_cbranch_scc1 L2c_rho")
    stamp(a, 9)
    a("s_setprio 3")
    a("s_waitcnt vmcnt(0)")
    a("s_lshl_b32 s52, s44, 1"); a("s_and_b32 s53, s52, 0xfffffffc")
    a("s_add_u32 s54, s10, s53"); a("s_addc_u32 s55, s11, 0")
    a("s_load_dword s56, s[54:55], 0")
    a("s_waitcnt lgkmcnt(0)")
    a("s_and_b32 s57, s52, 2"); a("s_lshl_b32 s57, s57, 3"); a("s_lshr_b32 s56, s56, s57"); a("s_lshl_b32 s56, s56, 16")
    a("v_and_b32 v8, 1, v5"); a("v_lshrrev_b32 v9, 1, v5")
    a("v_lshlrev_b32 v10, 4, v4"); a("v_lshl_add_u32 v10, v8, 3, v10"); a("v_lshl_add_u32 v10, v9, 2, v10")
    a("v_lshlrev_b32 v11, 1, v10")
    a("v_sub_u32 v12, 0, v11"); a("v_add_u32 v12, s47, v12"); a("v_add_u32 v12, %d, v12" % (2 * 2044 - 512 * 7))
    for t in range(8): a("ds_read_b64 %s, v12 offset:%d" % (v(AF + 2 * t, 2), 512 * (7 - t)))
    a("s_lshl_b32 s52, s44, 12"); a("s_add_u32 s52, s52, 0x%x" % OFF_YT)
    a("s_nop 7")
    for t in range(8):
        y = Y + 4 * t
        a("v_permlane32_swap_b32 v%d, v%d" % (y, y + 2)); a("v_permlane32_swap_b32 v%d, v%d" % (y + 1, y + 3))
    a("s_waitcnt lgkmcnt(0)")
    for t in range(8):
        y = Y + 4 * t; u0, u1 = AF + 2 * t, AF + 2 * t + 1
        a("v_and_b32 v40, 0xffff0000, v%d" % u1); a("v_fma_f32 v%d, v40, s56, v%d" % (y, y))
        a("v_lshlrev_b32 v41, 16, v%d" % u1);     a("v_fma_f32 v%d, v41, s56, v%d" % (y + 2, y + 2))
        a("v_and_b32 v42, 0xffff0000, v%d" % u0); a("v_fma_f32 v%d, v42, s56, v%d" % (y + 1, y + 1))
        a("v_lshlrev_b32 v43, 16, v%d" % u0);     a("v_fma_f32 v%d, v43, s56, v%d" % (y + 3, y + 3))
        a("v_cvt_pk_bf16_f32 v%d, v%d, v%d" % (112 + 2 * t, y, y + 2))
        a("v_cvt_pk_bf16_f32 v%d, v%d, v%d" % (113 + 2 * t, y + 1, y + 3))
        a("buffer_store_dwordx2 %s, v11, s[36:39], s52 offen offset:%d sc1" % (v(112 + 2 * t, 2), 512 * t))
    a("s_waitcnt vmcnt(0)")
    a("s_mul_hi_u32 s45, s44, 0x%x" % ((1 << 32) // 144 + 1)); a("s_add_u32 s45, s45, %d" % C3)
    atomic_inc(a, 45)
    stamp(a, 7)
    a("s_branch L_fin")

def phase3(a):
    OB, YB, UB, W8 = 49152, 90112, 102400, 112640
    WA, ST = 20, 92
    a("s_load_dwordx2 s[4:5], s[0:1], 0"); a("s_load_dwordx2 s[6:7], s[0:1], 80")
    a("s_and_b32 s43, s40, 7"); a("s_lshl_b32 s43, s43, 5"); a("s_lshl_b32 s44, s41, 8"); a("s_add_u32 s43, s43, s44")
    a("s_lshr_b32 s44, s40, 3")
    a("v_and_b32 v3, 15, v2"); a("v_lshrrev_b32 v4, 4, v2"); a("v_lshlrev_b32 v5, 4, v2")
    a("s_waitcnt vmcnt(0)")
    a("s_barrier")
    stamp(a, 13)
    a("s_cmp_lg_u32 s42, 0")
    a("s_cbranch_scc1 L3_noarr")
    a("s_add_u32 s52, s41, %d" % C5)
    atomic_inc(a, 52, 14, 15)
    a.label("L3_noarr")
    lds_spin(a, GO2A, 1, 1, 6)
    srd(a, 16, 4, 2048 * 1152); srd(a, 20, 6, 2048 * 1152)
    a("s_mul_i32 s45, s44, 9"); a("s_mul_i32 s47, s44, 288")
    XB = 131072
    def prefetch():
        a("s_mul_i32 s45, s44, 9"); a("s_add_u32 s46, s45, s42"); a("s_mul_i32 s46, s46, 18*1024"); a("s_add_u32 s46, s46, 0x%x" % OFF_WOF)
        for ks in range(18):
            a("buffer_load_dwordx4 %s, v5, s[36:39], s46 offen offset:%d sc1" % (v(WA + 4 * ks, 4), (ks % 4) * 1024))
            if ks % 4 == 3: a("s_add_u32 s46, s46, 4096")
        a("v_add_u32 v6, s43, v3")
        a("v_lshlrev_b32 v14, 2, v6"); a("s_mov_b32 s51, 0x%x" % OFF_G)
        a("buffer_load_dword v16, v14, s[36:39], s51 offen sc1"); a("buffer_load_dword v17, v14, s[36:39], s51 offen offset:64 sc1")
    NPF = 20
    a("s_cmp_eq_u32 s42, 0")
    a("s_cbranch_scc1 L3_prepO")
    a("s_cmp_lt_u32 s42, 4")
    a("s_cbranch_scc0 L3_w47")
    a("s_movk_i32 s52, 3641"); a("s_sub_u32 s53, s42, 1"); a("s_mul_i32 s53, s53, 192")
    for i in range(3):
        a("v_add_u32 v8, s53, v2"); a("v_add_u32 v8, %d, v8" % (64 * i))
        a("v_mul_u32_u24 v9, s52, v8"); a("v_lshrrev_b32 v9, 16, v9")
        a("v_mul_u32_u24 v10, 18, v9"); a("v_sub_u32 v10, v8, v10")
        a("v_mul_u32_u24 v11, 304, v9"); a("v_lshl_add_u32 v%d, v10, 4, v11" % (148 + i)); a("v_add_u32 v%d, %d, v%d" % (148 + i, XB, 148 + i))
        a("v_add_u32 v9, s43, v9"); a("v_mul_u32_u24 v9, 1152, v9"); a("v_lshl_add_u32 v9, v10, 4, v9")
        a("buffer_load_dwordx4 %s, v9, s[16:19], s47 offen" % v(ST + 4 * i, 4))
    prefetch()
    for i in range(3):
        a("s_waitcnt vmcnt(%d)" % (NPF + 2 - i))
        a("ds_write_b128 v%d, %s" % (148 + i, v(ST + 4 * i, 4)))
    a("s_branch L3_prepdone")
    a.label("L3_w47")
    a("s_cmp_lt_u32 s42, 6")
    a("s_cbranch_scc1 L3_prepY")
    a("s_add_u32 s46, s45, 8"); a("s_mul_i32 s46, s46, 18*1024"); a("s_add_u32 s46, s46, 0x%x" % OFF_WOF)
    a("s_sub_u32 s52, s42, 6"); a("s_mul_i32 s52, s52, 9216"); a("s_add_u32 s46, s46, s52")
    for i in range(9):
        a("buffer_load_dwordx4 %s, v5, s[36:39], s46 offen offset:%d sc1" % (v(ST + 4 * i, 4), (i % 4) * 1024))
        if i % 4 == 3: a("s_add_u32 s46, s46, 4096")
    a("s_add_u32 s52, s52, %d" % W8); a("v_add_u32 v12, s52, v5")
    prefetch()
    for i in range(9):
        a("s_waitcnt vmcnt(%d)" % (NPF + 8 - i))
        a("ds_write_b128 v12, %s offset:%d" % (v(ST + 4 * i, 4), 1024 * i))
    a("s_branch L3_prepdone")
    a.label("L3_prepY")
    a("s_add_u32 s55, s44, %d" % C3); a("s_lshl_b32 s55, s55, 7"); a("s_add_u32 s55, s55, 0x%x" % OFF_CNT)
    a("v_mov_b32 v8, s55"); a("v_mov_b32 v9, 144")
    poll_global(a, 8, 9, vt=10, slp=4)
    a("v_lshrrev_b32 v14, 2, v2"); a("v_and_b32 v15, 3, v2")
    a("s_sub_u32 s52, s42, 4"); a("s_mul_i32 s52, s52, 80")
    a("s_mul_i32 s53, s44, 144"); a("s_add_u32 s53, s53, s52")
    a("v_add_u32 v14, s53, v14"); a("v_lshlrev_b32 v14, 12, v14"); a("v_lshl_add_u32 v14, v15, 4, v14")
    a("s_lshl_b32 s53, s43, 1"); a("s_add_u32 s53, s53, 0x%x" % OFF_YT)
    for i in range(5):
        a("buffer_load_dwordx4 %s, v14, s[36:39], s53 offen sc1" % v(ST + 4 * i, 4))
        a("s_add_u32 s53, s53, 16*4096")
    a("s_lshl_b32 s52, s52, 6"); a("s_add_u32 s52, s52, %d" % YB)
    a("v_add_u32 v12, s52, v5")
    prefetch()
    for i in range(5):
        a("s_waitcnt vmcnt(%d)" % (NPF + 4 - i))
        a("ds_write_b128 v12, %s offset:%d" % (v(ST + 4 * i, 4), 1024 * i))
    a("s_branch L3_prepdone")
    a.label("L3_prepO")
    a.label("L3_prepdone")
    OA_ = 124
    a("s_movk_i32 s52, 7282"); a("s_mul_i32 s54, s42, 36")
    for part in range(2):
        for j in range(4):
            a("v_lshlrev_b32 v14, 2, v2"); a("v_add_u32 v14, %d, v14" % (256 * part + j))
            a("v_mul_u32_u24 v15, s52, v14"); a("v_lshrrev_b32 v15, 16, v15")
            a("v_mul_u32_u24 v18, 9, v15"); a("v_sub_u32 v14, v14, v18")
            a("v_add_u32 v14, s54, v14")
            a("v_bfe_u32 v18, v15, 1, 3")
            a("v_mul_u32_u24 v15, 1152, v15"); a("v_add_u32 v15, %d, v15" % OB)
            for hh in range(4):
                r = OA_ + 8 * hh + 4 * part + j
                if hh: a("v_add_u32 v14, 9, v14")
                a("v_lshrrev_b32 v164, 2, v14"); a("v_xor_b32 v164, v164, v18"); a("v_lshl_add_u32 v164, v164, 4, v15")
                a("v_and_b32 v165, 3, v14"); a("v_lshl_add_u32 v%d, v165, 2, v164" % r)
    assert all((q * 7282 >> 16) == q // 9 for q in range(288))
    a("s_lshl_b32 s52, s42, 2"); a("s_mul_i32 s53, s52, %d" % O_HEAD); a("s_mul_i32 s54, s43, 36"); a("s_add_u32 s53, s53, s54"); a("s_add_u32 s53, s53, 0x%x" % OFF_O)
    a("v_add_u32 v14, 1024, v5"); a("v_mov_b32 v15, 0x%x" % OOB); a("v_cmp_gt_u32 vcc, 8, v2"); a("s_nop 1"); a("v_cndmask_b32 v19, v15, v14, vcc")
    a("s_cmp_lg_u32 s42, 0")
    a("s_cbranch_scc1 L3_waitgo")
    a("s_add_u32 s52, s41, %d" % C5); a("s_lshl_b32 s52, s52, 7"); a("s_add_u32 s52, s52, 0x%x" % OFF_CNT)
    a("v_mov_b32 v14, s52"); a("v_mov_b32 v15, 32")
    poll_global(a, 14, 15, vt=18, slp=4)
    lds_set(a, GO2B, 1, 18)
    a("s_branch L3_go")
    a.label("L3_waitgo")
    lds_spin(a, GO2B, 1, 1, 18)
    a.label("L3_go")
    stamp(a, 9)
    for hh in range(4):
        a("buffer_load_dwordx4 %s, v5, s[36:39], s53 offen sc1" % v(ST + 8 * hh, 4))
        a("buffer_load_dwordx4 %s, v19, s[36:39], s53 offen sc1" % v(ST + 8 * hh + 4, 4))
        a("s_add_u32 s53, s53, %d" % O_HEAD)
    def scatter(extra):
        for hh in range(4):
            a("s_waitcnt vmcnt(%d)" % (extra + 7 - 2 * hh))
            for j in range(4): a("ds_write_b32 v%d, v%d" % (OA_ + 8 * hh + j, ST + 8 * hh + j))
            a("s_waitcnt vmcnt(%d)" % (extra + 6 - 2 * hh))
            a("s_mov_b64 exec, 0xff")
            for j in range(4): a("ds_write_b32 v%d, v%d" % (OA_ + 8 * hh + 4 + j, ST + 8 * hh + 4 + j))
            a("s_mov_b64 exec, -1")
    a("s_cmp_lg_u32 s42, 0")
    a("s_cbranch_scc1 L3_w17")
    prefetch()
    scatter(NPF)
    a("s_branch L3_noO")
    a.label("L3_w17")
    scatter(0)
    a.label("L3_noO")
    a("s_waitcnt vmcnt(0) lgkmcnt(0)")
    a("s_barrier")
    stamp(a, 10)
    a("v_lshrrev_b32 v7, 1, v3"); a("v_xor_b32 v7, v7, v4"); a("v_mul_u32_u24 v6, 1152, v3"); a("v_lshl_add_u32 v6, v7, 4, v6"); a("v_add_u32 v6, %d, v6" % OB)
    a("v_xor_b32 v162, 64, v6")
    a("s_and_b32 s52, s42, 1"); a("s_mul_i32 s52, s52, 16*1152"); a("v_add_u32 v7, s52, v6"); a("v_add_u32 v163, s52, v162")
    a("v_add_u32 v14, %d, v5" % W8)
    AC = [92, 96, 100]; BFR = [104, 116]; A2 = [128, 132]
    TM, YR = 136, 148
    a("v_lshrrev_b32 v154, 2, v2"); a("v_and_b32 v154, 3, v154"); a("v_lshl_add_u32 v154, v4, 2, v154"); a("v_lshlrev_b32 v154, 6, v154")
    a("v_and_b32 v155, 3, v2"); a("v_lshl_add_u32 v154, v155, 3, v154"); a("v_add_u32 v154, %d, v154" % YB)
    a("s_lshl_b32 s56, s42, 10"); a("v_add_u32 v155, s56, v154")
    a("ds_read_b64_tr_b16 %s, v155" % v(YR, 2)); a("ds_read_b64_tr_b16 %s, v155 offset:32" % v(YR + 2, 2))
    a("s_and_b32 s59, s42, 1"); a("s_lshl_b32 s56, s59, 5"); a("s_add_u32 s56, s56, 8*1024"); a("v_add_u32 v155, s56, v154")
    a("ds_read_b64_tr_b16 %s, v155" % v(YR + 4, 2))
    a("v_mul_u32_u24 v8, 304, v3"); a("v_lshl_add_u32 v8, v4, 3, v8"); a("v_add_u32 v15, %d, v8" % XB)
    a("s_lshl_b32 s56, s42, 5"); a("v_add_u32 v19, s56, v15")
    a("ds_read_b64 v[8:9], v19"); a("ds_read_b64 v[10:11], v19 offset:%d" % (16 * 304))
    a("s_mul_i32 s56, s59, 16*304"); a("s_add_u32 s56, s56, 256"); a("v_add_u32 v19, s56, v15")
    a("ds_read_b64 v[12:13], v19")
    a("s_cmp_eq_u32 s59, 0"); a("s_cselect_b64 vcc, -1, 0"); a("v_cndmask_b32 v18, v17, v16, vcc")
    GR = [16, 17, 18]; XR = [8, 10, 12]
    terms = []
    for t in range(3):
        terms.append("v_sub_f32 v%d, 1.0, v%d" % (164 + t, GR[t]))
        for r in range(4):
            x_, y_ = XR[t] + r // 2, YR + 2 * t + r // 2
            if r % 2 == 0:
                terms += ["v_lshlrev_b32 v%d, 16, v%d" % (TM + 4 * t + r, x_), "v_lshlrev_b32 v167, 16, v%d" % y_]
            else:
                terms += ["v_and_b32 v%d, 0xffff0000, v%d" % (TM + 4 * t + r, x_), "v_and_b32 v167, 0xffff0000, v%d" % y_]
            terms += ["v_mul_f32 v%d, v%d, v167" % (TM + 4 * t + r, TM + 4 * t + r), "v_mul_f32 v%d, v%d, v%d" % (TM + 4 * t + r, TM + 4 * t + r, 164 + t)]
    def kloop(three):
        NBUF = 3 if not three else 2
        BB = [104, 112, 120] if not three else BFR
        tl = list(terms)
        def rd(ks):
            b = BB[ks % NBUF]
            r0, r1 = (6, 7) if ks % 2 == 0 else (162, 163)
            o = 128 * (ks >> 1)
            out = ["ds_read_b128 %s, v%d offset:%d" % (v(b, 4), r0, o), "ds_read_b128 %s, v%d offset:%d" % (v(b + 4, 4), r0, o + 16 * 1152)]
            if three:
                out += ["ds_read_b128 %s, v%d offset:%d" % (v(b + 8, 4), r1, o), "ds_read_b128 %s, v14 offset:%d" % (v(A2[ks & 1], 4), 1024 * ks)]
            return out
        n = 4 if three else 2
        D = NBUF - 1
        for k in range(D):
            for x in rd(k): a(x)
        for ks in range(18):
            if ks + D < 18:
                for x in rd(ks + D): a(x)
            rem = min(D, 17 - ks)
            a("s_waitcnt lgkmcnt(%d)" % (n * rem))
            b = BB[ks % NBUF]
            for t in range(2):
                c = "0" if ks == 0 else v(AC[t], 4)
                a("v_mfma_f32_16x16x32_bf16 %s, %s, %s, %s" % (v(AC[t], 4), v(WA + 4 * ks, 4), v(b + 4 * t, 4), c))
            if three:
                c = "0" if ks == 0 else v(AC[2], 4)
                a("v_mfma_f32_16x16x32_bf16 %s, %s, %s, %s" % (v(AC[2], 4), v(A2[ks & 1], 4), v(b + 8, 4), c))
            for x in tl[:4]: a(x)
            tl = tl[4:]
        for x in tl: a(x)
    def epi(t, moff, noff):
        for r in range(4): a("v_fma_f32 v%d, v%d, v%d, v%d" % (AC[t] + r, AC[t] + r, GR[t], TM + 4 * t + r))
        a("v_cvt_pk_bf16_f32 v%d, v%d, v%d" % (104 + 2 * t, AC[t], AC[t] + 1)); a("v_cvt_pk_bf16_f32 v%d, v%d, v%d" % (105 + 2 * t, AC[t] + 2, AC[t] + 3))
    a("s_cmp_ge_u32 s42, 6")
    a("s_cbranch_scc1 L3_k3")
    kloop(False)
    a("s_branch L3_kdone")
    a.label("L3_k3")
    kloop(True)
    a.label("L3_kdone")
    stamp(a, 11)
    a("v_mul_u32_u24 v154, 304, v3"); a("v_lshl_add_u32 v154, v4, 3, v154"); a("v_add_u32 v154, %d, v154" % UB)
    a("s_lshl_b32 s56, s42, 5"); a("v_add_u32 v155, s56, v154")
    a("s_nop 2")
    epi(0, 0, 0); epi(1, 0, 0)
    a("ds_write_b64 v155, v[104:105]"); a("ds_write_b64 v155, v[106:107] offset:%d" % (16 * 304))
    a("s_cmp_lt_u32 s42, 6")
    a("s_cbranch_scc1 L3_edone")
    epi(2, 0, 0)
    a("s_mul_i32 s56, s59, 16*304"); a("s_add_u32 s56, s56, 256"); a("v_add_u32 v155, s56, v154")
    a("ds_write_b64 v155, v[108:109]")
    a.label("L3_edone")
    a("s_waitcnt lgkmcnt(0)")
    a("s_barrier")
    a("s_movk_i32 s56, 3641")
    for rep in range(2):
        if rep == 1:
            a("s_cmp_lg_u32 s42, 0"); a("s_cbranch_scc1 L_fin")
        a("s_lshl_b32 s57, s42, 6"); a("v_add_u32 v6, s57, v2")
        if rep == 1: a("v_add_u32 v6, 512, v6")
        a("v_mul_u32_u24 v7, s56, v6"); a("v_lshrrev_b32 v7, 16, v7")
        a("v_mul_u32_u24 v8, 18, v7"); a("v_sub_u32 v8, v6, v8")
        a("v_mul_u32_u24 v9, 304, v7"); a("v_lshl_add_u32 v9, v8, 4, v9"); a("v_add_u32 v9, %d, v9" % UB)
        a("ds_read_b128 v[24:27], v9")
        a("v_add_u32 v7, s43, v7"); a("v_mul_u32_u24 v7, 1152, v7"); a("v_lshl_add_u32 v7, v8, 4, v7")
        a("s_waitcnt lgkmcnt(0)")
        a("buffer_store_dwordx4 v[24:27], v7, s[20:23], s47 offen")
    assert all((x * 3641 >> 16) == x // 18 for x in range(576))

def descriptor(name, nvgpr, nsgpr=100):
    return """.p2align 6
.amdhsa_kernel %s
  .amdhsa_next_free_vgpr %d
  .amdhsa_next_free_sgpr %d
  .amdhsa_accum_offset %d
  .amdhsa_group_segment_fixed_size 0
  .amdhsa_kernarg_size 104
  .amdhsa_user_sgpr_count 2
  .amdhsa_user_sgpr_kernarg_segment_ptr 1
  .amdhsa_system_sgpr_workgroup_id_x 1
  .amdhsa_float_denorm_mode_32 3
.end_amdhsa_kernel
""" % (name, nvgpr, nsgpr, nvgpr)

def main():
    global DIAG
    global RT
    RT = "--rt" in sys.argv
    DIAG = "--diag" in sys.argv or RT
    for x in sys.argv:
        if x.startswith("--exp="): EXP.update(x[6:].split(","))
    args = [x for x in sys.argv[1:] if not x.startswith("--")]
    a = Asm()
    hdr = open("gated_mix__mha_block__ssm_conv_h3__prompt.s.ref").read().split("\n")
    head = [l for l in hdr if l.startswith(";") and "@launch" not in l and "Override" not in l and "grid=ceil" not in l]
    a.raw("\n".join(head))
    a.raw("; @launch grid=(256,1,1) block=(768,1,1) lds=%d" % LDS_TOTAL)
    a.raw('.amdgcn_target "amdgcn-amd-amdhsa--gfx950"')
    a.raw(".text")
    a.raw(".globl %s" % NAME); a.raw(".p2align 8"); a.raw(".type %s,@function" % NAME); a.label(NAME)
    a("s_cmp_ge_u32 s2, 256")
    a("s_cbranch_scc1 L_end")
    phase1(a)
    phase2(a)
    a.label("L_fin")
    stamp(a, 12)
    stamp_store(a)
    a.label("L_end")
    a("s_endpgm")
    a.raw('.section .rodata,"a"')
    a.raw(descriptor(NAME, 168))
    if "plainld" in EXP:
        out_l = []
        for k, l in enumerate(a.lines):
            if "buffer_load" in l and " sc1" in l and "sc0" not in l:
                nxt = a.lines[k + 1] if k + 1 < len(a.lines) else ""
                is_poll = ("buffer_load_dword v" in l and ", 0 offen sc1" in l and "offset" not in l and "s_waitcnt vmcnt(0)" in nxt)
                if not is_poll: l = l.replace(" sc1", "")
            out_l.append(l)
        a.lines = out_l
    if "nosc1" in EXP:
        a.lines = [l.replace(" sc1", "") if ("buffer_store" in l and "sc0" not in l) else l for l in a.lines]
    if "nosideload" in EXP:
        out_l = []; inside = False
        for l in a.lines:
            if "L1_side:" in l: inside = True
            if "L1_out:" in l: inside = False
            if inside and ("buffer_load_dword" in l or "buffer_load_ushort" in l) and "s[20:23]" not in l: continue
            out_l.append(l)
        a.lines = out_l
    if "nosidestore" in EXP:
        out_l = []; inside = False
        for l in a.lines:
            if "L1_side:" in l: inside = True
            if "L1_out:" in l: inside = False
            if inside and "buffer_store" in l and "s[20:23]" not in l and "v1, s[36:39], 0 offen sc1" not in l: continue
            out_l.append(l)
        a.lines = out_l
    out = args[0] if args else "fused3.s"
    open(out, "w").write(a.text())
    probs = check_seq(a.lines, "all")
    for p in probs: print("HAZARD", p)
    print("wrote", out, len(a.lines), "lines")

if __name__ == "__main__":
    main()
```

```python
import sys, struct
from asmlib import *

NAME = "gated_mix__mha_block__ssm_conv_h3__prompt_kernel"
KV_HEAD = 147456
Q_HEAD  = 73728
OFF_KV  = 0
OFF_Q   = OFF_KV + 32 * KV_HEAD
URT_ROW = 4096
OFF_URT = OFF_Q + 32 * Q_HEAD
HP_ROW  = 5120
OFF_HP  = OFF_URT + 576 * URT_ROW
OFF_YT  = OFF_HP + 576 * 2 * HP_ROW
O_HEAD  = 2048 * 36
OFF_O   = OFF_YT + 576 * 4096
OFF_G   = OFF_O + 32 * O_HEAD
OFF_WOF = OFF_G + 2048 * 4
OFF_MX  = OFF_WOF + 648 * 1024
OFF_CNT = OFF_MX + 256 * 8 * 512
WS_USED = OFF_CNT + 256 * 128
WS_SRD_SIZE = 0x2000000
assert WS_USED <= WS_SRD_SIZE and OFF_CNT % 128 == 0
C1, C2, C3, C4, C5 = 0, 128, 140, 144, 145
QSCALE = 1.4426950408889634 / (18.0 ** 0.5)
def f32bits(x): return struct.unpack("<I", struct.pack("<f", x))[0]
OOB = 0x80000000
LDS_KV = 147456
LDS_UR = LDS_KV
LDS_FLAG = LDS_UR + 3 * 4608
FA, FB, FBAD, GO1, CNT, GO2A, GO2B = LDS_FLAG, LDS_FLAG + 4, LDS_FLAG + 8, LDS_FLAG + 12, LDS_FLAG + 16, LDS_FLAG + 32, LDS_FLAG + 36
SB1, SB2, SB3, SB4, SB5 = LDS_FLAG + 40, LDS_FLAG + 44, LDS_FLAG + 48, LDS_FLAG + 52, LDS_FLAG + 56
SBG = LDS_FLAG + 60
INITOK = LDS_FLAG + 64
SBH = LDS_FLAG + 68
ARR = LDS_FLAG + 72
LDS_TOTAL = LDS_FLAG + 128
VMASK = 0x0003FFFF
SPIN_MAX = 200000
TB_ = 32768
NPRE = 8

DIAG = False
USE_NEG = False
EXP = set()
NST = 16
RT = False
def stamp(a, i):
    if not DIAG: return
    a("%s s[76:77]" % ("s_memrealtime" if RT else "s_memtime")); a("s_waitcnt lgkmcnt(0)"); a("s_mov_b32 s%d, s76" % (80 + i))
def rstamp(a, i):
    if not DIAG or RT: return
    a("s_memrealtime s[76:77]"); a("s_waitcnt lgkmcnt(0)"); a("s_mov_b32 s%d, s76" % (80 + i))
def stamp_init(a):
    if not DIAG: return
    for i in range(NST): a("s_mov_b32 s%d, 0" % (80 + i))
def stamp_store(a):
    if not DIAG: return
    a("s_waitcnt vmcnt(0)")
    a("s_mov_b32 s38, 0x4000000")
    a("v_lshrrev_b32 v1, 6, v0"); a("s_lshl_b32 s78, s2, 4"); a("v_add_u32 v1, s78, v1")
    a("v_lshlrev_b32 v1, 6, v1"); a("v_add_u32 v1, 0x3000000, v1")
    for i in range(NST):
        a("v_mov_b32 v2, s%d" % (80 + i))
        a("buffer_store_dword v2, v1, s[36:39], 0 offen offset:%d" % (4 * i))

def srd(a, dst, ptr, size):
    a("s_mov_b32 s%d, s%d" % (dst, ptr))
    a("s_and_b32 s%d, s%d, 0xffff" % (dst + 1, ptr + 1))
    a("s_mov_b32 s%d, 0x%x" % (dst + 2, size))
    a("s_mov_b32 s%d, 0x20000" % (dst + 3))

def lds_arrive(a, addr, va=1, vb=3):
    a("v_mov_b32 v%d, %d" % (va, addr)); a("v_mov_b32 v%d, 1" % vb)
    a("s_mov_b64 exec, 1"); a("ds_add_u32 v%d, v%d" % (va, vb)); a("s_mov_b64 exec, -1")
def lds_set(a, addr, va=1, vb=3):
    a("v_mov_b32 v%d, %d" % (va, addr)); a("v_mov_b32 v%d, 1" % vb)
    a("ds_write_b32 v%d, v%d" % (va, vb)); a("s_waitcnt lgkmcnt(0)")
def lds_spin(a, addr, target, va=1, vb=3, st=56, sleep=True):
    l = a.uid("Lspin")
    a("v_mov_b32 v%d, %d" % (va, addr))
    a.label(l)
    a("ds_read_b32 v%d, v%d" % (vb, va)); a("s_waitcnt lgkmcnt(0)")
    a("v_readfirstlane_b32 s%d, v%d" % (st, vb))
    a("s_cmp_ge_u32 s%d, %d" % (st, target))
    a("s_cbranch_scc1 %s_x" % l)
    a("s_sleep 1")
    a("s_branch %s" % l)
    a.label(l + "_x")
def soft_barrier(a, addr, n, va=1, vb=3):
    lds_arrive(a, addr, va, vb)
    lds_spin(a, addr, n, va, vb, sleep=False)
def poll_global(a, voff, vtgt, vt=3, sb=57, slp=None):
    if slp is None: slp = 2 if 'slp2' in EXP else (4 if 'slp4' in EXP else (16 if 'slp16' in EXP else 3))
    l = a.uid("Lpoll")
    a("s_mov_b32 s%d, %d" % (sb, SPIN_MAX))
    a.label(l)
    a("buffer_load_dword v%d, v%d, s[36:39], 0 offen sc1" % (vt, voff))
    a("s_waitcnt vmcnt(0)")
    a("v_cmp_lt_u32 vcc, v%d, v%d" % (vt, vtgt))
    a("s_nop 3")
    a("s_cmp_eq_u64 vcc, 0")
    a("s_cbranch_scc1 %s_x" % l)
    a("s_sleep %d" % slp)
    a("s_sub_u32 s%d, s%d, 1" % (sb, sb))
    a("s_cmp_lg_u32 s%d, 0" % sb)
    a("s_cbranch_scc1 %s" % l)
    a.label(l + "_x")
def atomic_inc(a, sidx, va=1, vb=3):
    a("s_lshl_b32 s57, s%d, 7" % sidx); a("s_add_u32 s57, s57, 0x%x" % OFF_CNT)
    a("v_mov_b32 v%d, s57" % va); a("v_mov_b32 v%d, 1" % vb)
    a("s_mov_b64 exec, 1")
    a("buffer_atomic_add v%d, v%d, s[36:39], 0 offen sc1" % (vb, va))
    a("s_mov_b64 exec, -1")

def hloads(a):
    l = a.uid("Lh")
    a("s_lshl_b32 s61, s43, 8"); a("s_add_u32 s61, s61, s2")
    a("s_cmp_eq_u32 s43, 2"); a("s_cbranch_scc0 %s" % (lbl := a.uid("Lch")))
    a("s_add_u32 s61, s2, 320"); a("s_cmp_lt_u32 s2, 192"); a("s_cselect_b32 s61, 0xffff, s61")
    a.label(lbl)
    a("s_cmp_ge_u32 s61, 576"); a("s_cselect_b32 s58, 1, 0"); a("s_cmp_eq_u32 s42, 11"); a("s_cselect_b32 s58, 1, s58")
    a("s_load_dwordx2 s[62:63], s[0:1], 56")
    a("v_lshlrev_b32 v118, 4, v2"); a("v_subrev_u32 v119, 32, v118")
    a("s_waitcnt lgkmcnt(0)")
    a("s_min_u32 s61, s61, 575")
    a("s_lshl_b32 s56, s61, 12")
    a("s_add_u32 s64, s62, s56"); a("s_addc_u32 s65, s63, 0"); a("s_and_b32 s65, s65, 0xffff")
    a("s_mov_b32 s66, 4096"); a("s_mov_b32 s67, 0x20000")
    a("s_cmp_eq_u32 s58, 1"); a("s_cbranch_scc1 %s" % l)
    for it in range(5):
        if it == 0:
            a("buffer_load_dwordx4 v[120:123], v119, s[64:67], 0 offen")
            a("v_add_u32 v117, 16, v119")
            a("buffer_load_dword v124, v117, s[64:67], 0 offen")
        else:
            a("v_add_u32 v117, %d, v119" % (1024 * it))
            a("buffer_load_dwordx4 %s, v117, s[64:67], 0 offen" % v(120 + 8 * it, 4))
            a("buffer_load_dword v%d, v117, s[64:67], 0 offen offset:16" % (124 + 8 * it))
    a.label(l)
def hstores(a):
    l = a.uid("Lhs")
    a("s_cmp_eq_u32 s58, 1"); a("s_cbranch_scc1 %s" % l)
    a("s_mul_i32 s62, s61, %d" % (2 * HP_ROW)); a("s_add_u32 s62, s62, 0x%x" % OFF_HP); a("s_add_u32 s63, s62, %d" % HP_ROW)
    for it in range(5):
        b = 120 + 8 * it; t = 160 + 4 * (it & 1)
        for k in range(4): a("v_alignbit_b32 v%d, v%d, v%d, 16" % (t + k, b + k + 1, b + k))
        if it < 4:
            a("buffer_store_dwordx4 %s, v118, s[36:39], s62 offen offset:%d" % (v(b, 4), 1024 * it))
            a("buffer_store_dwordx4 %s, v118, s[36:39], s63 offen offset:%d" % (v(t, 4), 1024 * it))
        else:
            a("s_add_u32 s56, s62, 4096"); a("buffer_store_dwordx4 %s, v118, s[36:39], s56 offen" % v(b, 4))
            a("s_add_u32 s56, s63, 4096"); a("buffer_store_dwordx4 %s, v118, s[36:39], s56 offen" % v(t, 4))
        a("s_nop 1")
    a.label(l)

def phase1(a):
    a("s_load_dwordx4 s[4:7], s[0:1], 0")
    a("s_load_dwordx4 s[8:11], s[0:1], 32")
    a("s_load_dwordx2 s[12:13], s[0:1], 48")
    a("s_load_dwordx2 s[14:15], s[0:1], 96")
    a("s_and_b32 s40, s2, 1"); a("s_lshl_b32 s40, s40, 3")
    a("s_lshr_b32 s43, s2, 3"); a("s_and_b32 s43, s43, 7")
    a("s_add_u32 s40, s40, s43")
    a("s_lshr_b32 s41, s2, 1"); a("s_and_b32 s41, s41, 3"); a("s_lshl_b32 s41, s41, 2")
    a("s_lshr_b32 s43, s2, 6"); a("s_add_u32 s41, s41, s43")
    a("v_lshrrev_b32 v1, 6, v0")
    a("v_and_b32 v2, 63, v0")
    a("v_readfirstlane_b32 s42, v1")
    a("v_and_b32 v3, 15, v2")
    a("v_lshrrev_b32 v4, 4, v2")
    a("s_waitcnt lgkmcnt(0)")
    srd(a, 36, 14, WS_SRD_SIZE)
    stamp_init(a); stamp(a, 0)
    a("s_cmp_ge_u32 s42, 8")
    a("s_cbranch_scc1 L1_side")
    srd(a, 16, 4, 2048 * 1152)
    srd(a, 20, 6, 576 * 3456)
    a("v_lshrrev_b32 v5, 3, v2"); a("v_and_b32 v6, 7, v2")
    a("s_lshl_b32 s43, s41, 7"); a("s_lshl_b32 s44, s42, 4"); a("s_add_u32 s43, s43, s44")
    a("v_add_u32 v5, s43, v5")
    a("s_movk_i32 s44, 1152")
    a("v_mul_lo_u32 v5, v5, s44")
    a("v_xor_b32 v7, v6, v4")
    a("v_lshl_add_u32 v8, v7, 4, v5")
    a("v_xor_b32 v7, 4, v7")
    a("v_lshl_add_u32 v9, v7, 4, v5")
    a("v_add_u32 v9, 9216, v9")
    a("s_and_b32 s44, s42, 1"); a("s_lshl_b32 s44, s44, 3")
    a("v_lshlrev_b32 v5, 1, v4"); a("v_add_u32 v5, s44, v5"); a("v_xor_b32 v5, v5, v3")
    a("v_min_u32 v5, 13, v5")
    a("s_movk_i32 s44, 3456")
    a("v_mul_lo_u32 v6, v4, s44")
    a("v_lshl_add_u32 v10, v5, 4, v6")
    a("s_mul_i32 s45, s40, 216"); a("s_mul_i32 s46, s42, 8*3456"); a("s_add_u32 s46, s46, s45")
    a("s_mov_b32 s47, 0")
    a("s_lshl_b32 s48, s42, 11")
    def dma_groups():
        g0 = ["s_mov_b32 m0, s48", "s_add_u32 s49, s48, 1024", "buffer_load_dwordx4 v8, s[16:19], s47 offen lds"]
        g1 = ["s_mov_b32 m0, s49", "s_add_u32 s49, s48, 16384", "buffer_load_dwordx4 v9, s[16:19], s47 offen lds"]
        g2 = ["s_mov_b32 m0, s49", "s_add_u32 s49, s48, 17408", "buffer_load_dwordx4 v10, s[20:23], s46 offen lds"]
        g3 = ["s_mov_b32 m0, s49", "s_add_u32 s50, s46, 4*3456", "buffer_load_dwordx4 v10, s[20:23], s50 offen lds",
              "s_add_u32 s46, s46, 64*3456", "s_add_u32 s47, s47, 128", "s_add_u32 s48, s48, 32768", "s_and_b32 s48, s48, 0x1ffff"]
        return [g0, g1, g2, g3]
    def dma_stage():
        for g in dma_groups():
            for x in g: a(x)
    dma_stage()
    a("s_and_b32 s51, s42, 3"); a("s_lshr_b32 s52, s42, 2")
    a("s_lshl_b32 s44, s51, 5")
    a("v_add_u32 v5, s44, v3"); a("v_lshlrev_b32 v5, 7, v5")
    a("v_lshrrev_b32 v6, 1, v3"); a("v_xor_b32 v6, v6, v4")
    a("v_lshl_add_u32 v11, v6, 4, v5")
    a("v_xor_b32 v12, 64, v11")
    a("v_add_u32 v13, 0x10000, v11"); a("v_add_u32 v14, 0x10000, v12")
    AW = 16
    a("v_lshrrev_b32 v6, 2, v2"); a("v_and_b32 v6, 3, v6"); a("v_and_b32 v7, 3, v2")
    a("v_lshl_add_u32 v1, v4, 3, v6"); a("v_lshlrev_b32 v1, 8, v1")
    a("v_and_b32 v5, 1, v7"); a("v_lshl_add_u32 v1, v5, 3, v1")
    a("v_lshrrev_b32 v7, 1, v7"); a("v_lshl_add_u32 v1, v7, 4, v1")
    a("v_add_u32 v1, 16384, v1")
    a("v_and_b32 v5, 1, v4"); a("v_lshlrev_b32 v5, 3, v5"); a("v_lshl_add_u32 v5, v6, 1, v5")
    a("s_lshl_b32 s44, s52, 3")
    for i in range(4):
        a("s_add_u32 s45, s44, %d" % (2 * i))
        a("v_xor_b32 v6, s45, v5")
        a("v_lshl_add_u32 v%d, v6, 4, v1" % (AW + i))
        a("v_add_u32 v%d, 0x10000, v%d" % (AW + 4 + i, AW + i))
    dma_stage()
    ACC, AF, BF = 32, 64, 96
    TA_, TS_ = 112, 120
    a("s_lshl_b32 s44, s51, 5")
    a("v_add_u32 v5, s44, v3")
    a("s_movk_i32 s44, 304")
    a("v_mul_lo_u32 v5, v5, s44")
    a("s_mul_i32 s44, s40, 6"); a("s_sub_i32 s44, 32, s44"); a("s_max_i32 s44, s44, 0"); a("s_min_i32 s44, s44, 6")
    a("s_mul_i32 s54, s44, 18")
    a("s_lshl_b32 s55, s52, 6")
    a("v_lshl_add_u32 v6, v4, 2, s55")
    a("s_movk_i32 s56, 3641")
    a("v_mov_b32 v24, 1.0")
    a("v_mov_b32 v25, 0x%x" % f32bits(QSCALE))
    for i in range(4):
        for p in range(2):
            k = 2 * i + p
            a("v_add_u32 v26, %d, v6" % (16 * i + 2 * p))
            a("v_min_u32 v26, 110, v26")
            a("v_mul_u32_u24 v27, s56, v26")
            a("v_cmp_gt_u32 vcc, s54, v26")
            a("v_lshrrev_b32 v27, 16, v27")
            a("v_mul_u32_u24 v27, 12, v27")
            a("v_cndmask_b32 v%d, v24, v25, vcc" % (TS_ + k))
            a("v_lshl_add_u32 v27, v26, 1, v27")
            a("v_add_u32 v%d, v27, v5" % (TA_ + k))
            a("v_add_u32 v%d, %d, v%d" % (TA_ + k, TB_, TA_ + k))
    dma_stage()
    def reads(u):
        st, kk = divmod(u, 2)
        slot = st & 3; hi = slot >> 1; off = (slot & 1) * 32768; buf = u & 1
        out = []
        bb = (13 if hi else 11) + kk
        out.append("ds_read_b128 %s, v%d offset:%d" % (v(BF + 8 * buf, 4), bb, off))
        out.append("ds_read_b128 %s, v%d offset:%d" % (v(BF + 8 * buf + 4, 4), bb, off + 2048))
        for i in range(4):
            ar = AW + 4 * hi + i
            out.append("ds_read_b64_tr_b16 %s, v%d offset:%d" % (v(AF + 16 * buf + 4 * i, 2), ar, off + kk * 8192))
            out.append("ds_read_b64_tr_b16 %s, v%d offset:%d" % (v(AF + 16 * buf + 4 * i + 2, 2), ar, off + kk * 8192 + 1024))
        if "p1halfA" in EXP: out = [x if (k < 2 or k % 2 == 0) else "ds_read_b32 v31, v28" for k, x in enumerate(out)]
        if "p1noA" in EXP: out = [x if k < 2 else "ds_read_b32 v31, v28" for k, x in enumerate(out)]
        return out
    def mf(u, j):
        buf = u & 1; i, n = j >> 1, j & 1
        c = "0" if u == 0 else v(ACC + 8 * i + 4 * n, 4)
        if "p1nomfma" in EXP and j >= 2: return
        a("v_mfma_f32_16x16x32_bf16 %s, %s, %s, %s" % (v(ACC + 8 * i + 4 * n, 4), v(AF + 16 * buf + 4 * i, 4), v(BF + 8 * buf + 4 * n, 4), c))
    stamp(a, 1)
    a("s_barrier")
    GA, GO_, GP = 28, 29, 30
    a("v_mov_b32 v%d, %d" % (GA, SBG)); a("v_mov_b32 v%d, 1" % GO_)
    def arrive():
        a("s_mov_b64 exec, 1"); a("ds_add_u32 v%d, v%d" % (GA, GO_)); a("s_mov_b64 exec, -1")
    def check(target, tag):
        a("v_readfirstlane_b32 s53, v%d" % GP)
        a("s_cmp_ge_u32 s53, %d" % target); a("s_cbranch_scc1 L1_ok%s" % tag)
        a.label("L1_sp%s" % tag)
        a("ds_read_b32 v%d, v%d" % (GP, GA)); a("s_waitcnt lgkmcnt(0)")
        a("v_readfirstlane_b32 s53, v%d" % GP)
        a("s_cmp_ge_u32 s53, %d" % target); a("s_cbranch_scc1 L1_ok%s" % tag)
        a("s_sleep 1"); a("s_branch L1_sp%s" % tag)
        a.label("L1_ok%s" % tag)
    a("s_waitcnt vmcnt(8)")
    arrive()
    a("ds_read_b32 v%d, v%d" % (GP, GA)); a("s_waitcnt lgkmcnt(0)")
    check(8, "0")
    if RT: stamp(a, 14)
    for x in reads(0): a(x)
    NU = 18
    for u in range(NU):
        st, kk = divmod(u, 2)
        last = (u == NU - 1)
        dg = []
        extra = 0
        if kk == 0 and st < 8:
            a("s_waitcnt vmcnt(%d)" % (4 if st <= 6 else 0))
            arrive(); extra = 1
        if kk == 1:
            a("s_waitcnt lgkmcnt(0)")
            if not last:
                check(8 * (st + 2), str(st + 1))
                if RT and st == 3: stamp(a, 15)
                if st + 3 <= 8: dg = dma_groups()
        nr = [] if last else reads(u + 1)
        if kk == 0: waits = {0: 6 + extra, 2: 8 + extra, 4: 10 + extra, 6: 10 + 2 * extra}
        else: waits = {}
        for j in range(8):
            if j in waits: a("s_waitcnt lgkmcnt(%d)" % waits[j])
            mf(u, j)
            if j < 5 and nr:
                a(nr[2 * j]); a(nr[2 * j + 1])
                if j == 4 and kk == 0 and st < 8: a("ds_read_b32 v%d, v%d" % (GP, GA))
            if dg and j >= 4:
                for x in dg[j - 4]: a(x)
    stamp(a, 2)
    lds_arrive(a, SB1, 1, 5)
    for i in range(4):
        for p in range(2):
            k = 2 * i + p
            for n in range(2):
                r0 = ACC + 8 * i + 4 * n + 2 * p
                a("v_mul_f32 v%d, v%d, v%d" % (r0, TS_ + k, r0))
                a("v_mul_f32 v%d, v%d, v%d" % (r0 + 1, TS_ + k, r0 + 1))
    for i in range(4):
        for p in range(2):
            for n in range(2):
                r0 = ACC + 8 * i + 4 * n + 2 * p
                a("v_cvt_pk_bf16_f32 v%d, v%d, v%d" % (r0, r0, r0 + 1))
    for i in range(4):
        for p in range(2):
            k = 2 * i + p
            for n in range(2):
                r0 = ACC + 8 * i + 4 * n + 2 * p
                a("ds_write_b32 v%d, v%d offset:%d" % (TA_ + k, r0, n * 16 * 304))
    a("s_waitcnt lgkmcnt(0)")
    a("s_branch L1_out")

    a.label("L1_side")
    a("s_sub_u32 s43, s42, 8")
    a("s_cmp_lg_u32 s42, 8")
    a("s_cbranch_scc1 L1_noflag")
    a("v_lshlrev_b32 v1, 2, v2"); a("v_add_u32 v1, %d, v1" % LDS_FLAG)
    a("v_mov_b32 v5, 0"); a("v_mov_b32 v6, 2")
    a("v_cmp_le_u32 vcc, 4, v2"); a("s_nop 1"); a("v_cndmask_b32 v5, v5, v6, vcc")
    a("v_cmp_le_u32 vcc, 8, v2"); a("v_mov_b32 v6, 0"); a("s_nop 0"); a("v_cndmask_b32 v5, v5, v6, vcc")
    a("s_mov_b32 exec_hi, 0")
    a("ds_write_b32 v1, v5")
    a("s_mov_b64 exec, -1")
    a.label("L1_noflag")
    a("s_waitcnt lgkmcnt(0)")
    a("s_barrier")
    a("s_cmp_eq_u32 s42, 11")
    a("s_cbranch_scc0 L1_kv")
    a("s_load_dwordx2 s[16:17], s[0:1], 88")
    a("s_waitcnt lgkmcnt(0)")
    srd(a, 20, 16, 256)
    a("s_cmp_lg_u32 s2, 0")
    a("s_cbranch_scc1 L1_noinit")
    a("v_lshlrev_b32 v1, 7, v2"); a("v_add_u32 v1, 0x%x, v1" % OFF_CNT); a("v_mov_b32 v5, 0")
    for q in range(4):
        a("buffer_store_dword v5, v1, s[36:39], 0 offen sc1")
        a("v_add_u32 v1, 8192, v1")
    a("s_waitcnt vmcnt(0)")
    a("v_mov_b32 v1, 0"); a("v_mov_b32 v5, 1")
    a("s_mov_b64 exec, 1")
    a("buffer_store_dword v5, v1, s[20:23], 0 offen sc1")
    a("s_mov_b64 exec, -1")
    a.label("L1_noinit")
    a("v_mov_b32 v28, 0"); a("s_mov_b32 s57, %d" % SPIN_MAX)
    a.label("L1_ip")
    a("buffer_load_dword v7, v28, s[20:23], 0 offen sc1"); a("s_waitcnt vmcnt(0)"); a("v_readfirstlane_b32 s56, v7")
    a("s_cmp_eq_u32 s56, 1"); a("s_cbranch_scc1 L1_ipx")
    a("s_sleep 8"); a("s_sub_u32 s57, s57, 1"); a("s_cmp_lg_u32 s57, 0"); a("s_cbranch_scc1 L1_ip")
    a.label("L1_ipx")
    lds_set(a, INITOK, 1, 7)
    loader(a)
    stamp(a, 6)
    a("s_setprio 1")
    a("s_load_dwordx2 s[4:5], s[0:1], 0"); a("s_load_dwordx2 s[16:17], s[0:1], 16"); a("s_load_dwordx2 s[18:19], s[0:1], 72")
    a("s_waitcnt lgkmcnt(0)")
    srd(a, 24, 4, 2048 * 1152); srd(a, 28, 18, 1152); srd(a, 32, 16, 576 * 1152)
    a("v_and_b32 v3, 15, v2"); a("v_lshrrev_b32 v4, 4, v2")
    a("v_lshrrev_b32 v5, 3, v2"); a("v_and_b32 v6, 7, v2")
    a("s_lshl_b32 s45, s2, 3"); a("v_add_u32 v9, s45, v5")
    a("v_mul_u32_u24 v7, 1152, v9"); a("v_lshlrev_b32 v8, 4, v6"); a("v_add_u32 v7, v7, v8")
    a("v_mul_u32_u24 v120, 8*1152, v4"); a("v_lshl_add_u32 v120, v3, 1, v120"); a("v_add_u32 v121, 4608, v120"); a("v_lshlrev_b32 v122, 4, v2")
    for c in range(9):
        a("buffer_load_dwordx4 %s, v7, s[24:27], 0 offen offset:%d" % (v(12 + 4 * c, 4), 128 * c))
        a("buffer_load_dwordx4 %s, v8, s[28:31], 0 offen offset:%d" % (v(48 + 4 * c, 4), 128 * c))
    for r in range(3):
        a("s_add_u32 s45, s2, %d" % (256 * r))
        a("s_mul_hi_u32 s46, s45, 0x%x" % ((1 << 32) // 18 + 1))
        a("s_mul_i32 s47, s46, 18"); a("s_sub_u32 s47, s45, s47")
        a("s_mul_i32 s47, s47, 32*1152"); a("s_lshl_b32 s46, s46, 5"); a("s_add_u32 s47, s47, s46")
        a("s_cmp_lt_u32 s45, 648"); a("s_cselect_b32 s47, s47, 0")
        for j in range(8):
            a("buffer_load_ushort v%d, v%d, s[32:35], s47 offen offset:%d" % (92 + 8 * r + j, 120 if j < 4 else 121, 1152 * (j % 4)))
    a("s_waitcnt vmcnt(0)")
    a("v_mov_b32 v84, 0")
    for r in range(36): a("v_dot2_f32_bf16 v84, v%d, v%d, v84" % (12 + r, 48 + r))
    a("s_nop 3")
    for d in (1, 2, 4):
        a("s_nop 1")
        if d == 1: a("v_mov_b32_dpp v85, v84 quad_perm:[1,0,3,2] row_mask:0xf bank_mask:0xf")
        elif d == 2: a("v_mov_b32_dpp v85, v84 quad_perm:[2,3,0,1] row_mask:0xf bank_mask:0xf")
        else: a("v_mov_b32_dpp v85, v84 row_half_mirror row_mask:0xf bank_mask:0xf")
        a("s_nop 1")
        a("v_add_f32 v84, v84, v85")
    a("v_mul_f32 v84, 0xbfb8aa3b, v84"); a("v_exp_f32 v84, v84"); a("s_nop 0")
    a("v_add_f32 v84, 1.0, v84"); a("v_rcp_f32 v84, v84")
    a("v_lshlrev_b32 v85, 2, v9"); a("v_mov_b32 v86, 0x%x" % OOB)
    a("v_cmp_eq_u32 vcc, 0, v6"); a("s_mov_b32 s46, 0x%x" % OFF_G); a("s_nop 0")
    a("v_cndmask_b32 v85, v86, v85, vcc")
    a("buffer_store_dword v84, v85, s[36:39], s46 offen sc1")
    for r in range(3):
        for j in range(4): a("v_lshl_or_b32 v%d, v%d, 16, v%d" % (124 + 4 * r + j, 93 + 8 * r + 2 * j, 92 + 8 * r + 2 * j))
        a("s_add_u32 s45, s2, %d" % (256 * r))
        a("s_lshl_b32 s46, s45, 10"); a("s_add_u32 s46, s46, 0x%x" % OFF_WOF)
        a("s_cmp_lt_u32 s45, 648"); a("s_cbranch_scc0 L1_nw%d" % r)
        a("buffer_store_dwordx4 %s, v122, s[36:39], s46 offen sc1" % v(124 + 4 * r, 4))
        a.label("L1_nw%d" % r)
    a("s_waitcnt vmcnt(0)")
    a("s_mov_b32 s45, %d" % C4)
    atomic_inc(a, 45, 1, 4)
    a("s_branch L_fin")
    a.label("L1_kv")
    if "atFA" in EXP: lds_spin(a, FA, 8, 1, 7)
    elif "early" in EXP: lds_spin(a, INITOK, 1, 1, 7)
    elif "atG1" in EXP: lds_spin(a, SB3, 8, 1, 7)
    elif "atGO1" in EXP: lds_spin(a, GO1, 1, 1, 7)
    elif "atB6" in EXP: lds_spin(a, SBG, 8 * 7, 1, 7)
    else: lds_spin(a, FA, 8, 1, 7)
    a("s_setprio 3")
    srd(a, 24, 8, 2048 * 1152); srd(a, 28, 10, 2048 * 1152); srd(a, 32, 12, 576 * 8)
    a("s_mul_hi_u32 s44, s2, 0x%x" % ((1 << 32) // 12 + 1))
    a("s_mul_i32 s45, s44, 12"); a("s_sub_u32 s45, s2, s45")
    a("s_lshl_b32 s46, s43, 6"); a("v_add_u32 v8, s46, v2")
    a("s_movk_i32 s46, 5462"); a("v_mul_u32_u24 v9, s46, v8"); a("v_lshrrev_b32 v9, 16, v9")
    a("v_mul_u32_u24 v10, 12, v9"); a("v_sub_u32 v10, v8, v10")
    a("s_lshl_b32 s46, s44, 7"); a("v_lshl_add_u32 v11, v9, 3, s46")
    a("s_mul_i32 s46, s45, 96"); a("v_lshl_add_u32 v12, v10, 3, s46")
    a("s_movk_i32 s46, 1152")
    a("v_mul_lo_u32 v13, v11, s46"); a("v_add_u32 v13, v13, v12")
    a("v_subrev_u32 v14, 3456, v13")
    a("v_mov_b32 v15, 0x%x" % OOB)
    a("v_cmp_eq_u32 vcc, 0, v11")
    a("s_mul_i32 s46, s45, 384"); a("v_lshl_add_u32 v16, v10, 5, s46")
    a("v_cndmask_b32 v14, v14, v15, vcc")
    a("s_mul_i32 s46, s45, 48"); a("v_lshl_add_u32 v17, v10, 2, s46"); a("v_lshlrev_b32 v17, 12, v17")
    a("v_sub_u32 v18, 15, v9"); a("v_lshl_add_u32 v17, v18, 4, v17")
    a("s_lshl_b32 s47, s44, 8"); a("s_sub_u32 s47, 3840, s47"); a("s_add_u32 s47, s47, 0x%x" % OFF_URT)
    a("s_cmp_lt_u32 s2, 192"); a("s_cbranch_scc1 L1_kvact")
    a("v_mov_b32 v13, v15"); a("v_mov_b32 v14, v15"); a("v_mov_b32 v16, v15"); a("v_mov_b32 v17, v15"); a("s_mov_b32 s47, 0")
    a.label("L1_kvact")
    KR, VR, WR = 32, 54, 70
    a("s_movk_i32 s48, 4608")
    for i in range(3): a("buffer_load_dwordx2 %s, v14, s[24:27], 0 offen offset:%d" % (v(KR + 2 * i, 2), 1152 * i))
    for i in range(8): a("buffer_load_dwordx2 %s, v13, s[24:27], %s offen offset:%d" % (v(KR + 6 + 2 * i, 2), "0" if i < 4 else "s48", 1152 * (i % 4)))
    a("buffer_load_dwordx4 %s, v16, s[32:35], 0 offen" % v(WR, 4)); a("buffer_load_dwordx4 %s, v16, s[32:35], 0 offen offset:16" % v(WR + 4, 4))
    for i in range(8): a("buffer_load_dwordx2 %s, v13, s[28:31], %s offen offset:%d" % (v(VR + 2 * i, 2), "0" if i < 4 else "s48", 1152 * (i % 4)))
    stamp(a, 1)
    hloads(a)
    a("s_waitcnt vmcnt(0)")
    stamp(a, 2)
    if "stFA" in EXP: lds_spin(a, FA, 8, 1, 7)
    WF, KF, PK = 80, 96, 140
    hstores(a)
    for c in range(4):
        for p in range(2):
            src = WR + 2 * c + p
            a("v_lshlrev_b32 v%d, 16, v%d" % (WF + 4 * c + 2 * p, src))
            a("v_and_b32 v%d, 0xffff0000, v%d" % (WF + 4 * c + 2 * p + 1, src))
    for c in range(4):
        for i in range(11):
            src = KR + 2 * i + (c >> 1)
            if c & 1: a("v_and_b32 v%d, 0xffff0000, v%d" % (KF + i, src))
            else: a("v_lshlrev_b32 v%d, 16, v%d" % (KF + i, src))
        R_ = 108
        for i in range(8): a("v_mul_f32 v%d, v%d, v%d" % (R_ + i, KF + i, WF + 4 * c + 3))
        for t in (2, 1, 0):
            for i in range(8): a("v_fmac_f32 v%d, v%d, v%d" % (R_ + i, KF + i + 3 - t, WF + 4 * c + t))
        for i in range(8):
            src = VR + 2 * i + (c >> 1)
            if c & 1: a("v_and_b32 v%d, 0xffff0000, v%d" % (KF + i, src))
            else: a("v_lshlrev_b32 v%d, 16, v%d" % (KF + i, src))
        for i in range(8): a("v_mul_f32 v%d, v%d, v%d" % (R_ + i, R_ + i, KF + i))
        for e in range(4): a("v_cvt_pk_bf16_f32 v%d, v%d, v%d" % (PK + 4 * c + e, R_ + 7 - 2 * e, R_ + 6 - 2 * e))
        a("s_add_u32 s46, s47, %d" % (4096 * c))
        a("buffer_store_dwordx4 %s, v17, s[36:39], s46 offen sc1" % v(PK + 4 * c, 4))
    stamp(a, 3)
    a("s_waitcnt vmcnt(0)")
    stamp(a, 4)
    lds_arrive(a, SB4, 1, 4)
    a("s_cmp_lg_u32 s42, 8"); a("s_cbranch_scc1 L2_conv")
    a("s_cmp_lt_u32 s2, 192"); a("s_cbranch_scc0 L2_conv")
    lds_spin(a, SB4, 3, 1, 4)
    a("s_add_u32 s45, s45, %d" % C2)
    atomic_inc(a, 45, 1, 4)
    a("s_branch L2_conv")
    a.label("L1_out")
    soft_barrier(a, SB2, 8, 1, 5)
    stamp(a, 3)
    a("s_cmp_ge_u32 s42, 6")
    a("s_cbranch_scc1 L1_fin")
    a("s_mul_i32 s53, s40, 6"); a("s_add_u32 s53, s53, s42")
    a("s_lshr_b32 s54, s53, 5"); a("s_and_b32 s56, s53, 31")
    a("s_mul_i32 s57, s42, 48"); a("s_add_u32 s57, s57, %d" % TB_)
    a("s_lshr_b32 s50, s41, 1"); a("s_mul_i32 s50, s50, 18432")
    a("s_mul_i32 s51, s56, %d" % KV_HEAD); a("s_add_u32 s50, s50, s51")
    a("s_and_b32 s52, s41, 1")
    a("s_movk_i32 s61, 304")
    a("s_cmp_eq_u32 s54, 2")
    a("s_cbranch_scc1 L1_vout")
    a("s_cmp_eq_u32 s54, 0")
    a("s_cbranch_scc0 L1_kdest")
    a("s_mul_i32 s58, s56, %d" % Q_HEAD); a("s_add_u32 s58, s58, 0x%x" % OFF_Q)
    a("s_lshl_b32 s60, s41, 9"); a("s_add_u32 s59, s58, s60"); a("s_add_u32 s59, s59, 65536")
    a("s_lshl_b32 s60, s41, 12"); a("s_add_u32 s58, s58, s60")
    a("s_branch L1_destdone")
    a.label("L1_kdest")
    a("s_lshl_b32 s60, s52, 9"); a("s_add_u32 s59, s50, s60"); a("s_add_u32 s59, s59, 8192")
    a("s_lshl_b32 s60, s52, 12"); a("s_add_u32 s58, s50, s60")
    a.label("L1_destdone")
    a("v_and_b32 v5, 31, v2"); a("v_lshrrev_b32 v6, 5, v2")
    a("v_mul_lo_u32 v7, v5, s61"); a("v_lshl_add_u32 v7, v6, 4, v7"); a("v_add_u32 v7, s57, v7")
    for i in range(4): a("ds_read_b128 %s, v7 offset:%d" % (v(24 + 4 * i, 4), i * 32 * 304))
    a("v_lshlrev_b32 v8, 2, v5"); a("v_mul_lo_u32 v8, v8, s61"); a("v_add_u32 v8, s57, v8")
    for j in range(4): a("ds_read_b32 v%d, v8 offset:%d" % (40 + j, 32 + 304 * j))
    a("v_lshlrev_b32 v11, 4, v2")
    a("v_mov_b32 v12, 0x%x" % OOB); a("v_cmp_gt_u32 vcc, 32, v2"); a("s_nop 1"); a("v_cndmask_b32 v12, v12, v11, vcc")
    for i in range(4):
        a("s_waitcnt lgkmcnt(%d)" % (7 - i))
        a("buffer_store_dwordx4 %s, v11, s[36:39], s58 offen offset:%d sc1" % (v(24 + 4 * i, 4), 1024 * i))
    a("s_waitcnt lgkmcnt(0)")
    a("buffer_store_dwordx4 v[40:43], v12, s[36:39], s59 offen sc1")
    a("s_branch L1_fin")
    a.label("L1_vout")
    a("v_lshrrev_b32 v9, 2, v2"); a("v_and_b32 v9, 3, v9")
    a("v_and_b32 v10, 1, v4")
    a("v_lshl_add_u32 v9, v10, 2, v9")
    a("v_mul_lo_u32 v9, v9, s61")
    a("v_and_b32 v13, 3, v2"); a("v_lshl_add_u32 v9, v13, 3, v9")
    a("v_lshrrev_b32 v13, 1, v4"); a("v_lshl_add_u32 v9, v13, 5, v9")
    a("v_add_u32 v9, s57, v9")
    a("s_mul_i32 s60, s52, 8*576"); a("s_add_u32 s63, s50, s60"); a("s_add_u32 s63, s63, 9216")
    a("v_lshl_add_u32 v14, v13, 4, v3")
    a("v_mul_u32_u24 v13, 288, v10"); a("v_lshl_add_u32 v13, v14, 4, v13")
    a("v_mov_b32 v15, 0x%x" % OOB); a("v_cmp_le_u32 vcc, 18, v14"); a("s_nop 1"); a("v_cndmask_b32 v13, v13, v15, vcc")
    for half in range(2):
        for b in range(4):
            beta = 4 * half + b
            a("ds_read_b64_tr_b16 %s, v9 offset:%d" % (v(24 + 16 * half + 4 * b, 2), beta * 16 * 304))
            a("ds_read_b64_tr_b16 %s, v9 offset:%d" % (v(26 + 16 * half + 4 * b, 2), beta * 16 * 304 + 8 * 304))
        for b in range(4):
            beta = 4 * half + b
            a("s_waitcnt lgkmcnt(%d)" % (6 - 2 * b))
            a("buffer_store_dwordx4 %s, v13, s[36:39], s63 offen offset:%d sc1" % (v(24 + 16 * half + 4 * b, 4), beta * 576))
    a.label("L1_fin")
    a("s_waitcnt vmcnt(0) lgkmcnt(0)")
    stamp(a, 4)
    soft_barrier(a, SB3, 8, 1, 5)
    a("s_cmp_lg_u32 s42, 0")
    a("s_cbranch_scc1 L2_entry")
    lds_spin(a, INITOK, 1, 1, 5)
    a("s_lshl_b32 s44, s40, 3"); a("s_lshr_b32 s45, s41, 1"); a("s_add_u32 s44, s44, s45")
    atomic_inc(a, 44)
    a.label("L2_entry")

def attn_regs():
    R = {}
    R["QA1"], R["QA2"], R["QB1"], R["QB2"] = 8, 12, 14, 18
    R["SA"], R["SB"] = 20, 36
    R["PA"], R["PB"] = 52, 60
    R["OA"], R["OB"] = 68, 84
    R["K1"] = [100, 104]; R["K2"] = [108, 110]; R["V"] = [112, 120]
    R["NA"], R["NB"] = 128, 144
    return R

def phase2(a):
    R = attn_regs()
    a("s_and_b32 s40, s2, 31"); a("s_lshr_b32 s41, s2, 5")
    a("v_lshlrev_b32 v3, 4, v2")
    a("s_mul_i32 s43, s40, %d" % KV_HEAD)
    a("s_cmp_lg_u32 s42, 0")
    a("s_cbranch_scc1 L2_waitgo")
    a("v_min_u32 v5, 4, v2")
    a("v_add_u32 v6, 1, v5"); a("v_lshrrev_b32 v6, 1, v6")
    a("v_and_b32 v7, 1, v5"); a("v_sub_u32 v7, 2, v7"); a("v_cmp_eq_u32 vcc, 0, v5"); a("v_mov_b32 v8, 0"); a("s_nop 0")
    a("v_cndmask_b32 v7, v7, v8, vcc")
    a("v_lshlrev_b32 v7, 5, v7"); a("v_add_u32 v7, s40, v7"); a("v_mul_u32_u24 v7, 0x2aab, v7"); a("v_lshrrev_b32 v7, 16, v7")
    a("v_subrev_u32 v6, 1, v6"); a("v_mov_b32 v8, s41"); a("v_cndmask_b32 v6, v6, v8, vcc")
    a("v_lshl_add_u32 v5, v7, 3, v6")
    a("v_lshlrev_b32 v5, 7, v5"); a("v_add_u32 v5, 0x%x, v5" % (OFF_CNT + 128 * C1))
    a("v_mov_b32 v6, 2")
    poll_global(a, 5, 6, vt=7)
    lds_set(a, GO1, 1, 7)
    a("s_branch L2_go")
    a.label("L2_waitgo")
    lds_spin(a, GO1, 1, 1, 7)
    a.label("L2_go")
    stamp(a, 5)
    if "prioA" in EXP: a("s_setprio 2")
    elif "prioB" in EXP: pass
    elif "prioC" in EXP:
        a("s_setprio 1"); a("s_cmp_lt_u32 s42, 4"); a("s_cbranch_scc0 L2_young"); a("s_setprio 3"); a.label("L2_young")
    else:
        a("s_cmp_lt_u32 s42, 4"); a("s_cbranch_scc0 L2_young"); a("s_setprio 2"); a.label("L2_young")
    a("s_lshr_b32 s46, s42, 2")
    if "samesimd" in EXP: a("s_and_b32 s45, s42, 3")
    else:
        a("s_mul_i32 s45, s46, 3"); a("s_add_u32 s45, s45, s42"); a("s_and_b32 s45, s45, 3")
    a("s_lshl_b32 s44, s42, 10"); a("s_add_u32 s43, s43, s44")
    a("v_mov_b32 v9, 0x%x" % OOB)
    a("s_cmp_lt_u32 s42, 4"); a("s_cselect_b64 vcc, -1, 0"); a("v_cndmask_b32 v9, v9, v3, vcc")
    for q in range(5):
        a("buffer_load_dwordx4 %s, v%d, s[36:39], s43 offen sc1" % (v(20 + 4 * q, 4), 3 if q < 4 else 9))
        if q < 4: a("s_add_u32 s43, s43, 8192")
    a("s_lshl_b32 s47, s41, 3"); a("s_lshl_b32 s48, s45, 1"); a("s_add_u32 s47, s47, s48")
    a("s_mul_i32 s48, s40, %d" % Q_HEAD); a("s_add_u32 s48, s48, 0x%x" % OFF_Q)
    a("s_lshl_b32 s49, s47, 10"); a("s_add_u32 s49, s49, s48")
    a("s_lshl_b32 s50, s47, 7"); a("s_add_u32 s50, s50, s48"); a("s_add_u32 s50, s50, 65536")
    a("v_and_b32 v4, 31, v2"); a("v_lshrrev_b32 v5, 5, v2"); a("v_lshlrev_b32 v6, 2, v4")
    a("v_mov_b32 v7, 0x%x" % OOB)
    a("v_cmp_eq_u32 vcc, 0, v5")
    a("buffer_load_dwordx4 %s, v3, s[36:39], s49 offen sc1" % v(R["QA1"], 4))
    a("buffer_load_dwordx4 %s, v3, s[36:39], s49 offen offset:1024 sc1" % v(R["QB1"], 4))
    a("v_cndmask_b32 v7, v7, v6, vcc")
    a("buffer_load_dword v%d, v7, s[36:39], s50 offen sc1" % R["QA2"])
    a("buffer_load_dword v%d, v7, s[36:39], s50 offen offset:128 sc1" % R["QB2"])
    a("v_mov_b32 v%d, 0" % (R["QA2"] + 1)); a("v_mov_b32 v%d, 0" % (R["QB2"] + 1))
    a("v_mov_b32 v%d, 0" % (R["K2"][0] + 1)); a("v_mov_b32 v%d, 0" % (R["K2"][1] + 1))
    a("v_mov_b32 v1, 0x3f803f80"); a("v_cmp_eq_u32 vcc, 18, v4"); a("v_mov_b32 v7, 0"); a("s_nop 0")
    a("v_cndmask_b32 v1, v7, v1, vcc")
    for b in range(2):
        for r in range(8): a("v_mov_b32 v%d, v1" % (R["V"][b] + r))
    LK1, LK2, LV = 160, 161, 162
    AK1, AK2, AV = 163, 164, 165
    CA, CO, NX = 166, 167, 7
    a("v_lshlrev_b32 v%d, 4, v2" % LK1)
    a("v_add_u32 v%d, 8192, v6" % LK2)
    a("v_mul_u32_u24 v%d, 288, v5" % LV); a("v_lshl_add_u32 v%d, v4, 4, v%d" % (LV, LV)); a("v_add_u32 v%d, 9216, v%d" % (LV, LV))
    a("s_mov_b32 s52, 0x%x" % VMASK); a("s_mov_b32 s53, 0x%x" % VMASK)
    a("s_mov_b32 s60, 0"); a("s_mov_b32 s61, 2")
    a("s_lshl_b32 s62, s45, 2"); a("s_add_u32 s62, s62, %d" % CNT)
    a("v_mov_b32 v%d, s62" % CA); a("v_mov_b32 v%d, 1" % CO)
    a("v_add_u32 v3, s44, v3")
    for q in range(5):
        a("s_waitcnt vmcnt(%d)" % (4 + 4 - q))
        if q == 4:
            a("s_cmp_ge_u32 s42, 4"); a("s_cbranch_scc1 L2_no5")
        a("ds_write_b128 v3, %s offset:%d" % (v(20 + 4 * q, 4), 8192 * q))
    a.label("L2_no5")
    a("s_waitcnt vmcnt(0) lgkmcnt(0)")
    lds_arrive(a, FA, 1, 3)
    lds_spin(a, FA, 8, 1, 3, sleep=False)
    stamp(a, 6)
    rstamp(a, 14)

    def mS1(S, kb, Q1, N): return "v_mfma_f32_32x32x16_bf16 %s, %s, %s, %s" % (v(S, 16), v(R["K1"][kb], 4), v(Q1, 4), v(N, 16) if USE_NEG else "0")
    def mS2(S, kb, Q2): return "v_mfma_f32_32x32x8_bf16 %s, %s, %s, %s" % (v(S, 16), v(R["K2"][kb], 2), v(Q2, 2), v(S, 16))
    def mP(O, vb, h, P): return "v_mfma_f32_32x32x16_bf16 %s, %s, %s, %s" % (v(O, 16), v(R["V"][vb] + 4 * h, 4), v(P + 4 * h, 4), v(O, 16))
    def phase(S, P, Sn, Q1, Q2, Nn, kb, On, Pn, vb, loads):
        ex = ["v_exp_f32 v%d, v%d" % (S + i, S + i) for i in range(16)]
        cv = ["v_cvt_pk_bf16_f32 v%d, v%d, v%d" % (P + i, S + 2 * i, S + 2 * i + 1) for i in range(8)]
        l0, l1 = loads
        return ([mS1(Sn, kb, Q1, Nn)] + l0 + ex[0:4] + [mP(On, vb, 0, Pn)] + ex[4:6] + cv[0:1] + ex[6:8] + cv[1:2] + l1 + ex[8:9] +
                [mS2(Sn, kb, Q2)] + ex[9:10] + cv[2:3] + ex[10:12] + cv[3:4] + [mP(On, vb, 1, Pn)] + ex[12:14] + cv[4:5] + ex[14:16] + cv[5:8])
    def mainloop(tag, neg):
        global USE_NEG
        USE_NEG = neg
        for r in range(16):
            a("v_mov_b32 v%d, 0" % (R["OA"] + r)); a("v_mov_b32 v%d, 0" % (R["OB"] + r))
        for r in range(8): a("v_mov_b32 v%d, 0" % (R["PB"] + r))
        NT = 4
        def item_bases(q, dk1, dk2, dv):
            a("s_lshr_b32 s56, s%d, 1" % q); a("s_mul_i32 s56, s56, 18432"); a("s_and_b32 s59, s%d, 1" % q)
            a("s_lshl_b32 s%d, s59, 12" % dk1); a("s_add_u32 s%d, s%d, s56" % (dk1, dk1))
            a("s_lshl_b32 s%d, s59, 9" % dk2); a("s_add_u32 s%d, s%d, s56" % (dk2, dk2))
            a("s_mul_i32 s%d, s59, 4608" % dv); a("s_add_u32 s%d, s%d, s56" % (dv, dv))
        a("s_mov_b32 s54, s46")
        item_bases(54, 57, 58, 63)
        a("v_add_u32 v%d, s57, v%d" % (AK1, LK1)); a("v_add_u32 v%d, s58, v%d" % (AK2, LK2)); a("v_add_u32 v%d, s63, v%d" % (AV, LV))
        a("ds_read_b128 %s, v%d" % (v(R["K1"][0], 4), AK1))
        a("ds_read_b32 v%d, v%d" % (R["K2"][0], AK2))
        a("s_waitcnt lgkmcnt(0)")
        a(mS1(R["SA"], 0, R["QA1"], R["NA"]))
        a(mS2(R["SA"], 0, R["QA2"]))
        a("s_nop 7"); a("s_nop 3")
        a.label("L2_stage" + tag)
        body = []
        for i in range(NT):
            kb = i & 1; kn = kb ^ 1; vb = i & 1; vp = vb ^ 1
            off = (i + 1) if i < NT - 1 else 0
            lk = ["ds_read_b128 %s, v%d offset:%d" % (v(R["K1"][kn], 4), AK1, off * 1024),
                  "ds_read_b32 v%d, v%d offset:%d" % (R["K2"][kn], AK2, off * 128)]
            lv = ["s_mov_b64 exec, s[52:53]",
                  "ds_read_b128 %s, v%d offset:%d" % (v(R["V"][vb], 4), AV, (2 * i) * 576),
                  "ds_read_b128 %s, v%d offset:%d" % (v(R["V"][vb] + 4, 4), AV, (2 * i + 1) * 576),
                  "s_mov_b64 exec, -1"]
            if i == NT - 2:
                lv = lv[:-1] + ["s_mov_b64 exec, 1", "ds_add_rtn_u32 v%d, v%d, v%d" % (NX, CA, CO), "s_mov_b64 exec, -1"]
            body += phase(R["SA"], R["PA"], R["SB"], R["QB1"], R["QB2"], R["NB"], kb, R["OB"], R["PB"], vp, (lv, lk))
            body.append("s_waitcnt lgkmcnt(0)")
            if i == NT - 2: body.append("NEXT")
            body += phase(R["SB"], R["PB"], R["SA"], R["QA1"], R["QA2"], R["NA"], kn, R["OA"], R["PA"], vb, ([], []))
        for x in body:
            if x == "NEXT":
                a("v_readfirstlane_b32 s55, v%d" % NX)
                a("s_cmp_lt_u32 s55, 16")
                a("s_cselect_b32 s64, s55, s54")
                a("s_cbranch_scc1 L2_more" + tag); a("s_setprio 3"); a.label("L2_more" + tag)
                item_bases(64, 57, 58, 63)
                a("s_lshr_b32 s64, s64, 1")
                a("s_cmp_lt_u32 s64, s61"); a("s_cbranch_scc1 L2_landed" + tag)
                a("v_mov_b32 v1, %d" % FB)
                a.label("L2_spinL" + tag)
                a("ds_read_b32 v3, v1"); a("s_waitcnt lgkmcnt(0)")
                a("v_readfirstlane_b32 s61, v3")
                a("s_cmp_lt_u32 s64, s61"); a("s_cbranch_scc1 L2_landed" + tag)
                a("s_sleep 1"); a("s_branch L2_spinL" + tag)
                a.label("L2_landed" + tag)
                a("v_add_u32 v%d, s57, v%d" % (AK1, LK1)); a("v_add_u32 v%d, s58, v%d" % (AK2, LK2))
            else:
                a(x)
        a("v_add_u32 v%d, s63, v%d" % (AV, LV))
        a("s_mov_b32 s54, s55")
        a("s_cmp_lt_u32 s54, 16")
        a("s_cbranch_scc1 L2_stage" + tag)
        a(mP(R["OB"], 1, 0, R["PB"])); a(mP(R["OB"], 1, 1, R["PB"]))
    mainloop("0", False)
    stamp(a, 7)
    rstamp(a, 15)
    a("s_nop 7"); a("s_nop 3")
    a("v_mov_b32 v1, 0x21800000"); a("v_mov_b32 v3, 0x5d800000")
    a("v_cmp_le_f32 s[56:57], v1, v%d" % (R["OA"] + 10)); a("v_cmp_ge_f32 s[58:59], v3, v%d" % (R["OA"] + 10))
    a("s_and_b64 s[56:57], s[56:57], s[58:59]")
    a("v_cmp_le_f32 s[58:59], v1, v%d" % (R["OB"] + 10)); a("s_and_b64 s[56:57], s[56:57], s[58:59]")
    a("v_cmp_ge_f32 s[58:59], v3, v%d" % (R["OB"] + 10)); a("s_and_b64 s[56:57], s[56:57], s[58:59]")
    a("s_cmp_eq_u32 s56, -1")
    a("s_cbranch_scc1 L2_ok")
    lds_set(a, FBAD, 1, 3)
    a.label("L2_ok")
    a("s_barrier")
    a("v_mov_b32 v1, %d" % FBAD); a("ds_read_b32 v3, v1"); a("s_waitcnt lgkmcnt(0)")
    a("v_readfirstlane_b32 s56, v3")
    a("s_cmp_eq_u32 s56, 0")
    a("s_cbranch_scc1 L2_exch")
    a("s_mov_b32 s60, 1")
    MA, MB = 166, 167
    a("v_mov_b32 v%d, 0xff800000" % MA); a("v_mov_b32 v%d, 0xff800000" % MB)
    a("s_lshl_b32 s54, s46, 2"); a("s_add_u32 s58, s54, 4")
    a.label("L2_maxstage")
    a("s_mul_i32 s55, s54, 18432")
    a("v_add_u32 v1, s55, v%d" % LK1); a("v_add_u32 v3, s55, v%d" % LK2)
    a("s_mov_b32 s55, 0")
    a.label("L2_maxtile")
    a("ds_read_b128 %s, v1" % v(R["K1"][0], 4)); a("ds_read_b32 v%d, v3" % R["K2"][0])
    a("s_waitcnt lgkmcnt(0)")
    a("v_mfma_f32_32x32x16_bf16 %s, %s, %s, 0" % (v(R["SA"], 16), v(R["K1"][0], 4), v(R["QA1"], 4)))
    a("v_mfma_f32_32x32x16_bf16 %s, %s, %s, 0" % (v(R["SB"], 16), v(R["K1"][0], 4), v(R["QB1"], 4)))
    a(mS2(R["SA"], 0, R["QA2"])); a(mS2(R["SB"], 0, R["QB2"]))
    a("s_nop 7"); a("s_nop 7")
    for r in range(16):
        a("v_max_f32 v%d, v%d, v%d" % (MA, MA, R["SA"] + r)); a("v_max_f32 v%d, v%d, v%d" % (MB, MB, R["SB"] + r))
    a("v_add_u32 v1, 1024, v1"); a("v_add_u32 v3, 128, v3")
    a("s_add_u32 s55, s55, 1"); a("s_cmp_lt_u32 s55, 8"); a("s_cbranch_scc1 L2_maxtile")
    a("s_add_u32 s54, s54, 1"); a("s_cmp_lt_u32 s54, s58"); a("s_cbranch_scc1 L2_maxstage")
    a("v_xor_b32 v1, 32, v2"); a("v_lshlrev_b32 v1, 2, v1")
    a("ds_bpermute_b32 v3, v1, v%d" % MA); a("s_waitcnt lgkmcnt(0)"); a("v_max_f32 v%d, v%d, v3" % (MA, MA))
    a("ds_bpermute_b32 v3, v1, v%d" % MB); a("s_waitcnt lgkmcnt(0)"); a("v_max_f32 v%d, v%d, v3" % (MB, MB))
    a("s_lshl_b32 s55, s2, 2"); a("s_add_u32 s55, s55, s45"); a("s_lshl_b32 s55, s55, 1"); a("s_add_u32 s55, s55, s46"); a("s_lshl_b32 s55, s55, 9"); a("s_add_u32 s55, s55, 0x%x" % OFF_MX)
    a("v_lshlrev_b32 v1, 3, v2")
    a("buffer_store_dwordx2 v[%d:%d], v1, s[36:39], s55 offen sc0 sc1" % (MA, MB))
    a("v_mov_b32 v3, s62"); a("v_mov_b32 v6, 2"); a("ds_write_b32 v3, v6")
    a("s_waitcnt vmcnt(0) lgkmcnt(0)")
    a("s_barrier")
    a("s_xor_b32 s56, s55, 512")
    a("buffer_load_dwordx2 v[6:7], v1, s[36:39], s56 offen sc0 sc1")
    a("s_waitcnt vmcnt(0)")
    a("v_max_f32 v%d, v%d, v6" % (MA, MA)); a("v_max_f32 v%d, v%d, v7" % (MB, MB))
    for r in range(16):
        a("v_sub_f32 v%d, 0, v%d" % (R["NA"] + r, MA)); a("v_sub_f32 v%d, 0, v%d" % (R["NB"] + r, MB))
    a("v_mov_b32 v%d, s62" % CA); a("v_mov_b32 v%d, 1" % CO)
    mainloop("1", True)
    a("s_nop 7"); a("s_nop 3")
    a.label("L2_combine")
    a("s_barrier")
    a.label("L2_exch")
    a("s_mul_i32 s55, s45, 6144")
    a("v_lshlrev_b32 v1, 4, v2"); a("v_add_u32 v1, s55, v1")
    a("s_cmp_eq_u32 s46, 0")
    a("s_cbranch_scc1 L2_recv")
    for t, O in enumerate((R["OA"], R["OB"])):
        for c in range(3): a("ds_write_b128 v1, %s offset:%d" % (v(O + 4 * c, 4), (3 * t + c) * 1024))
    a("s_waitcnt lgkmcnt(0)")
    a("s_barrier")
    a("s_cmp_gt_u32 s42, 5"); a("s_cbranch_scc1 L2_noC4")
    a("s_lshr_b32 s55, s40, 3"); a("s_add_u32 s55, s55, %d" % C3)
    a("s_cmp_eq_u32 s42, 4"); a("s_cselect_b32 s55, %d, s55" % C4); a("s_movk_i32 s56, 144"); a("s_cselect_b32 s56, 256, s56")
    a("s_lshl_b32 s55, s55, 7"); a("s_add_u32 s55, s55, 0x%x" % OFF_CNT)
    a("v_mov_b32 v8, s55"); a("v_mov_b32 v9, s56")
    poll_global(a, 8, 9, vt=10, slp=4)
    lds_arrive(a, GO2A, 8, 9)
    a("s_waitcnt lgkmcnt(0)")
    a.label("L2_noC4")
    a("s_barrier")
    p3_sender_issue(a)
    a("s_branch L2_p3")
    a.label("L2_recv")
    a("s_barrier")
    for t in range(2):
        for c in range(3): a("ds_read_b128 %s, v1 offset:%d" % (v(R["SA"] + 12 * t + 4 * c, 4), (3 * t + c) * 1024))
    a("s_waitcnt lgkmcnt(0)")
    for t, O in enumerate((R["OA"], R["OB"])):
        for r in range(12): a("v_add_f32 v%d, v%d, v%d" % (O + r, O + r, R["SA"] + 12 * t + r))
    for t, O in enumerate((R["OA"], R["OB"])):
        a("v_mov_b32 v%d, v%d" % (52 + 2 * t, O + 10)); a("v_mov_b32 v%d, v%d" % (53 + 2 * t, O + 10))
    a("s_nop 1")
    a("v_permlane32_swap_b32 v52, v53"); a("v_permlane32_swap_b32 v54, v55")
    a("s_nop 1")
    a("v_rcp_f32 v52, v52"); a("v_rcp_f32 v54, v54")
    a("s_lshl_b32 s55, s45, 6")
    a("v_add_u32 v3, s55, v4"); a("v_mul_u32_u24 v3, 36, v3"); a("v_lshl_add_u32 v3, v5, 3, v3"); a("v_add_u32 v3, 32768, v3")
    a("v_cmp_eq_u32 vcc, 0, v5")
    for t, O in enumerate((R["OA"], R["OB"])):
        rc = 52 + 2 * t
        for r in range(10): a("v_mul_f32 v%d, v%d, v%d" % (O + r, O + r, rc))
        for c in range(5): a("v_cvt_pk_bf16_f32 v%d, v%d, v%d" % (56 + 5 * t + c, O + 2 * c, O + 2 * c + 1))
    for t in range(2):
        off = t * 32 * 36; b = 56 + 5 * t
        a("ds_write_b32 v3, v%d offset:%d" % (b, off + 0)); a("ds_write_b32 v3, v%d offset:%d" % (b + 1, off + 4))
        a("ds_write_b32 v3, v%d offset:%d" % (b + 2, off + 16)); a("ds_write_b32 v3, v%d offset:%d" % (b + 3, off + 20))
    a("s_and_saveexec_b64 s[56:57], vcc")
    a("ds_write_b32 v3, v60 offset:32"); a("ds_write_b32 v3, v65 offset:%d" % (32 * 36 + 32))
    a("s_mov_b64 exec, s[56:57]")
    a("s_waitcnt lgkmcnt(0)")
    a("s_barrier")
    a("s_lshl_b32 s55, s42, 10")
    a("v_lshlrev_b32 v1, 4, v2"); a("v_add_u32 v1, s55, v1")
    a("v_add_u32 v3, 32768, v1")
    a("ds_read_b128 v[8:11], v3"); a("ds_read_b128 v[12:15], v3 offset:4096")
    a("s_mul_i32 s57, s40, %d" % O_HEAD); a("s_mul_i32 s58, s41, 9216"); a("s_add_u32 s57, s57, s58"); a("s_add_u32 s57, s57, 0x%x" % OFF_O)
    a("v_add_u32 v6, 4096, v1")
    a("s_cmp_lg_u32 s42, 0")
    a("s_cbranch_scc1 L2_o1")
    a("ds_read_b128 v[16:19], v3 offset:8192")
    a("s_waitcnt lgkmcnt(0)")
    a("v_add_u32 v7, 8192, v1")
    a("buffer_store_dwordx4 v[16:19], v7, s[36:39], s57 offen sc1")
    a.label("L2_o1")
    a("s_waitcnt lgkmcnt(0)")
    a("buffer_store_dwordx4 v[8:11], v1, s[36:39], s57 offen sc1")
    a("buffer_store_dwordx4 v[12:15], v6, s[36:39], s57 offen sc1")
    stamp(a, 8)
    a("s_waitcnt vmcnt(0)")
    lds_arrive(a, SBH, 1, 3)
    a.label("L2_p3")
    stamp(a, 13)
    a("s_setprio 0")
    phase3(a)
    a("s_branch L_fin")

    a.label("L2_conv")
    conv(a)

def loader(a):
    a("s_and_b32 s40, s2, 31"); a("s_mul_i32 s43, s40, %d" % KV_HEAD); a("v_lshlrev_b32 v3, 4, v2")
    a("s_setprio 3")
    lds_spin(a, SB3, 8, 1, 4)
    a("v_and_b32 v5, 1, v2"); a("v_add_u32 v5, 1, v5"); a("v_lshlrev_b32 v5, 5, v5"); a("v_add_u32 v5, s40, v5")
    a("v_mul_u32_u24 v5, 0x2aab, v5"); a("v_lshrrev_b32 v5, 16, v5"); a("v_lshlrev_b32 v5, 10, v5")
    a("v_add_u32 v5, 0x%x, v5" % (OFF_CNT + 128 * C1 + 2 * 128)); a("v_mov_b32 v6, 2")
    a("s_add_u32 s43, s43, 2*18432"); a("v_add_u32 v4, 2*18432, v3")
    a("s_mov_b32 s44, 2")
    a.label("L2_ldstage")
    poll_global(a, 5, 6, vt=7)
    for q in range(18):
        a("buffer_load_dwordx4 %s, v3, s[36:39], s43 offen offset:%d sc1" % (v(8 + 4 * q, 4), (q % 4) * 1024))
        if q % 4 == 3 or q == 17: a("s_add_u32 s43, s43, %d" % (4096 if q % 4 == 3 else 2048))
    for q in range(18):
        a("s_waitcnt vmcnt(%d)" % (17 - q))
        a("ds_write_b128 v4, %s offset:%d" % (v(8 + 4 * q, 4), 1024 * q))
    a("v_add_u32 v4, 18432, v4"); a("v_add_u32 v5, 128, v5")
    a("s_add_u32 s44, s44, 1")
    a("s_waitcnt lgkmcnt(0)")
    a("v_mov_b32 v1, %d" % FB); a("v_mov_b32 v7, s44"); a("ds_write_b32 v1, v7")
    a("s_cmp_lt_u32 s44, 8"); a("s_cbranch_scc1 L2_ldstage")
    a("s_waitcnt lgkmcnt(0)")

def conv(a):
    a("s_sub_u32 s43, s42, 8")
    a("s_lshl_b32 s44, s43, 8"); a("s_add_u32 s44, s44, s2")
    a("s_cmp_eq_u32 s43, 2"); a("s_cbranch_scc0 %s" % (lbl := a.uid("Lch")))
    a("s_add_u32 s44, s2, 320"); a("s_cmp_lt_u32 s2, 192"); a("s_cselect_b32 s44, 0xffff, s44")
    a.label(lbl)
    a("s_cmp_ge_u32 s44, 576")
    a("s_cbranch_scc1 L_fin")
    a("s_load_dwordx2 s[10:11], s[0:1], 64")
    a("s_mul_hi_u32 s45, s44, 0x%x" % ((1 << 32) // 48 + 1)); a("s_add_u32 s45, s45, %d" % C2); a("s_lshl_b32 s45, s45, 7"); a("s_add_u32 s45, s45, 0x%x" % OFF_CNT)
    a("v_mov_b32 v5, s45"); a("v_mov_b32 v6, 16")
    poll_global(a, 5, 6, vt=7, slp=6)
    stamp(a, 6)
    a("v_lshlrev_b32 v3, 4, v2")
    a("s_lshl_b32 s46, s44, 12"); a("s_add_u32 s46, s46, 0x%x" % OFF_URT)
    a("s_mul_i32 s47, s43, 4608"); a("s_add_u32 s47, s47, %d" % LDS_UR)
    for q in range(4): a("buffer_load_dwordx4 %s, v3, s[36:39], s46 offen offset:%d sc1" % (v(8 + 4 * q, 4), 1024 * q))
    a("s_mul_i32 s48, s44, %d" % (2 * HP_ROW)); a("s_add_u32 s48, s48, 0x%x" % OFF_HP)
    a("v_and_b32 v4, 15, v2"); a("v_lshrrev_b32 v5, 4, v2")
    a("v_and_b32 v6, 7, v4"); a("v_lshlrev_b32 v6, 1, v6")
    a("v_lshrrev_b32 v7, 3, v4")
    a("v_lshl_add_u32 v6, v7, 1, v6"); a("v_lshl_add_u32 v6, v5, 3, v6"); a("v_lshlrev_b32 v6, 1, v6")
    a("v_mov_b32 v24, %d" % HP_ROW); a("v_cmp_eq_u32 vcc, 0, v7"); a("v_mov_b32 v25, 0"); a("s_nop 0")
    a("v_cndmask_b32 v24, v25, v24, vcc"); a("v_add_u32 v6, v6, v24")
    a("v_lshlrev_b32 v7, 5, v4"); a("v_lshlrev_b32 v24, 4, v5"); a("v_sub_u32 v7, v24, v7")
    a("v_add_u32 v7, s47, v7"); a("v_add_u32 v7, 4064, v7")
    AF, AG, BF, Y = 16, 112, 48, 80
    for mu in range(8): a("buffer_load_dwordx4 %s, v6, s[36:39], s48 offen offset:%d" % (v(AG + 4 * mu, 4), 512 * mu))
    a("v_add_u32 v26, s47, v3")
    for q in range(4):
        a("s_waitcnt vmcnt(%d)" % (8 + 3 - q))
        a("ds_write_b128 v26, %s offset:%d" % (v(8 + 4 * q, 4), 1024 * q))
    for r in range(4): a("v_mov_b32 v%d, 0" % (28 + r))
    a("s_mov_b32 exec_hi, 0")
    a("ds_write_b128 v26, v[28:31] offset:4096")
    a("s_mov_b64 exec, -1")
    for r in range(32): a("v_mov_b32 v%d, 0" % (Y + r))
    a("s_waitcnt lgkmcnt(0)")
    stamp(a, 8)
    a("s_setprio %d" % (2 if "conv2" in EXP else (0 if "conv0" in EXP else 1)))
    a("s_mov_b32 s51, 0")
    a.label("L2c_rho")
    for half, (cur, nxt) in enumerate(((AG, AF), (AF, AG))):
        a("s_add_u32 s52, s51, %d" % half); a("s_lshl_b32 s52, s52, 6")
        a("v_add_u32 v8, s52, v7"); a("v_subrev_u32 v8, %d, v8" % (512 * 7))
        for sg in range(8): a("ds_read_b128 %s, v8 offset:%d" % (v(BF + 4 * sg, 4), 512 * (7 - sg)))
        a("s_add_u32 s53, s52, 64"); a("s_and_b32 s53, s53, 0x1ff"); a("s_add_u32 s53, s53, s48")
        for mu in range(8): a("buffer_load_dwordx4 %s, v6, s[36:39], s53 offen offset:%d" % (v(nxt + 4 * mu, 4), 512 * mu))
        a("s_waitcnt lgkmcnt(0)")
        for mu in range(8):
            a("s_waitcnt vmcnt(%d)" % (8 + 7 - mu))
            for sg in range(8 - mu):
                t = mu + sg
                a("v_mfma_f32_16x16x32_bf16 %s, %s, %s, %s" % (v(Y + 4 * t, 4), v(cur + 4 * mu, 4), v(BF + 4 * sg, 4), v(Y + 4 * t, 4)))
    a("s_add_u32 s51, s51, 2"); a("s_cmp_lt_u32 s51, 8"); a("s_cbranch_scc1 L2c_rho")
    stamp(a, 9)
    a("s_setprio 3")
    a("s_waitcnt vmcnt(0)")
    a("s_lshl_b32 s52, s44, 1"); a("s_and_b32 s53, s52, 0xfffffffc")
    a("s_add_u32 s54, s10, s53"); a("s_addc_u32 s55, s11, 0")
    a("s_load_dword s56, s[54:55], 0")
    a("s_waitcnt lgkmcnt(0)")
    a("s_and_b32 s57, s52, 2"); a("s_lshl_b32 s57, s57, 3"); a("s_lshr_b32 s56, s56, s57"); a("s_lshl_b32 s56, s56, 16")
    a("v_and_b32 v8, 1, v5"); a("v_lshrrev_b32 v9, 1, v5")
    a("v_lshlrev_b32 v10, 4, v4"); a("v_lshl_add_u32 v10, v8, 3, v10"); a("v_lshl_add_u32 v10, v9, 2, v10")
    a("v_lshlrev_b32 v11, 1, v10")
    a("v_sub_u32 v12, 0, v11"); a("v_add_u32 v12, s47, v12"); a("v_add_u32 v12, %d, v12" % (2 * 2044 - 512 * 7))
    for t in range(8): a("ds_read_b64 %s, v12 offset:%d" % (v(AF + 2 * t, 2), 512 * (7 - t)))
    a("s_lshl_b32 s52, s44, 12"); a("s_add_u32 s52, s52, 0x%x" % OFF_YT)
    a("s_nop 7")
    for t in range(8):
        y = Y + 4 * t
        a("v_permlane32_swap_b32 v%d, v%d" % (y, y + 2)); a("v_permlane32_swap_b32 v%d, v%d" % (y + 1, y + 3))
    a("s_waitcnt lgkmcnt(0)")
    for t in range(8):
        y = Y + 4 * t; u0, u1 = AF + 2 * t, AF + 2 * t + 1
        a("v_and_b32 v40, 0xffff0000, v%d" % u1); a("v_fma_f32 v%d, v40, s56, v%d" % (y, y))
        a("v_lshlrev_b32 v41, 16, v%d" % u1);     a("v_fma_f32 v%d, v41, s56, v%d" % (y + 2, y + 2))
        a("v_and_b32 v42, 0xffff0000, v%d" % u0); a("v_fma_f32 v%d, v42, s56, v%d" % (y + 1, y + 1))
        a("v_lshlrev_b32 v43, 16, v%d" % u0);     a("v_fma_f32 v%d, v43, s56, v%d" % (y + 3, y + 3))
        a("v_cvt_pk_bf16_f32 v%d, v%d, v%d" % (112 + 2 * t, y, y + 2))
        a("v_cvt_pk_bf16_f32 v%d, v%d, v%d" % (113 + 2 * t, y + 1, y + 3))
        a("buffer_store_dwordx2 %s, v11, s[36:39], s52 offen offset:%d sc1" % (v(112 + 2 * t, 2), 512 * t))
    a("s_waitcnt vmcnt(0)")
    a("s_mul_hi_u32 s45, s44, 0x%x" % ((1 << 32) // 144 + 1)); a("s_add_u32 s45, s45, %d" % C3)
    atomic_inc(a, 45)
    stamp(a, 7)
    a("s_branch L_fin")

P3_OB, P3_YB, P3_UB, P3_W8, P3_XB = 49152, 90112, 102400, 112640, 131072
P3_WA, P3_ST, P3_NPF, P3_OA = 20, 92, 20, 128
def p3_setup(a):
    a("s_load_dwordx2 s[4:5], s[0:1], 0"); a("s_load_dwordx2 s[6:7], s[0:1], 80")
    a("s_and_b32 s43, s40, 7"); a("s_lshl_b32 s43, s43, 5"); a("s_lshl_b32 s44, s41, 8"); a("s_add_u32 s43, s43, s44")
    a("s_lshr_b32 s44, s40, 3")
    a("v_and_b32 v3, 15, v2"); a("v_lshrrev_b32 v4, 4, v2"); a("v_lshlrev_b32 v5, 4, v2")
    lds_spin(a, GO2A, 2, 1, 6)
    srd(a, 16, 4, 2048 * 1152); srd(a, 20, 6, 2048 * 1152)
    a("s_mul_i32 s45, s44, 9"); a("s_mul_i32 s47, s44, 288")
def p3_prefetch(a):
    WA = P3_WA
    a("s_mul_i32 s45, s44, 9"); a("s_add_u32 s46, s45, s42"); a("s_mul_i32 s46, s46, 18*1024"); a("s_add_u32 s46, s46, 0x%x" % OFF_WOF)
    for ks in range(18):
        a("buffer_load_dwordx4 %s, v5, s[36:39], s46 offen offset:%d sc1" % (v(WA + 4 * ks, 4), (ks % 4) * 1024))
        if ks % 4 == 3: a("s_add_u32 s46, s46, 4096")
    a("v_add_u32 v6, s43, v3")
    a("v_lshlrev_b32 v14, 2, v6"); a("s_mov_b32 s51, 0x%x" % OFF_G)
    a("buffer_load_dword v16, v14, s[36:39], s51 offen sc1"); a("buffer_load_dword v17, v14, s[36:39], s51 offen offset:64 sc1")
def p3_sender_issue(a):
    ST, W8, YB = P3_ST, P3_W8, P3_YB
    p3_setup(a)
    a("s_cmp_lt_u32 s42, 6"); a("s_cbranch_scc1 L3_rY")
    a("s_add_u32 s46, s45, 8"); a("s_mul_i32 s46, s46, 18*1024"); a("s_add_u32 s46, s46, 0x%x" % OFF_WOF)
    a("s_sub_u32 s52, s42, 6"); a("s_mul_i32 s52, s52, 9216"); a("s_add_u32 s46, s46, s52")
    for i in range(9):
        a("buffer_load_dwordx4 %s, v5, s[36:39], s46 offen offset:%d sc1" % (v(ST + 4 * i, 4), (i % 4) * 1024))
        if i % 4 == 3: a("s_add_u32 s46, s46, 4096")
    a("s_add_u32 s52, s52, %d" % W8); a("v_add_u32 v12, s52, v5")
    a("s_branch L3_pf")
    a.label("L3_rY")
    a("v_lshrrev_b32 v14, 2, v2"); a("v_and_b32 v15, 3, v2")
    a("s_sub_u32 s52, s42, 4"); a("s_mul_i32 s52, s52, 80")
    a("s_mul_i32 s53, s44, 144"); a("s_add_u32 s53, s53, s52")
    a("v_add_u32 v14, s53, v14"); a("v_lshlrev_b32 v14, 12, v14"); a("v_lshl_add_u32 v14, v15, 4, v14")
    a("s_lshl_b32 s53, s43, 1"); a("s_add_u32 s53, s53, 0x%x" % OFF_YT)
    for i in range(5):
        a("buffer_load_dwordx4 %s, v14, s[36:39], s53 offen sc1" % v(ST + 4 * i, 4))
        a("s_add_u32 s53, s53, 16*4096")
    a("s_lshl_b32 s52, s52, 6"); a("s_add_u32 s52, s52, %d" % YB)
    a("v_add_u32 v12, s52, v5")
    a.label("L3_pf")
    lds_spin(a, ARR, 1, 1, 6)
    p3_prefetch(a)
def phase3(a):
    OB, YB, UB, W8, XB = P3_OB, P3_YB, P3_UB, P3_W8, P3_XB
    WA, ST, NPF, OA_ = P3_WA, P3_ST, P3_NPF, P3_OA
    def prefetch(): p3_prefetch(a)
    a("s_cmp_ge_u32 s42, 4"); a("s_cbranch_scc1 L3_calc")
    a("s_cmp_lg_u32 s42, 0")
    a("s_cbranch_scc1 L3_noarr")
    lds_spin(a, SBH, 4, 1, 3)
    a("s_add_u32 s52, s41, %d" % C5)
    atomic_inc(a, 52, 14, 15)
    lds_set(a, ARR, 1, 3)
    a.label("L3_noarr")
    p3_setup(a)
    a("s_cmp_eq_u32 s42, 0"); a("s_cbranch_scc1 L3_calc")
    a("s_movk_i32 s52, 3641"); a("s_sub_u32 s53, s42, 1"); a("s_mul_i32 s53, s53, 192")
    for i in range(3):
        a("v_add_u32 v8, s53, v2"); a("v_add_u32 v8, %d, v8" % (64 * i))
        a("v_mul_u32_u24 v9, s52, v8"); a("v_lshrrev_b32 v9, 16, v9")
        a("v_mul_u32_u24 v10, 18, v9"); a("v_sub_u32 v10, v8, v10")
        a("v_mul_u32_u24 v11, 304, v9"); a("v_lshl_add_u32 v%d, v10, 4, v11" % (160 + i)); a("v_add_u32 v%d, %d, v%d" % (160 + i, XB, 160 + i))
        a("v_add_u32 v9, s43, v9"); a("v_mul_u32_u24 v9, 1152, v9"); a("v_lshl_add_u32 v9, v10, 4, v9")
        a("buffer_load_dwordx4 %s, v9, s[16:19], s47 offen" % v(ST + 4 * i, 4))
    lds_spin(a, ARR, 1, 1, 6)
    prefetch()
    a.label("L3_calc")
    a("s_movk_i32 s52, 7282"); a("s_mul_i32 s54, s42, 36")
    for part in range(2):
        for j in range(4):
            a("v_lshlrev_b32 v14, 2, v2"); a("v_add_u32 v14, %d, v14" % (256 * part + j))
            a("v_mul_u32_u24 v15, s52, v14"); a("v_lshrrev_b32 v15, 16, v15")
            a("v_mul_u32_u24 v18, 9, v15"); a("v_sub_u32 v14, v14, v18")
            a("v_add_u32 v14, s54, v14")
            a("v_bfe_u32 v18, v15, 1, 3")
            a("v_mul_u32_u24 v15, 1152, v15"); a("v_add_u32 v15, %d, v15" % OB)
            for hh in range(4):
                r = OA_ + 8 * hh + 4 * part + j
                if hh: a("v_add_u32 v14, 9, v14")
                a("v_lshrrev_b32 v164, 2, v14"); a("v_xor_b32 v164, v164, v18"); a("v_lshl_add_u32 v164, v164, 4, v15")
                a("v_and_b32 v165, 3, v14"); a("v_lshl_add_u32 v%d, v165, 2, v164" % r)
    assert all((q * 7282 >> 16) == q // 9 for q in range(288))
    a("s_lshl_b32 s52, s42, 2"); a("s_mul_i32 s53, s52, %d" % O_HEAD); a("s_mul_i32 s54, s43, 36"); a("s_add_u32 s53, s53, s54"); a("s_add_u32 s53, s53, 0x%x" % OFF_O)
    a("v_add_u32 v14, 1024, v5"); a("v_mov_b32 v15, 0x%x" % OOB); a("v_cmp_gt_u32 vcc, 8, v2"); a("s_nop 1"); a("v_cndmask_b32 v19, v15, v14, vcc")
    a("s_cmp_eq_u32 s42, 0"); a("s_cbranch_scc1 L3_prepdone")
    a("s_cmp_lt_u32 s42, 4"); a("s_cbranch_scc0 L3_s47")
    for i in range(3):
        a("s_waitcnt vmcnt(%d)" % (NPF + 2 - i))
        a("ds_write_b128 v%d, %s" % (160 + i, v(ST + 4 * i, 4)))
    a("s_branch L3_prepdone")
    a.label("L3_s47")
    a("s_cmp_lt_u32 s42, 6"); a("s_cbranch_scc1 L3_sY")
    for i in range(9):
        a("s_waitcnt vmcnt(%d)" % (NPF + 8 - i))
        a("ds_write_b128 v12, %s offset:%d" % (v(ST + 4 * i, 4), 1024 * i))
    a("s_branch L3_prepdone")
    a.label("L3_sY")
    for i in range(5):
        a("s_waitcnt vmcnt(%d)" % (NPF + 4 - i))
        a("ds_write_b128 v12, %s offset:%d" % (v(ST + 4 * i, 4), 1024 * i))
    a.label("L3_prepdone")
    stamp(a, 2)
    stamp(a, 3)
    a("s_cmp_lg_u32 s42, 0")
    a("s_cbranch_scc1 L3_waitgo")
    a("s_add_u32 s52, s41, %d" % C5); a("s_lshl_b32 s52, s52, 7"); a("s_add_u32 s52, s52, 0x%x" % OFF_CNT)
    a("v_mov_b32 v14, s52"); a("v_mov_b32 v15, 32")
    poll_global(a, 14, 15, vt=18, slp=4)
    lds_set(a, GO2B, 1, 18)
    a("s_branch L3_go")
    a.label("L3_waitgo")
    lds_spin(a, GO2B, 1, 1, 18)
    a.label("L3_go")
    stamp(a, 9)
    for hh in range(4):
        a("buffer_load_dwordx4 %s, v5, s[36:39], s53 offen sc1" % v(ST + 8 * hh, 4))
        a("buffer_load_dwordx4 %s, v19, s[36:39], s53 offen sc1" % v(ST + 8 * hh + 4, 4))
        a("s_add_u32 s53, s53, %d" % O_HEAD)
    def scatter(extra):
        for hh in range(4):
            a("s_waitcnt vmcnt(%d)" % (extra + 7 - 2 * hh))
            for j in range(4): a("ds_write_b32 v%d, v%d" % (OA_ + 8 * hh + j, ST + 8 * hh + j))
            a("s_waitcnt vmcnt(%d)" % (extra + 6 - 2 * hh))
            a("s_mov_b64 exec, 0xff")
            for j in range(4): a("ds_write_b32 v%d, v%d" % (OA_ + 8 * hh + 4 + j, ST + 8 * hh + 4 + j))
            a("s_mov_b64 exec, -1")
    a("s_cmp_lg_u32 s42, 0")
    a("s_cbranch_scc1 L3_w17")
    prefetch()
    scatter(NPF)
    a("s_branch L3_noO")
    a.label("L3_w17")
    scatter(0)
    a.label("L3_noO")
    a("s_waitcnt vmcnt(0) lgkmcnt(0)")
    a("s_barrier")
    stamp(a, 10)
    a("v_lshrrev_b32 v7, 1, v3"); a("v_xor_b32 v7, v7, v4"); a("v_mul_u32_u24 v6, 1152, v3"); a("v_lshl_add_u32 v6, v7, 4, v6"); a("v_add_u32 v6, %d, v6" % OB)
    a("v_xor_b32 v162, 64, v6")
    a("s_and_b32 s52, s42, 1"); a("s_mul_i32 s52, s52, 16*1152"); a("v_add_u32 v7, s52, v6"); a("v_add_u32 v163, s52, v162")
    a("v_add_u32 v14, %d, v5" % W8)
    AC = [92, 96, 100]; BFR = [104, 116]; A2 = [128, 132]
    TM, YR = 136, 148
    a("v_lshrrev_b32 v154, 2, v2"); a("v_and_b32 v154, 3, v154"); a("v_lshl_add_u32 v154, v4, 2, v154"); a("v_lshlrev_b32 v154, 6, v154")
    a("v_and_b32 v155, 3, v2"); a("v_lshl_add_u32 v154, v155, 3, v154"); a("v_add_u32 v154, %d, v154" % YB)
    a("s_lshl_b32 s56, s42, 10"); a("v_add_u32 v155, s56, v154")
    a("ds_read_b64_tr_b16 %s, v155" % v(YR, 2)); a("ds_read_b64_tr_b16 %s, v155 offset:32" % v(YR + 2, 2))
    a("s_and_b32 s59, s42, 1"); a("s_lshl_b32 s56, s59, 5"); a("s_add_u32 s56, s56, 8*1024"); a("v_add_u32 v155, s56, v154")
    a("ds_read_b64_tr_b16 %s, v155" % v(YR + 4, 2))
    a("v_mul_u32_u24 v8, 304, v3"); a("v_lshl_add_u32 v8, v4, 3, v8"); a("v_add_u32 v15, %d, v8" % XB)
    a("s_lshl_b32 s56, s42, 5"); a("v_add_u32 v19, s56, v15")
    a("ds_read_b64 v[8:9], v19"); a("ds_read_b64 v[10:11], v19 offset:%d" % (16 * 304))
    a("s_mul_i32 s56, s59, 16*304"); a("s_add_u32 s56, s56, 256"); a("v_add_u32 v19, s56, v15")
    a("ds_read_b64 v[12:13], v19")
    a("s_cmp_eq_u32 s59, 0"); a("s_cselect_b64 vcc, -1, 0"); a("v_cndmask_b32 v18, v17, v16, vcc")
    GR = [16, 17, 18]; XR = [8, 10, 12]
    terms = []
    for t in range(3):
        terms.append("v_sub_f32 v%d, 1.0, v%d" % (164 + t, GR[t]))
        for r in range(4):
            x_, y_ = XR[t] + r // 2, YR + 2 * t + r // 2
            if r % 2 == 0:
                terms += ["v_lshlrev_b32 v%d, 16, v%d" % (TM + 4 * t + r, x_), "v_lshlrev_b32 v167, 16, v%d" % y_]
            else:
                terms += ["v_and_b32 v%d, 0xffff0000, v%d" % (TM + 4 * t + r, x_), "v_and_b32 v167, 0xffff0000, v%d" % y_]
            terms += ["v_mul_f32 v%d, v%d, v167" % (TM + 4 * t + r, TM + 4 * t + r), "v_mul_f32 v%d, v%d, v%d" % (TM + 4 * t + r, TM + 4 * t + r, 164 + t)]
    def kloop(three):
        NBUF = 3 if not three else 2
        BB = [104, 112, 120] if not three else BFR
        tl = list(terms)
        def rd(ks):
            b = BB[ks % NBUF]
            r0, r1 = (6, 7) if ks % 2 == 0 else (162, 163)
            o = 128 * (ks >> 1)
            out = ["ds_read_b128 %s, v%d offset:%d" % (v(b, 4), r0, o), "ds_read_b128 %s, v%d offset:%d" % (v(b + 4, 4), r0, o + 16 * 1152)]
            if three:
                out += ["ds_read_b128 %s, v%d offset:%d" % (v(b + 8, 4), r1, o), "ds_read_b128 %s, v14 offset:%d" % (v(A2[ks & 1], 4), 1024 * ks)]
            return out
        n = 4 if three else 2
        D = NBUF - 1
        for k in range(D):
            for x in rd(k): a(x)
        for ks in range(18):
            if ks + D < 18:
                for x in rd(ks + D): a(x)
            rem = min(D, 17 - ks)
            a("s_waitcnt lgkmcnt(%d)" % (n * rem))
            b = BB[ks % NBUF]
            for t in range(2):
                c = "0" if ks == 0 else v(AC[t], 4)
                a("v_mfma_f32_16x16x32_bf16 %s, %s, %s, %s" % (v(AC[t], 4), v(WA + 4 * ks, 4), v(b + 4 * t, 4), c))
            if three:
                c = "0" if ks == 0 else v(AC[2], 4)
                a("v_mfma_f32_16x16x32_bf16 %s, %s, %s, %s" % (v(AC[2], 4), v(A2[ks & 1], 4), v(b + 8, 4), c))
            for x in tl[:4]: a(x)
            tl = tl[4:]
        for x in tl: a(x)
    def epi(t, moff, noff):
        for r in range(4): a("v_fma_f32 v%d, v%d, v%d, v%d" % (AC[t] + r, AC[t] + r, GR[t], TM + 4 * t + r))
        a("v_cvt_pk_bf16_f32 v%d, v%d, v%d" % (104 + 2 * t, AC[t], AC[t] + 1)); a("v_cvt_pk_bf16_f32 v%d, v%d, v%d" % (105 + 2 * t, AC[t] + 2, AC[t] + 3))
    a("s_cmp_ge_u32 s42, 6")
    a("s_cbranch_scc1 L3_k3")
    kloop(False)
    a("s_branch L3_kdone")
    a.label("L3_k3")
    kloop(True)
    a.label("L3_kdone")
    stamp(a, 11)
    a("v_mul_u32_u24 v154, 304, v3"); a("v_lshl_add_u32 v154, v4, 3, v154"); a("v_add_u32 v154, %d, v154" % UB)
    a("s_lshl_b32 s56, s42, 5"); a("v_add_u32 v155, s56, v154")
    a("s_nop 2")
    epi(0, 0, 0); epi(1, 0, 0)
    a("ds_write_b64 v155, v[104:105]"); a("ds_write_b64 v155, v[106:107] offset:%d" % (16 * 304))
    a("s_cmp_lt_u32 s42, 6")
    a("s_cbranch_scc1 L3_edone")
    epi(2, 0, 0)
    a("s_mul_i32 s56, s59, 16*304"); a("s_add_u32 s56, s56, 256"); a("v_add_u32 v155, s56, v154")
    a("ds_write_b64 v155, v[108:109]")
    a.label("L3_edone")
    a("s_waitcnt lgkmcnt(0)")
    a("s_barrier")
    a("s_movk_i32 s56, 3641")
    for rep in range(2):
        if rep == 1:
            a("s_cmp_lg_u32 s42, 0"); a("s_cbranch_scc1 L_fin")
        a("s_lshl_b32 s57, s42, 6"); a("v_add_u32 v6, s57, v2")
        if rep == 1: a("v_add_u32 v6, 512, v6")
        a("v_mul_u32_u24 v7, s56, v6"); a("v_lshrrev_b32 v7, 16, v7")
        a("v_mul_u32_u24 v8, 18, v7"); a("v_sub_u32 v8, v6, v8")
        a("v_mul_u32_u24 v9, 304, v7"); a("v_lshl_add_u32 v9, v8, 4, v9"); a("v_add_u32 v9, %d, v9" % UB)
        a("ds_read_b128 v[24:27], v9")
        a("v_add_u32 v7, s43, v7"); a("v_mul_u32_u24 v7, 1152, v7"); a("v_lshl_add_u32 v7, v8, 4, v7")
        a("s_waitcnt lgkmcnt(0)")
        a("buffer_store_dwordx4 v[24:27], v7, s[20:23], s47 offen")
    assert all((x * 3641 >> 16) == x // 18 for x in range(576))

def descriptor(name, nvgpr, nsgpr=100):
    return """.p2align 6
.amdhsa_kernel %s
  .amdhsa_next_free_vgpr %d
  .amdhsa_next_free_sgpr %d
  .amdhsa_accum_offset %d
  .amdhsa_group_segment_fixed_size 0
  .amdhsa_kernarg_size 104
  .amdhsa_user_sgpr_count 2
  .amdhsa_user_sgpr_kernarg_segment_ptr 1
  .amdhsa_system_sgpr_workgroup_id_x 1
  .amdhsa_float_denorm_mode_32 3
.end_amdhsa_kernel
""" % (name, nvgpr, nsgpr, nvgpr)

def main():
    global DIAG
    global RT
    RT = "--rt" in sys.argv
    DIAG = "--diag" in sys.argv or RT
    for x in sys.argv:
        if x.startswith("--exp="): EXP.update(x[6:].split(","))
    args = [x for x in sys.argv[1:] if not x.startswith("--")]
    a = Asm()
    hdr = open("gated_mix__mha_block__ssm_conv_h3__prompt.s.ref").read().split("\n")
    head = [l for l in hdr if l.startswith(";") and "@launch" not in l and "Override" not in l and "grid=ceil" not in l]
    a.raw("\n".join(head))
    a.raw("; @launch grid=(256,1,1) block=(768,1,1) lds=%d" % LDS_TOTAL)
    a.raw('.amdgcn_target "amdgcn-amd-amdhsa--gfx950"')
    a.raw(".text")
    a.raw(".globl %s" % NAME); a.raw(".p2align 8"); a.raw(".type %s,@function" % NAME); a.label(NAME)
    a("s_cmp_ge_u32 s2, 256")
    a("s_cbranch_scc1 L_end")
    phase1(a)
    phase2(a)
    a.label("L_fin")
    stamp(a, 12)
    stamp_store(a)
    a.label("L_end")
    a("s_endpgm")
    a.raw('.section .rodata,"a"')
    a.raw(descriptor(NAME, 168))
    if "plainld" in EXP:
        out_l = []
        for k, l in enumerate(a.lines):
            if "buffer_load" in l and " sc1" in l and "sc0" not in l:
                nxt = a.lines[k + 1] if k + 1 < len(a.lines) else ""
                is_poll = ("buffer_load_dword v" in l and ", 0 offen sc1" in l and "offset" not in l and "s_waitcnt vmcnt(0)" in nxt)
                if not is_poll: l = l.replace(" sc1", "")
            out_l.append(l)
        a.lines = out_l
    if "nosc1" in EXP:
        a.lines = [l.replace(" sc1", "") if ("buffer_store" in l and "sc0" not in l) else l for l in a.lines]
    if "nosideload" in EXP:
        out_l = []; inside = False
        for l in a.lines:
            if "L1_side:" in l: inside = True
            if "L1_out:" in l: inside = False
            if inside and ("buffer_load_dword" in l or "buffer_load_ushort" in l) and "s[20:23]" not in l: continue
            out_l.append(l)
        a.lines = out_l
    if "nosidestore" in EXP:
        out_l = []; inside = False
        for l in a.lines:
            if "L1_side:" in l: inside = True
            if "L1_out:" in l: inside = False
            if inside and "buffer_store" in l and "s[20:23]" not in l and "v1, s[36:39], 0 offen sc1" not in l: continue
            out_l.append(l)
        a.lines = out_l
    out = args[0] if args else "fused3.s"
    open(out, "w").write(a.text())
    probs = check_seq(a.lines, "all")
    for p in probs: print("HAZARD", p)
    print("wrote", out, len(a.lines), "lines")

if __name__ == "__main__":
    main()
```

```python
import sys, struct
from asmlib import *

NAME = "gated_mix__mha_block__ssm_conv_h3__prompt_kernel"
KV_HEAD = 147456
Q_HEAD  = 73728
OFF_KV  = 0
OFF_Q   = OFF_KV + 32 * KV_HEAD
URT_ROW = 4096
OFF_URT = OFF_Q + 32 * Q_HEAD
HP_ROW  = 5120
OFF_HP  = OFF_URT + 576 * URT_ROW
OFF_YT  = OFF_HP + 576 * 2 * HP_ROW
O_HEAD  = 2048 * 36
OFF_O   = OFF_YT + 576 * 4096
OFF_G   = OFF_O + 32 * O_HEAD
OFF_WOF = OFF_G + 2048 * 4
OFF_MX  = OFF_WOF + 648 * 1024
OFF_CNT = OFF_MX + 256 * 8 * 512
WS_USED = OFF_CNT + 256 * 128
WS_SRD_SIZE = 0x2000000
assert WS_USED <= WS_SRD_SIZE and OFF_CNT % 128 == 0
C1, C2, C3, C4, C5 = 0, 128, 140, 144, 145
QSCALE = 1.4426950408889634 / (18.0 ** 0.5)
def f32bits(x): return struct.unpack("<I", struct.pack("<f", x))[0]
OOB = 0x80000000
LDS_KV = 147456
LDS_UR = LDS_KV
LDS_FLAG = LDS_UR + 3 * 4608
FA, FB, FBAD, GO1, CNT, GO2A, GO2B = LDS_FLAG, LDS_FLAG + 4, LDS_FLAG + 8, LDS_FLAG + 12, LDS_FLAG + 16, LDS_FLAG + 32, LDS_FLAG + 36
SB1, SB2, SB3, SB4, SB5 = LDS_FLAG + 40, LDS_FLAG + 44, LDS_FLAG + 48, LDS_FLAG + 52, LDS_FLAG + 56
SBG = LDS_FLAG + 60
INITOK = LDS_FLAG + 64
SBH = LDS_FLAG + 68
ARR = LDS_FLAG + 72
LDS_TOTAL = LDS_FLAG + 128
VMASK = 0x0003FFFF
SPIN_MAX = 200000
TB_ = 32768
NPRE = 8

DIAG = False
USE_NEG = False
EXP = set()
NST = 16
RT = False
def stamp(a, i):
    if not DIAG: return
    a("%s s[76:77]" % ("s_memrealtime" if RT else "s_memtime")); a("s_waitcnt lgkmcnt(0)"); a("s_mov_b32 s%d, s76" % (80 + i))
def rstamp(a, i):
    if not DIAG or RT: return
    a("s_memrealtime s[76:77]"); a("s_waitcnt lgkmcnt(0)"); a("s_mov_b32 s%d, s76" % (80 + i))
def stamp_init(a):
    if not DIAG: return
    for i in range(NST): a("s_mov_b32 s%d, 0" % (80 + i))
def stamp_store(a):
    if not DIAG: return
    a("s_waitcnt vmcnt(0)")
    a("s_mov_b32 s38, 0x4000000")
    a("v_lshrrev_b32 v1, 6, v0"); a("s_lshl_b32 s78, s2, 4"); a("v_add_u32 v1, s78, v1")
    a("v_lshlrev_b32 v1, 6, v1"); a("v_add_u32 v1, 0x3000000, v1")
    for i in range(NST):
        a("v_mov_b32 v2, s%d" % (80 + i))
        a("buffer_store_dword v2, v1, s[36:39], 0 offen offset:%d" % (4 * i))

def srd(a, dst, ptr, size):
    a("s_mov_b32 s%d, s%d" % (dst, ptr))
    a("s_and_b32 s%d, s%d, 0xffff" % (dst + 1, ptr + 1))
    a("s_mov_b32 s%d, 0x%x" % (dst + 2, size))
    a("s_mov_b32 s%d, 0x20000" % (dst + 3))

def lds_arrive(a, addr, va=1, vb=3):
    a("v_mov_b32 v%d, %d" % (va, addr)); a("v_mov_b32 v%d, 1" % vb)
    a("s_mov_b64 exec, 1"); a("ds_add_u32 v%d, v%d" % (va, vb)); a("s_mov_b64 exec, -1")
def lds_set(a, addr, va=1, vb=3):
    a("v_mov_b32 v%d, %d" % (va, addr)); a("v_mov_b32 v%d, 1" % vb)
    a("ds_write_b32 v%d, v%d" % (va, vb)); a("s_waitcnt lgkmcnt(0)")
def lds_spin(a, addr, target, va=1, vb=3, st=56, sleep=True):
    l = a.uid("Lspin")
    a("v_mov_b32 v%d, %d" % (va, addr))
    a.label(l)
    a("ds_read_b32 v%d, v%d" % (vb, va)); a("s_waitcnt lgkmcnt(0)")
    a("v_readfirstlane_b32 s%d, v%d" % (st, vb))
    a("s_cmp_ge_u32 s%d, %d" % (st, target))
    a("s_cbranch_scc1 %s_x" % l)
    a("s_sleep 1")
    a("s_branch %s" % l)
    a.label(l + "_x")
def soft_barrier(a, addr, n, va=1, vb=3):
    lds_arrive(a, addr, va, vb)
    lds_spin(a, addr, n, va, vb, sleep=False)
def poll_global(a, voff, vtgt, vt=3, sb=57, slp=None):
    if slp is None: slp = 2 if 'slp2' in EXP else (4 if 'slp4' in EXP else (16 if 'slp16' in EXP else 3))
    l = a.uid("Lpoll")
    a("s_mov_b32 s%d, %d" % (sb, SPIN_MAX))
    a.label(l)
    a("buffer_load_dword v%d, v%d, s[36:39], 0 offen sc1" % (vt, voff))
    a("s_waitcnt vmcnt(0)")
    a("v_cmp_lt_u32 vcc, v%d, v%d" % (vt, vtgt))
    a("s_nop 3")
    a("s_cmp_eq_u64 vcc, 0")
    a("s_cbranch_scc1 %s_x" % l)
    a("s_sleep %d" % slp)
    a("s_sub_u32 s%d, s%d, 1" % (sb, sb))
    a("s_cmp_lg_u32 s%d, 0" % sb)
    a("s_cbranch_scc1 %s" % l)
    a.label(l + "_x")
def atomic_inc(a, sidx, va=1, vb=3):
    a("s_lshl_b32 s57, s%d, 7" % sidx); a("s_add_u32 s57, s57, 0x%x" % OFF_CNT)
    a("v_mov_b32 v%d, s57" % va); a("v_mov_b32 v%d, 1" % vb)
    a("s_mov_b64 exec, 1")
    a("buffer_atomic_add v%d, v%d, s[36:39], 0 offen sc1" % (vb, va))
    a("s_mov_b64 exec, -1")

def hloads(a):
    l = a.uid("Lh")
    a("s_lshl_b32 s61, s43, 8"); a("s_add_u32 s61, s61, s2")
    a("s_cmp_eq_u32 s43, 2"); a("s_cbranch_scc0 %s" % (lbl := a.uid("Lch")))
    a("s_add_u32 s61, s2, 320"); a("s_cmp_lt_u32 s2, 192"); a("s_cselect_b32 s61, 0xffff, s61")
    a.label(lbl)
    a("s_cmp_ge_u32 s61, 576"); a("s_cselect_b32 s58, 1, 0"); a("s_cmp_eq_u32 s42, 11"); a("s_cselect_b32 s58, 1, s58")
    a("s_load_dwordx2 s[62:63], s[0:1], 56")
    a("v_lshlrev_b32 v118, 4, v2"); a("v_subrev_u32 v119, 32, v118")
    a("s_waitcnt lgkmcnt(0)")
    a("s_min_u32 s61, s61, 575")
    a("s_lshl_b32 s56, s61, 12")
    a("s_add_u32 s64, s62, s56"); a("s_addc_u32 s65, s63, 0"); a("s_and_b32 s65, s65, 0xffff")
    a("s_mov_b32 s66, 4096"); a("s_mov_b32 s67, 0x20000")
    a("s_cmp_eq_u32 s58, 1"); a("s_cbranch_scc1 %s" % l)
    for it in range(5):
        if it == 0:
            a("buffer_load_dwordx4 v[120:123], v119, s[64:67], 0 offen")
            a("v_add_u32 v117, 16, v119")
            a("buffer_load_dword v124, v117, s[64:67], 0 offen")
        else:
            a("v_add_u32 v117, %d, v119" % (1024 * it))
            a("buffer_load_dwordx4 %s, v117, s[64:67], 0 offen" % v(120 + 8 * it, 4))
            a("buffer_load_dword v%d, v117, s[64:67], 0 offen offset:16" % (124 + 8 * it))
    a.label(l)
def hstores(a):
    l = a.uid("Lhs")
    a("s_cmp_eq_u32 s58, 1"); a("s_cbranch_scc1 %s" % l)
    a("s_mul_i32 s62, s61, %d" % (2 * HP_ROW)); a("s_add_u32 s62, s62, 0x%x" % OFF_HP); a("s_add_u32 s63, s62, %d" % HP_ROW)
    for it in range(5):
        b = 120 + 8 * it; t = 160 + 4 * (it & 1)
        for k in range(4): a("v_alignbit_b32 v%d, v%d, v%d, 16" % (t + k, b + k + 1, b + k))
        if it < 4:
            a("buffer_store_dwordx4 %s, v118, s[36:39], s62 offen offset:%d" % (v(b, 4), 1024 * it))
            a("buffer_store_dwordx4 %s, v118, s[36:39], s63 offen offset:%d" % (v(t, 4), 1024 * it))
        else:
            a("s_add_u32 s56, s62, 4096"); a("buffer_store_dwordx4 %s, v118, s[36:39], s56 offen" % v(b, 4))
            a("s_add_u32 s56, s63, 4096"); a("buffer_store_dwordx4 %s, v118, s[36:39], s56 offen" % v(t, 4))
        a("s_nop 1")
    a.label(l)

def phase1(a):
    a("s_load_dwordx4 s[4:7], s[0:1], 0")
    a("s_load_dwordx4 s[8:11], s[0:1], 32")
    a("s_load_dwordx2 s[12:13], s[0:1], 48")
    a("s_load_dwordx2 s[14:15], s[0:1], 96")
    a("s_and_b32 s40, s2, 1"); a("s_lshl_b32 s40, s40, 3")
    a("s_lshr_b32 s43, s2, 3"); a("s_and_b32 s43, s43, 7")
    a("s_add_u32 s40, s40, s43")
    a("s_lshr_b32 s41, s2, 1"); a("s_and_b32 s41, s41, 3"); a("s_lshl_b32 s41, s41, 2")
    a("s_lshr_b32 s43, s2, 6"); a("s_add_u32 s41, s41, s43")
    a("v_lshrrev_b32 v1, 6, v0")
    a("v_and_b32 v2, 63, v0")
    a("v_readfirstlane_b32 s42, v1")
    a("v_and_b32 v3, 15, v2")
    a("v_lshrrev_b32 v4, 4, v2")
    a("s_waitcnt lgkmcnt(0)")
    srd(a, 36, 14, WS_SRD_SIZE)
    stamp_init(a); stamp(a, 0)
    a("s_cmp_ge_u32 s42, 8")
    a("s_cbranch_scc1 L1_side")
    srd(a, 16, 4, 2048 * 1152)
    srd(a, 20, 6, 576 * 3456)
    a("v_lshrrev_b32 v5, 3, v2"); a("v_and_b32 v6, 7, v2")
    a("s_lshl_b32 s43, s41, 7"); a("s_lshl_b32 s44, s42, 4"); a("s_add_u32 s43, s43, s44")
    a("v_add_u32 v5, s43, v5")
    a("s_movk_i32 s44, 1152")
    a("v_mul_lo_u32 v5, v5, s44")
    a("v_xor_b32 v7, v6, v4")
    a("v_lshl_add_u32 v8, v7, 4, v5")
    a("v_xor_b32 v7, 4, v7")
    a("v_lshl_add_u32 v9, v7, 4, v5")
    a("v_add_u32 v9, 9216, v9")
    a("s_and_b32 s44, s42, 1"); a("s_lshl_b32 s44, s44, 3")
    a("v_lshlrev_b32 v5, 1, v4"); a("v_add_u32 v5, s44, v5"); a("v_xor_b32 v5, v5, v3")
    a("v_min_u32 v5, 13, v5")
    a("s_movk_i32 s44, 3456")
    a("v_mul_lo_u32 v6, v4, s44")
    a("v_lshl_add_u32 v10, v5, 4, v6")
    a("s_mul_i32 s45, s40, 216"); a("s_mul_i32 s46, s42, 8*3456"); a("s_add_u32 s46, s46, s45")
    a("s_mov_b32 s47, 0")
    a("s_lshl_b32 s48, s42, 11")
    def dma_groups():
        g0 = ["s_mov_b32 m0, s48", "s_add_u32 s49, s48, 1024", "buffer_load_dwordx4 v8, s[16:19], s47 offen lds"]
        g1 = ["s_mov_b32 m0, s49", "s_add_u32 s49, s48, 16384", "buffer_load_dwordx4 v9, s[16:19], s47 offen lds"]
        g2 = ["s_mov_b32 m0, s49", "s_add_u32 s49, s48, 17408", "buffer_load_dwordx4 v10, s[20:23], s46 offen lds"]
        g3 = ["s_mov_b32 m0, s49", "s_add_u32 s50, s46, 4*3456", "buffer_load_dwordx4 v10, s[20:23], s50 offen lds",
              "s_add_u32 s46, s46, 64*3456", "s_add_u32 s47, s47, 128", "s_add_u32 s48, s48, 32768", "s_and_b32 s48, s48, 0x1ffff"]
        return [g0, g1, g2, g3]
    def dma_stage():
        for g in dma_groups():
            for x in g: a(x)
    dma_stage()
    a("s_and_b32 s51, s42, 3"); a("s_lshr_b32 s52, s42, 2")
    a("s_lshl_b32 s44, s51, 5")
    a("v_add_u32 v5, s44, v3"); a("v_lshlrev_b32 v5, 7, v5")
    a("v_lshrrev_b32 v6, 1, v3"); a("v_xor_b32 v6, v6, v4")
    a("v_lshl_add_u32 v11, v6, 4, v5")
    a("v_xor_b32 v12, 64, v11")
    a("v_add_u32 v13, 0x10000, v11"); a("v_add_u32 v14, 0x10000, v12")
    AW = 16
    a("v_lshrrev_b32 v6, 2, v2"); a("v_and_b32 v6, 3, v6"); a("v_and_b32 v7, 3, v2")
    a("v_lshl_add_u32 v1, v4, 3, v6"); a("v_lshlrev_b32 v1, 8, v1")
    a("v_and_b32 v5, 1, v7"); a("v_lshl_add_u32 v1, v5, 3, v1")
    a("v_lshrrev_b32 v7, 1, v7"); a("v_lshl_add_u32 v1, v7, 4, v1")
    a("v_add_u32 v1, 16384, v1")
    a("v_and_b32 v5, 1, v4"); a("v_lshlrev_b32 v5, 3, v5"); a("v_lshl_add_u32 v5, v6, 1, v5")
    a("s_lshl_b32 s44, s52, 3")
    for i in range(4):
        a("s_add_u32 s45, s44, %d" % (2 * i))
        a("v_xor_b32 v6, s45, v5")
        a("v_lshl_add_u32 v%d, v6, 4, v1" % (AW + i))
        a("v_add_u32 v%d, 0x10000, v%d" % (AW + 4 + i, AW + i))
    dma_stage()
    ACC, AF, BF = 32, 64, 96
    TA_, TS_ = 112, 120
    a("s_lshl_b32 s44, s51, 5")
    a("v_add_u32 v5, s44, v3")
    a("s_movk_i32 s44, 304")
    a("v_mul_lo_u32 v5, v5, s44")
    a("s_mul_i32 s44, s40, 6"); a("s_sub_i32 s44, 32, s44"); a("s_max_i32 s44, s44, 0"); a("s_min_i32 s44, s44, 6")
    a("s_mul_i32 s54, s44, 18")
    a("s_lshl_b32 s55, s52, 6")
    a("v_lshl_add_u32 v6, v4, 2, s55")
    a("s_movk_i32 s56, 3641")
    a("v_mov_b32 v24, 1.0")
    a("v_mov_b32 v25, 0x%x" % f32bits(QSCALE))
    for i in range(4):
        for p in range(2):
            k = 2 * i + p
            a("v_add_u32 v26, %d, v6" % (16 * i + 2 * p))
            a("v_min_u32 v26, 110, v26")
            a("v_mul_u32_u24 v27, s56, v26")
            a("v_cmp_gt_u32 vcc, s54, v26")
            a("v_lshrrev_b32 v27, 16, v27")
            a("v_mul_u32_u24 v27, 12, v27")
            a("v_cndmask_b32 v%d, v24, v25, vcc" % (TS_ + k))
            a("v_lshl_add_u32 v27, v26, 1, v27")
            a("v_add_u32 v%d, v27, v5" % (TA_ + k))
            a("v_add_u32 v%d, %d, v%d" % (TA_ + k, TB_, TA_ + k))
    dma_stage()
    def reads(u):
        st, kk = divmod(u, 2)
        slot = st & 3; hi = slot >> 1; off = (slot & 1) * 32768; buf = u & 1
        out = []
        bb = (13 if hi else 11) + kk
        out.append("ds_read_b128 %s, v%d offset:%d" % (v(BF + 8 * buf, 4), bb, off))
        out.append("ds_read_b128 %s, v%d offset:%d" % (v(BF + 8 * buf + 4, 4), bb, off + 2048))
        for i in range(4):
            ar = AW + 4 * hi + i
            out.append("ds_read_b64_tr_b16 %s, v%d offset:%d" % (v(AF + 16 * buf + 4 * i, 2), ar, off + kk * 8192))
            out.append("ds_read_b64_tr_b16 %s, v%d offset:%d" % (v(AF + 16 * buf + 4 * i + 2, 2), ar, off + kk * 8192 + 1024))
        if "p1halfA" in EXP: out = [x if (k < 2 or k % 2 == 0) else "ds_read_b32 v31, v28" for k, x in enumerate(out)]
        if "p1noA" in EXP: out = [x if k < 2 else "ds_read_b32 v31, v28" for k, x in enumerate(out)]
        return out
    def mf(u, j):
        buf = u & 1; i, n = j >> 1, j & 1
        c = "0" if u == 0 else v(ACC + 8 * i + 4 * n, 4)
        if "p1nomfma" in EXP and j >= 2: return
        a("v_mfma_f32_16x16x32_bf16 %s, %s, %s, %s" % (v(ACC + 8 * i + 4 * n, 4), v(AF + 16 * buf + 4 * i, 4), v(BF + 8 * buf + 4 * n, 4), c))
    stamp(a, 1)
    a("s_barrier")
    GA, GO_, GP = 28, 29, 30
    a("v_mov_b32 v%d, %d" % (GA, SBG)); a("v_mov_b32 v%d, 1" % GO_)
    def arrive():
        a("s_mov_b64 exec, 1"); a("ds_add_u32 v%d, v%d" % (GA, GO_)); a("s_mov_b64 exec, -1")
    def check(target, tag):
        a("v_readfirstlane_b32 s53, v%d" % GP)
        a("s_cmp_ge_u32 s53, %d" % target); a("s_cbranch_scc1 L1_ok%s" % tag)
        a.label("L1_sp%s" % tag)
        a("ds_read_b32 v%d, v%d" % (GP, GA)); a("s_waitcnt lgkmcnt(0)")
        a("v_readfirstlane_b32 s53, v%d" % GP)
        a("s_cmp_ge_u32 s53, %d" % target); a("s_cbranch_scc1 L1_ok%s" % tag)
        a("s_sleep 1"); a("s_branch L1_sp%s" % tag)
        a.label("L1_ok%s" % tag)
    a("s_waitcnt vmcnt(8)")
    arrive()
    a("ds_read_b32 v%d, v%d" % (GP, GA)); a("s_waitcnt lgkmcnt(0)")
    check(8, "0")
    if RT: stamp(a, 14)
    for x in reads(0): a(x)
    NU = 18
    for u in range(NU):
        st, kk = divmod(u, 2)
        last = (u == NU - 1)
        dg = []
        extra = 0
        if kk == 0 and st < 8:
            a("s_waitcnt vmcnt(%d)" % (4 if st <= 6 else 0))
            arrive(); extra = 1
        if kk == 1:
            a("s_waitcnt lgkmcnt(0)")
            if not last:
                check(8 * (st + 2), str(st + 1))
                if RT and st == 3: stamp(a, 15)
                if st + 3 <= 8: dg = dma_groups()
        nr = [] if last else reads(u + 1)
        if kk == 0: waits = {0: 6 + extra, 2: 8 + extra, 4: 10 + extra, 6: 10 + 2 * extra}
        else: waits = {}
        for j in range(8):
            if j in waits: a("s_waitcnt lgkmcnt(%d)" % waits[j])
            mf(u, j)
            if j < 5 and nr:
                a(nr[2 * j]); a(nr[2 * j + 1])
                if j == 4 and kk == 0 and st < 8: a("ds_read_b32 v%d, v%d" % (GP, GA))
            if dg and j >= 4:
                for x in dg[j - 4]: a(x)
    stamp(a, 2)
    lds_arrive(a, SB1, 1, 5)
    for i in range(4):
        for p in range(2):
            k = 2 * i + p
            for n in range(2):
                r0 = ACC + 8 * i + 4 * n + 2 * p
                a("v_mul_f32 v%d, v%d, v%d" % (r0, TS_ + k, r0))
                a("v_mul_f32 v%d, v%d, v%d" % (r0 + 1, TS_ + k, r0 + 1))
    for i in range(4):
        for p in range(2):
            for n in range(2):
                r0 = ACC + 8 * i + 4 * n + 2 * p
                a("v_cvt_pk_bf16_f32 v%d, v%d, v%d" % (r0, r0, r0 + 1))
    for i in range(4):
        for p in range(2):
            k = 2 * i + p
            for n in range(2):
                r0 = ACC + 8 * i + 4 * n + 2 * p
                a("ds_write_b32 v%d, v%d offset:%d" % (TA_ + k, r0, n * 16 * 304))
    a("s_waitcnt lgkmcnt(0)")
    a("s_branch L1_out")

    a.label("L1_side")
    a("s_sub_u32 s43, s42, 8")
    a("s_cmp_lg_u32 s42, 8")
    a("s_cbranch_scc1 L1_noflag")
    a("v_lshlrev_b32 v1, 2, v2"); a("v_add_u32 v1, %d, v1" % LDS_FLAG)
    a("v_mov_b32 v5, 0"); a("v_mov_b32 v6, 2")
    a("v_cmp_le_u32 vcc, 4, v2"); a("s_nop 1"); a("v_cndmask_b32 v5, v5, v6, vcc")
    a("v_cmp_le_u32 vcc, 8, v2"); a("v_mov_b32 v6, 0"); a("s_nop 0"); a("v_cndmask_b32 v5, v5, v6, vcc")
    a("s_mov_b32 exec_hi, 0")
    a("ds_write_b32 v1, v5")
    a("s_mov_b64 exec, -1")
    a.label("L1_noflag")
    a("s_waitcnt lgkmcnt(0)")
    a("s_barrier")
    a("s_cmp_eq_u32 s42, 11")
    a("s_cbranch_scc0 L1_kv")
    a("s_load_dwordx2 s[16:17], s[0:1], 88")
    a("s_waitcnt lgkmcnt(0)")
    srd(a, 20, 16, 256)
    a("s_cmp_lg_u32 s2, 0")
    a("s_cbranch_scc1 L1_noinit")
    a("v_lshlrev_b32 v1, 7, v2"); a("v_add_u32 v1, 0x%x, v1" % OFF_CNT); a("v_mov_b32 v5, 0")
    for q in range(4):
        a("buffer_store_dword v5, v1, s[36:39], 0 offen sc1")
        a("v_add_u32 v1, 8192, v1")
    a("s_waitcnt vmcnt(0)")
    a("v_mov_b32 v1, 0"); a("v_mov_b32 v5, 1")
    a("s_mov_b64 exec, 1")
    a("buffer_store_dword v5, v1, s[20:23], 0 offen sc1")
    a("s_mov_b64 exec, -1")
    a.label("L1_noinit")
    a("v_mov_b32 v28, 0"); a("s_mov_b32 s57, %d" % SPIN_MAX)
    a.label("L1_ip")
    a("buffer_load_dword v7, v28, s[20:23], 0 offen sc1"); a("s_waitcnt vmcnt(0)"); a("v_readfirstlane_b32 s56, v7")
    a("s_cmp_eq_u32 s56, 1"); a("s_cbranch_scc1 L1_ipx")
    a("s_sleep 8"); a("s_sub_u32 s57, s57, 1"); a("s_cmp_lg_u32 s57, 0"); a("s_cbranch_scc1 L1_ip")
    a.label("L1_ipx")
    lds_set(a, INITOK, 1, 7)
    loader(a)
    stamp(a, 6)
    a("s_setprio 1")
    a("s_load_dwordx2 s[4:5], s[0:1], 0"); a("s_load_dwordx2 s[16:17], s[0:1], 16"); a("s_load_dwordx2 s[18:19], s[0:1], 72")
    a("s_waitcnt lgkmcnt(0)")
    srd(a, 24, 4, 2048 * 1152); srd(a, 28, 18, 1152); srd(a, 32, 16, 576 * 1152)
    a("v_and_b32 v3, 15, v2"); a("v_lshrrev_b32 v4, 4, v2")
    a("v_lshrrev_b32 v5, 3, v2"); a("v_and_b32 v6, 7, v2")
    a("s_lshl_b32 s45, s2, 3"); a("v_add_u32 v9, s45, v5")
    a("v_mul_u32_u24 v7, 1152, v9"); a("v_lshlrev_b32 v8, 4, v6"); a("v_add_u32 v7, v7, v8")
    a("v_mul_u32_u24 v120, 8*1152, v4"); a("v_lshl_add_u32 v120, v3, 1, v120"); a("v_add_u32 v121, 4608, v120"); a("v_lshlrev_b32 v122, 4, v2")
    for c in range(9):
        a("buffer_load_dwordx4 %s, v7, s[24:27], 0 offen offset:%d" % (v(12 + 4 * c, 4), 128 * c))
        a("buffer_load_dwordx4 %s, v8, s[28:31], 0 offen offset:%d" % (v(48 + 4 * c, 4), 128 * c))
    for r in range(3):
        a("s_add_u32 s45, s2, %d" % (256 * r))
        a("s_mul_hi_u32 s46, s45, 0x%x" % ((1 << 32) // 18 + 1))
        a("s_mul_i32 s47, s46, 18"); a("s_sub_u32 s47, s45, s47")
        a("s_mul_i32 s47, s47, 32*1152"); a("s_lshl_b32 s46, s46, 5"); a("s_add_u32 s47, s47, s46")
        a("s_cmp_lt_u32 s45, 648"); a("s_cselect_b32 s47, s47, 0")
        for j in range(8):
            a("buffer_load_ushort v%d, v%d, s[32:35], s47 offen offset:%d" % (92 + 8 * r + j, 120 if j < 4 else 121, 1152 * (j % 4)))
    a("s_waitcnt vmcnt(0)")
    a("v_mov_b32 v84, 0")
    for r in range(36): a("v_dot2_f32_bf16 v84, v%d, v%d, v84" % (12 + r, 48 + r))
    a("s_nop 3")
    for d in (1, 2, 4):
        a("s_nop 1")
        if d == 1: a("v_mov_b32_dpp v85, v84 quad_perm:[1,0,3,2] row_mask:0xf bank_mask:0xf")
        elif d == 2: a("v_mov_b32_dpp v85, v84 quad_perm:[2,3,0,1] row_mask:0xf bank_mask:0xf")
        else: a("v_mov_b32_dpp v85, v84 row_half_mirror row_mask:0xf bank_mask:0xf")
        a("s_nop 1")
        a("v_add_f32 v84, v84, v85")
    a("v_mul_f32 v84, 0xbfb8aa3b, v84"); a("v_exp_f32 v84, v84"); a("s_nop 0")
    a("v_add_f32 v84, 1.0, v84"); a("v_rcp_f32 v84, v84")
    a("v_lshlrev_b32 v85, 2, v9"); a("v_mov_b32 v86, 0x%x" % OOB)
    a("v_cmp_eq_u32 vcc, 0, v6"); a("s_mov_b32 s46, 0x%x" % OFF_G); a("s_nop 0")
    a("v_cndmask_b32 v85, v86, v85, vcc")
    a("buffer_store_dword v84, v85, s[36:39], s46 offen sc1")
    for r in range(3):
        for j in range(4): a("v_lshl_or_b32 v%d, v%d, 16, v%d" % (124 + 4 * r + j, 93 + 8 * r + 2 * j, 92 + 8 * r + 2 * j))
        a("s_add_u32 s45, s2, %d" % (256 * r))
        a("s_lshl_b32 s46, s45, 10"); a("s_add_u32 s46, s46, 0x%x" % OFF_WOF)
        a("s_cmp_lt_u32 s45, 648"); a("s_cbranch_scc0 L1_nw%d" % r)
        a("buffer_store_dwordx4 %s, v122, s[36:39], s46 offen sc1" % v(124 + 4 * r, 4))
        a.label("L1_nw%d" % r)
    a("s_waitcnt vmcnt(0)")
    a("s_mov_b32 s45, %d" % C4)
    atomic_inc(a, 45, 1, 4)
    a("s_branch L_fin")
    a.label("L1_kv")
    if "kv0" in EXP: pass
    elif "atFA" in EXP: lds_spin(a, FA, 8, 1, 7)
    elif "early" in EXP: lds_spin(a, INITOK, 1, 1, 7)
    elif "atG1" in EXP: lds_spin(a, SB3, 8, 1, 7)
    elif "atGO1" in EXP: lds_spin(a, GO1, 1, 1, 7)
    elif "atB6" in EXP: lds_spin(a, SBG, 8 * 7, 1, 7)
    else: lds_spin(a, FA, 8, 1, 7)
    a("s_setprio %d" % (1 if "kv0" in EXP else 3))
    srd(a, 24, 8, 2048 * 1152); srd(a, 28, 10, 2048 * 1152); srd(a, 32, 12, 576 * 8)
    a("s_mul_hi_u32 s44, s2, 0x%x" % ((1 << 32) // 12 + 1))
    a("s_mul_i32 s45, s44, 12"); a("s_sub_u32 s45, s2, s45")
    a("s_lshl_b32 s46, s43, 6"); a("v_add_u32 v8, s46, v2")
    a("s_movk_i32 s46, 5462"); a("v_mul_u32_u24 v9, s46, v8"); a("v_lshrrev_b32 v9, 16, v9")
    a("v_mul_u32_u24 v10, 12, v9"); a("v_sub_u32 v10, v8, v10")
    a("s_lshl_b32 s46, s44, 7"); a("v_lshl_add_u32 v11, v9, 3, s46")
    a("s_mul_i32 s46, s45, 96"); a("v_lshl_add_u32 v12, v10, 3, s46")
    a("s_movk_i32 s46, 1152")
    a("v_mul_lo_u32 v13, v11, s46"); a("v_add_u32 v13, v13, v12")
    a("v_subrev_u32 v14, 3456, v13")
    a("v_mov_b32 v15, 0x%x" % OOB)
    a("v_cmp_eq_u32 vcc, 0, v11")
    a("s_mul_i32 s46, s45, 384"); a("v_lshl_add_u32 v16, v10, 5, s46")
    a("v_cndmask_b32 v14, v14, v15, vcc")
    a("s_mul_i32 s46, s45, 48"); a("v_lshl_add_u32 v17, v10, 2, s46"); a("v_lshlrev_b32 v17, 12, v17")
    a("v_sub_u32 v18, 15, v9"); a("v_lshl_add_u32 v17, v18, 4, v17")
    a("s_lshl_b32 s47, s44, 8"); a("s_sub_u32 s47, 3840, s47"); a("s_add_u32 s47, s47, 0x%x" % OFF_URT)
    a("s_cmp_lt_u32 s2, 192"); a("s_cbranch_scc1 L1_kvact")
    a("v_mov_b32 v13, v15"); a("v_mov_b32 v14, v15"); a("v_mov_b32 v16, v15"); a("v_mov_b32 v17, v15"); a("s_mov_b32 s47, 0")
    a.label("L1_kvact")
    KR, VR, WR = 32, 54, 70
    a("s_movk_i32 s48, 4608")
    for i in range(3): a("buffer_load_dwordx2 %s, v14, s[24:27], 0 offen offset:%d" % (v(KR + 2 * i, 2), 1152 * i))
    for i in range(8): a("buffer_load_dwordx2 %s, v13, s[24:27], %s offen offset:%d" % (v(KR + 6 + 2 * i, 2), "0" if i < 4 else "s48", 1152 * (i % 4)))
    a("buffer_load_dwordx4 %s, v16, s[32:35], 0 offen" % v(WR, 4)); a("buffer_load_dwordx4 %s, v16, s[32:35], 0 offen offset:16" % v(WR + 4, 4))
    for i in range(8): a("buffer_load_dwordx2 %s, v13, s[28:31], %s offen offset:%d" % (v(VR + 2 * i, 2), "0" if i < 4 else "s48", 1152 * (i % 4)))
    stamp(a, 1)
    if "kv0" not in EXP: hloads(a)
    a("s_waitcnt vmcnt(0)")
    stamp(a, 2)
    if "stFA" in EXP: lds_spin(a, FA, 8, 1, 7)
    WF, KF, PK = 80, 96, 140
    if "kv0" not in EXP: hstores(a)
    for c in range(4):
        for p in range(2):
            src = WR + 2 * c + p
            a("v_lshlrev_b32 v%d, 16, v%d" % (WF + 4 * c + 2 * p, src))
            a("v_and_b32 v%d, 0xffff0000, v%d" % (WF + 4 * c + 2 * p + 1, src))
    for c in range(4):
        for i in range(11 if "nokvcomp" not in EXP else 0):
            src = KR + 2 * i + (c >> 1)
            if c & 1: a("v_and_b32 v%d, 0xffff0000, v%d" % (KF + i, src))
            else: a("v_lshlrev_b32 v%d, 16, v%d" % (KF + i, src))
        R_ = 108
        for i in range(8 if "nokvcomp" not in EXP else 0): a("v_mul_f32 v%d, v%d, v%d" % (R_ + i, KF + i, WF + 4 * c + 3))
        for t in ((2, 1, 0) if "nokvcomp" not in EXP else ()):
            for i in range(8): a("v_fmac_f32 v%d, v%d, v%d" % (R_ + i, KF + i + 3 - t, WF + 4 * c + t))
        for i in range(8):
            src = VR + 2 * i + (c >> 1)
            if c & 1: a("v_and_b32 v%d, 0xffff0000, v%d" % (KF + i, src))
            else: a("v_lshlrev_b32 v%d, 16, v%d" % (KF + i, src))
        for i in range(8): a("v_mul_f32 v%d, v%d, v%d" % (R_ + i, R_ + i, KF + i))
        for e in range(4): a("v_cvt_pk_bf16_f32 v%d, v%d, v%d" % (PK + 4 * c + e, R_ + 7 - 2 * e, R_ + 6 - 2 * e))
        a("s_add_u32 s46, s47, %d" % (4096 * c))
        a("buffer_store_dwordx4 %s, v17, s[36:39], s46 offen sc1" % v(PK + 4 * c, 4))
    stamp(a, 3)
    a("s_waitcnt vmcnt(0)")
    stamp(a, 4)
    lds_arrive(a, SB4, 1, 4)
    a("s_cmp_lg_u32 s42, 8"); a("s_cbranch_scc1 L1_kvd")
    a("s_cmp_lt_u32 s2, 192"); a("s_cbranch_scc0 L1_kvd")
    lds_spin(a, SB4, 3, 1, 4)
    lds_spin(a, INITOK, 1, 1, 4)
    a("s_add_u32 s45, s45, %d" % C2)
    atomic_inc(a, 45, 1, 4)
    a.label("L1_kvd")
    if "kv0" in EXP:
        if "hG1" in EXP: lds_spin(a, SB3, 8, 1, 4)
        else: lds_spin(a, SB1, 8, 1, 4)
        hloads(a)
        a("s_waitcnt vmcnt(0)")
        hstores(a)
        a("s_waitcnt vmcnt(0)")
    a("s_branch L2_conv")
    a.label("L1_out")
    soft_barrier(a, SB2, 8, 1, 5)
    stamp(a, 3)
    a("s_cmp_ge_u32 s42, 6")
    a("s_cbranch_scc1 L1_fin")
    a("s_mul_i32 s53, s40, 6"); a("s_add_u32 s53, s53, s42")
    a("s_lshr_b32 s54, s53, 5"); a("s_and_b32 s56, s53, 31")
    a("s_mul_i32 s57, s42, 48"); a("s_add_u32 s57, s57, %d" % TB_)
    a("s_lshr_b32 s50, s41, 1"); a("s_mul_i32 s50, s50, 18432")
    a("s_mul_i32 s51, s56, %d" % KV_HEAD); a("s_add_u32 s50, s50, s51")
    a("s_and_b32 s52, s41, 1")
    a("s_movk_i32 s61, 304")
    a("s_cmp_eq_u32 s54, 2")
    a("s_cbranch_scc1 L1_vout")
    a("s_cmp_eq_u32 s54, 0")
    a("s_cbranch_scc0 L1_kdest")
    a("s_mul_i32 s58, s56, %d" % Q_HEAD); a("s_add_u32 s58, s58, 0x%x" % OFF_Q)
    a("s_lshl_b32 s60, s41, 9"); a("s_add_u32 s59, s58, s60"); a("s_add_u32 s59, s59, 65536")
    a("s_lshl_b32 s60, s41, 12"); a("s_add_u32 s58, s58, s60")
    a("s_branch L1_destdone")
    a.label("L1_kdest")
    a("s_lshl_b32 s60, s52, 9"); a("s_add_u32 s59, s50, s60"); a("s_add_u32 s59, s59, 8192")
    a("s_lshl_b32 s60, s52, 12"); a("s_add_u32 s58, s50, s60")
    a.label("L1_destdone")
    a("v_and_b32 v5, 31, v2"); a("v_lshrrev_b32 v6, 5, v2")
    a("v_mul_lo_u32 v7, v5, s61"); a("v_lshl_add_u32 v7, v6, 4, v7"); a("v_add_u32 v7, s57, v7")
    for i in range(4): a("ds_read_b128 %s, v7 offset:%d" % (v(24 + 4 * i, 4), i * 32 * 304))
    a("v_lshlrev_b32 v8, 2, v5"); a("v_mul_lo_u32 v8, v8, s61"); a("v_add_u32 v8, s57, v8")
    for j in range(4): a("ds_read_b32 v%d, v8 offset:%d" % (40 + j, 32 + 304 * j))
    a("v_lshlrev_b32 v11, 4, v2")
    a("v_mov_b32 v12, 0x%x" % OOB); a("v_cmp_gt_u32 vcc, 32, v2"); a("s_nop 1"); a("v_cndmask_b32 v12, v12, v11, vcc")
    for i in range(4):
        a("s_waitcnt lgkmcnt(%d)" % (7 - i))
        a("buffer_store_dwordx4 %s, v11, s[36:39], s58 offen offset:%d sc1" % (v(24 + 4 * i, 4), 1024 * i))
    a("s_waitcnt lgkmcnt(0)")
    a("buffer_store_dwordx4 v[40:43], v12, s[36:39], s59 offen sc1")
    a("s_branch L1_fin")
    a.label("L1_vout")
    a("v_lshrrev_b32 v9, 2, v2"); a("v_and_b32 v9, 3, v9")
    a("v_and_b32 v10, 1, v4")
    a("v_lshl_add_u32 v9, v10, 2, v9")
    a("v_mul_lo_u32 v9, v9, s61")
    a("v_and_b32 v13, 3, v2"); a("v_lshl_add_u32 v9, v13, 3, v9")
    a("v_lshrrev_b32 v13, 1, v4"); a("v_lshl_add_u32 v9, v13, 5, v9")
    a("v_add_u32 v9, s57, v9")
    a("s_mul_i32 s60, s52, 8*576"); a("s_add_u32 s63, s50, s60"); a("s_add_u32 s63, s63, 9216")
    a("v_lshl_add_u32 v14, v13, 4, v3")
    a("v_mul_u32_u24 v13, 288, v10"); a("v_lshl_add_u32 v13, v14, 4, v13")
    a("v_mov_b32 v15, 0x%x" % OOB); a("v_cmp_le_u32 vcc, 18, v14"); a("s_nop 1"); a("v_cndmask_b32 v13, v13, v15, vcc")
    for half in range(2):
        for b in range(4):
            beta = 4 * half + b
            a("ds_read_b64_tr_b16 %s, v9 offset:%d" % (v(24 + 16 * half + 4 * b, 2), beta * 16 * 304))
            a("ds_read_b64_tr_b16 %s, v9 offset:%d" % (v(26 + 16 * half + 4 * b, 2), beta * 16 * 304 + 8 * 304))
        for b in range(4):
            beta = 4 * half + b
            a("s_waitcnt lgkmcnt(%d)" % (6 - 2 * b))
            a("buffer_store_dwordx4 %s, v13, s[36:39], s63 offen offset:%d sc1" % (v(24 + 16 * half + 4 * b, 4), beta * 576))
    a.label("L1_fin")
    a("s_waitcnt vmcnt(0) lgkmcnt(0)")
    stamp(a, 4)
    soft_barrier(a, SB3, 8, 1, 5)
    a("s_cmp_lg_u32 s42, 0")
    a("s_cbranch_scc1 L2_entry")
    lds_spin(a, INITOK, 1, 1, 5)
    a("s_lshl_b32 s44, s40, 3"); a("s_lshr_b32 s45, s41, 1"); a("s_add_u32 s44, s44, s45")
    atomic_inc(a, 44)
    a.label("L2_entry")

def attn_regs():
    R = {}
    R["QA1"], R["QA2"], R["QB1"], R["QB2"] = 8, 12, 14, 18
    R["SA"], R["SB"] = 20, 36
    R["PA"], R["PB"] = 52, 60
    R["OA"], R["OB"] = 68, 84
    R["K1"] = [100, 104]; R["K2"] = [108, 110]; R["V"] = [112, 120]
    R["NA"], R["NB"] = 128, 144
    return R

def phase2(a):
    R = attn_regs()
    a("s_and_b32 s40, s2, 31"); a("s_lshr_b32 s41, s2, 5")
    a("v_lshlrev_b32 v3, 4, v2")
    a("s_mul_i32 s43, s40, %d" % KV_HEAD)
    a("s_cmp_lg_u32 s42, 0")
    a("s_cbranch_scc1 L2_waitgo")
    a("v_min_u32 v5, 2, v2")
    a("v_add_u32 v6, 1, v5"); a("v_lshrrev_b32 v6, 1, v6")
    a("v_and_b32 v7, 1, v5"); a("v_sub_u32 v7, 2, v7"); a("v_cmp_eq_u32 vcc, 0, v5"); a("v_mov_b32 v8, 0"); a("s_nop 0")
    a("v_cndmask_b32 v7, v7, v8, vcc")
    a("v_lshlrev_b32 v7, 5, v7"); a("v_add_u32 v7, s40, v7"); a("v_mul_u32_u24 v7, 0x2aab, v7"); a("v_lshrrev_b32 v7, 16, v7")
    a("v_subrev_u32 v6, 1, v6"); a("v_mov_b32 v8, s41"); a("v_cndmask_b32 v6, v6, v8, vcc")
    a("v_lshl_add_u32 v5, v7, 3, v6")
    a("v_lshlrev_b32 v5, 7, v5"); a("v_add_u32 v5, 0x%x, v5" % (OFF_CNT + 128 * C1))
    a("v_mov_b32 v6, 2")
    poll_global(a, 5, 6, vt=7)
    lds_set(a, GO1, 1, 7)
    a("s_branch L2_go")
    a.label("L2_waitgo")
    lds_spin(a, GO1, 1, 1, 7)
    a.label("L2_go")
    stamp(a, 5)
    if "prioA" in EXP: a("s_setprio 2")
    elif "prioB" in EXP: pass
    elif "prioC" in EXP:
        a("s_setprio 1"); a("s_cmp_lt_u32 s42, 4"); a("s_cbranch_scc0 L2_young"); a("s_setprio 3"); a.label("L2_young")
    elif "y1" in EXP:
        a("s_setprio 1"); a("s_cmp_lt_u32 s42, 4"); a("s_cbranch_scc0 L2_young"); a("s_setprio 2"); a.label("L2_young")
    else:
        a("s_cmp_lt_u32 s42, 4"); a("s_cbranch_scc0 L2_young"); a("s_setprio 2"); a.label("L2_young")
    a("s_lshr_b32 s46, s42, 2")
    if "samesimd" in EXP: a("s_and_b32 s45, s42, 3")
    else:
        a("s_mul_i32 s45, s46, 3"); a("s_add_u32 s45, s45, s42"); a("s_and_b32 s45, s45, 3")
    a("s_lshl_b32 s44, s42, 10"); a("s_add_u32 s43, s43, s44")
    a("v_mov_b32 v9, 0x%x" % OOB)
    a("s_cmp_lt_u32 s42, 2"); a("s_cselect_b64 vcc, -1, 0"); a("v_cndmask_b32 v9, v9, v3, vcc")
    for q in range(3):
        a("buffer_load_dwordx4 %s, v%d, s[36:39], s43 offen sc1" % (v(20 + 4 * q, 4), 3 if q < 2 else 9))
        if q < 2: a("s_add_u32 s43, s43, 8192")
    a("s_lshl_b32 s47, s41, 3"); a("s_lshl_b32 s48, s45, 1"); a("s_add_u32 s47, s47, s48")
    a("s_mul_i32 s48, s40, %d" % Q_HEAD); a("s_add_u32 s48, s48, 0x%x" % OFF_Q)
    a("s_lshl_b32 s49, s47, 10"); a("s_add_u32 s49, s49, s48")
    a("s_lshl_b32 s50, s47, 7"); a("s_add_u32 s50, s50, s48"); a("s_add_u32 s50, s50, 65536")
    a("v_and_b32 v4, 31, v2"); a("v_lshrrev_b32 v5, 5, v2"); a("v_lshlrev_b32 v6, 2, v4")
    a("v_mov_b32 v7, 0x%x" % OOB)
    a("v_cmp_eq_u32 vcc, 0, v5")
    a("buffer_load_dwordx4 %s, v3, s[36:39], s49 offen sc1" % v(R["QA1"], 4))
    a("buffer_load_dwordx4 %s, v3, s[36:39], s49 offen offset:1024 sc1" % v(R["QB1"], 4))
    a("v_cndmask_b32 v7, v7, v6, vcc")
    a("buffer_load_dword v%d, v7, s[36:39], s50 offen sc1" % R["QA2"])
    a("buffer_load_dword v%d, v7, s[36:39], s50 offen offset:128 sc1" % R["QB2"])
    a("v_mov_b32 v%d, 0" % (R["QA2"] + 1)); a("v_mov_b32 v%d, 0" % (R["QB2"] + 1))
    a("v_mov_b32 v%d, 0" % (R["K2"][0] + 1)); a("v_mov_b32 v%d, 0" % (R["K2"][1] + 1))
    a("v_mov_b32 v1, 0x3f803f80"); a("v_cmp_eq_u32 vcc, 18, v4"); a("v_mov_b32 v7, 0"); a("s_nop 0")
    a("v_cndmask_b32 v1, v7, v1, vcc")
    for b in range(2):
        for r in range(8): a("v_mov_b32 v%d, v1" % (R["V"][b] + r))
    LK1, LK2, LV = 160, 161, 162
    AK1, AK2, AV = 163, 164, 165
    CA, CO, NX = 166, 167, 7
    a("v_lshlrev_b32 v%d, 4, v2" % LK1)
    a("v_add_u32 v%d, 8192, v6" % LK2)
    a("v_mul_u32_u24 v%d, 288, v5" % LV); a("v_lshl_add_u32 v%d, v4, 4, v%d" % (LV, LV)); a("v_add_u32 v%d, 9216, v%d" % (LV, LV))
    a("s_mov_b32 s52, 0x%x" % VMASK); a("s_mov_b32 s53, 0x%x" % VMASK)
    a("s_mov_b32 s60, 0"); a("s_mov_b32 s61, 1")
    a("s_lshl_b32 s62, s45, 2"); a("s_add_u32 s62, s62, %d" % CNT)
    a("v_mov_b32 v%d, s62" % CA); a("v_mov_b32 v%d, 1" % CO)
    a("v_add_u32 v3, s44, v3")
    for q in range(3):
        a("s_waitcnt vmcnt(%d)" % (4 + 2 - q))
        if q == 2:
            a("s_cmp_ge_u32 s42, 2"); a("s_cbranch_scc1 L2_no5")
        a("ds_write_b128 v3, %s offset:%d" % (v(20 + 4 * q, 4), 8192 * q))
    a.label("L2_no5")
    a("s_waitcnt vmcnt(0) lgkmcnt(0)")
    lds_arrive(a, FA, 1, 3)
    lds_spin(a, FA, 8, 1, 3, sleep=False)
    stamp(a, 6)
    rstamp(a, 14)

    def mS1(S, kb, Q1, N): return "v_mfma_f32_32x32x16_bf16 %s, %s, %s, %s" % (v(S, 16), v(R["K1"][kb], 4), v(Q1, 4), v(N, 16) if USE_NEG else "0")
    def mS2(S, kb, Q2): return "v_mfma_f32_32x32x8_bf16 %s, %s, %s, %s" % (v(S, 16), v(R["K2"][kb], 2), v(Q2, 2), v(S, 16))
    def mP(O, vb, h, P): return "v_mfma_f32_32x32x16_bf16 %s, %s, %s, %s" % (v(O, 16), v(R["V"][vb] + 4 * h, 4), v(P + 4 * h, 4), v(O, 16))
    def phase(S, P, Sn, Q1, Q2, Nn, kb, On, Pn, vb, loads):
        ex = ["v_exp_f32 v%d, v%d" % (S + i, S + i) for i in range(16)]
        cv = ["v_cvt_pk_bf16_f32 v%d, v%d, v%d" % (P + i, S + 2 * i, S + 2 * i + 1) for i in range(8)]
        l0, l1 = loads
        return ([mS1(Sn, kb, Q1, Nn)] + l0 + ex[0:4] + [mP(On, vb, 0, Pn)] + ex[4:6] + cv[0:1] + ex[6:8] + cv[1:2] + l1 + ex[8:9] +
                [mS2(Sn, kb, Q2)] + ex[9:10] + cv[2:3] + ex[10:12] + cv[3:4] + [mP(On, vb, 1, Pn)] + ex[12:14] + cv[4:5] + ex[14:16] + cv[5:8])
    def mainloop(tag, neg):
        global USE_NEG
        USE_NEG = neg
        for r in range(16):
            a("v_mov_b32 v%d, 0" % (R["OA"] + r)); a("v_mov_b32 v%d, 0" % (R["OB"] + r))
        for r in range(8): a("v_mov_b32 v%d, 0" % (R["PB"] + r))
        NT = 4
        def item_bases(q, dk1, dk2, dv):
            a("s_lshr_b32 s56, s%d, 1" % q); a("s_mul_i32 s56, s56, 18432"); a("s_and_b32 s59, s%d, 1" % q)
            a("s_lshl_b32 s%d, s59, 12" % dk1); a("s_add_u32 s%d, s%d, s56" % (dk1, dk1))
            a("s_lshl_b32 s%d, s59, 9" % dk2); a("s_add_u32 s%d, s%d, s56" % (dk2, dk2))
            a("s_mul_i32 s%d, s59, 4608" % dv); a("s_add_u32 s%d, s%d, s56" % (dv, dv))
        a("s_mov_b32 s54, s46")
        item_bases(54, 57, 58, 63)
        a("v_add_u32 v%d, s57, v%d" % (AK1, LK1)); a("v_add_u32 v%d, s58, v%d" % (AK2, LK2)); a("v_add_u32 v%d, s63, v%d" % (AV, LV))
        a("ds_read_b128 %s, v%d" % (v(R["K1"][0], 4), AK1))
        a("ds_read_b32 v%d, v%d" % (R["K2"][0], AK2))
        a("s_waitcnt lgkmcnt(0)")
        a(mS1(R["SA"], 0, R["QA1"], R["NA"]))
        a(mS2(R["SA"], 0, R["QA2"]))
        a("s_nop 7"); a("s_nop 3")
        a.label("L2_stage" + tag)
        body = []
        for i in range(NT):
            kb = i & 1; kn = kb ^ 1; vb = i & 1; vp = vb ^ 1
            off = (i + 1) if i < NT - 1 else 0
            lk = ["ds_read_b128 %s, v%d offset:%d" % (v(R["K1"][kn], 4), AK1, off * 1024),
                  "ds_read_b32 v%d, v%d offset:%d" % (R["K2"][kn], AK2, off * 128)]
            lv = ["s_mov_b64 exec, s[52:53]",
                  "ds_read_b128 %s, v%d offset:%d" % (v(R["V"][vb], 4), AV, (2 * i) * 576),
                  "ds_read_b128 %s, v%d offset:%d" % (v(R["V"][vb] + 4, 4), AV, (2 * i + 1) * 576),
                  "s_mov_b64 exec, -1"]
            if i == NT - 2:
                lv = lv[:-1] + ["s_mov_b64 exec, 1", "ds_add_rtn_u32 v%d, v%d, v%d" % (NX, CA, CO), "s_mov_b64 exec, -1"]
            body += phase(R["SA"], R["PA"], R["SB"], R["QB1"], R["QB2"], R["NB"], kb, R["OB"], R["PB"], vp, (lv, lk))
            body.append("s_waitcnt lgkmcnt(0)")
            if i == NT - 2: body.append("NEXT")
            body += phase(R["SB"], R["PB"], R["SA"], R["QA1"], R["QA2"], R["NA"], kn, R["OA"], R["PA"], vb, ([], []))
        for x in body:
            if x == "NEXT":
                a("v_readfirstlane_b32 s55, v%d" % NX)
                a("s_cmp_lt_u32 s55, 16")
                a("s_cselect_b32 s64, s55, s54")
                a("s_cbranch_scc1 L2_more" + tag); a("s_setprio 3"); a.label("L2_more" + tag)
                item_bases(64, 57, 58, 63)
                a("s_lshr_b32 s64, s64, 1")
                a("s_cmp_lt_u32 s64, s61"); a("s_cbranch_scc1 L2_landed" + tag)
                a("v_mov_b32 v1, %d" % FB)
                a.label("L2_spinL" + tag)
                a("ds_read_b32 v3, v1"); a("s_waitcnt lgkmcnt(0)")
                a("v_readfirstlane_b32 s61, v3")
                a("s_cmp_lt_u32 s64, s61"); a("s_cbranch_scc1 L2_landed" + tag)
                a("s_sleep 1"); a("s_branch L2_spinL" + tag)
                a.label("L2_landed" + tag)
                a("v_add_u32 v%d, s57, v%d" % (AK1, LK1)); a("v_add_u32 v%d, s58, v%d" % (AK2, LK2))
            else:
                a(x)
        a("v_add_u32 v%d, s63, v%d" % (AV, LV))
        a("s_mov_b32 s54, s55")
        a("s_cmp_lt_u32 s54, 16")
        a("s_cbranch_scc1 L2_stage" + tag)
        a(mP(R["OB"], 1, 0, R["PB"])); a(mP(R["OB"], 1, 1, R["PB"]))
    mainloop("0", False)
    stamp(a, 7)
    rstamp(a, 15)
    a("s_nop 7"); a("s_nop 3")
    a("v_mov_b32 v1, 0x21800000"); a("v_mov_b32 v3, 0x5d800000")
    a("v_cmp_le_f32 s[56:57], v1, v%d" % (R["OA"] + 10)); a("v_cmp_ge_f32 s[58:59], v3, v%d" % (R["OA"] + 10))
    a("s_and_b64 s[56:57], s[56:57], s[58:59]")
    a("v_cmp_le_f32 s[58:59], v1, v%d" % (R["OB"] + 10)); a("s_and_b64 s[56:57], s[56:57], s[58:59]")
    a("v_cmp_ge_f32 s[58:59], v3, v%d" % (R["OB"] + 10)); a("s_and_b64 s[56:57], s[56:57], s[58:59]")
    a("s_cmp_eq_u32 s56, -1")
    a("s_cbranch_scc1 L2_ok")
    lds_set(a, FBAD, 1, 3)
    a.label("L2_ok")
    a("s_barrier")
    a("v_mov_b32 v1, %d" % FBAD); a("ds_read_b32 v3, v1"); a("s_waitcnt lgkmcnt(0)")
    a("v_readfirstlane_b32 s56, v3")
    a("s_cmp_eq_u32 s56, 0")
    a("s_cbranch_scc1 L2_exch")
    a("s_mov_b32 s60, 1")
    MA, MB = 166, 167
    a("v_mov_b32 v%d, 0xff800000" % MA); a("v_mov_b32 v%d, 0xff800000" % MB)
    a("s_lshl_b32 s54, s46, 2"); a("s_add_u32 s58, s54, 4")
    a.label("L2_maxstage")
    a("s_mul_i32 s55, s54, 18432")
    a("v_add_u32 v1, s55, v%d" % LK1); a("v_add_u32 v3, s55, v%d" % LK2)
    a("s_mov_b32 s55, 0")
    a.label("L2_maxtile")
    a("ds_read_b128 %s, v1" % v(R["K1"][0], 4)); a("ds_read_b32 v%d, v3" % R["K2"][0])
    a("s_waitcnt lgkmcnt(0)")
    a("v_mfma_f32_32x32x16_bf16 %s, %s, %s, 0" % (v(R["SA"], 16), v(R["K1"][0], 4), v(R["QA1"], 4)))
    a("v_mfma_f32_32x32x16_bf16 %s, %s, %s, 0" % (v(R["SB"], 16), v(R["K1"][0], 4), v(R["QB1"], 4)))
    a(mS2(R["SA"], 0, R["QA2"])); a(mS2(R["SB"], 0, R["QB2"]))
    a("s_nop 7"); a("s_nop 7")
    for r in range(16):
        a("v_max_f32 v%d, v%d, v%d" % (MA, MA, R["SA"] + r)); a("v_max_f32 v%d, v%d, v%d" % (MB, MB, R["SB"] + r))
    a("v_add_u32 v1, 1024, v1"); a("v_add_u32 v3, 128, v3")
    a("s_add_u32 s55, s55, 1"); a("s_cmp_lt_u32 s55, 8"); a("s_cbranch_scc1 L2_maxtile")
    a("s_add_u32 s54, s54, 1"); a("s_cmp_lt_u32 s54, s58"); a("s_cbranch_scc1 L2_maxstage")
    a("v_xor_b32 v1, 32, v2"); a("v_lshlrev_b32 v1, 2, v1")
    a("ds_bpermute_b32 v3, v1, v%d" % MA); a("s_waitcnt lgkmcnt(0)"); a("v_max_f32 v%d, v%d, v3" % (MA, MA))
    a("ds_bpermute_b32 v3, v1, v%d" % MB); a("s_waitcnt lgkmcnt(0)"); a("v_max_f32 v%d, v%d, v3" % (MB, MB))
    a("s_lshl_b32 s55, s2, 2"); a("s_add_u32 s55, s55, s45"); a("s_lshl_b32 s55, s55, 1"); a("s_add_u32 s55, s55, s46"); a("s_lshl_b32 s55, s55, 9"); a("s_add_u32 s55, s55, 0x%x" % OFF_MX)
    a("v_lshlrev_b32 v1, 3, v2")
    a("buffer_store_dwordx2 v[%d:%d], v1, s[36:39], s55 offen sc0 sc1" % (MA, MB))
    a("v_mov_b32 v3, s62"); a("v_mov_b32 v6, 2"); a("ds_write_b32 v3, v6")
    a("s_waitcnt vmcnt(0) lgkmcnt(0)")
    a("s_barrier")
    a("s_xor_b32 s56, s55, 512")
    a("buffer_load_dwordx2 v[6:7], v1, s[36:39], s56 offen sc0 sc1")
    a("s_waitcnt vmcnt(0)")
    a("v_max_f32 v%d, v%d, v6" % (MA, MA)); a("v_max_f32 v%d, v%d, v7" % (MB, MB))
    for r in range(16):
        a("v_sub_f32 v%d, 0, v%d" % (R["NA"] + r, MA)); a("v_sub_f32 v%d, 0, v%d" % (R["NB"] + r, MB))
    a("v_mov_b32 v%d, s62" % CA); a("v_mov_b32 v%d, 1" % CO)
    mainloop("1", True)
    a("s_nop 7"); a("s_nop 3")
    a.label("L2_combine")
    a("s_barrier")
    a.label("L2_exch")
    a("s_mul_i32 s55, s45, 6144")
    a("v_lshlrev_b32 v1, 4, v2"); a("v_add_u32 v1, s55, v1")
    a("s_cmp_eq_u32 s46, 0")
    a("s_cbranch_scc1 L2_recv")
    for t, O in enumerate((R["OA"], R["OB"])):
        for c in range(3): a("ds_write_b128 v1, %s offset:%d" % (v(O + 4 * c, 4), (3 * t + c) * 1024))
    a("s_waitcnt lgkmcnt(0)")
    a("s_barrier")
    a("s_cmp_gt_u32 s42, 5"); a("s_cbranch_scc1 L2_noC4")
    a("s_lshr_b32 s55, s40, 3"); a("s_add_u32 s55, s55, %d" % C3)
    a("s_cmp_eq_u32 s42, 4"); a("s_cselect_b32 s55, %d, s55" % C4); a("s_movk_i32 s56, 144"); a("s_cselect_b32 s56, 256, s56")
    a("s_lshl_b32 s55, s55, 7"); a("s_add_u32 s55, s55, 0x%x" % OFF_CNT)
    a("v_mov_b32 v8, s55"); a("v_mov_b32 v9, s56")
    poll_global(a, 8, 9, vt=10, slp=4)
    lds_arrive(a, GO2A, 8, 9)
    a("s_waitcnt lgkmcnt(0)")
    a.label("L2_noC4")
    a("s_barrier")
    p3_sender_issue(a)
    a("s_branch L2_p3")
    a.label("L2_recv")
    a("s_barrier")
    for t in range(2):
        for c in range(3): a("ds_read_b128 %s, v1 offset:%d" % (v(R["SA"] + 12 * t + 4 * c, 4), (3 * t + c) * 1024))
    a("s_waitcnt lgkmcnt(0)")
    for t, O in enumerate((R["OA"], R["OB"])):
        for r in range(12): a("v_add_f32 v%d, v%d, v%d" % (O + r, O + r, R["SA"] + 12 * t + r))
    for t, O in enumerate((R["OA"], R["OB"])):
        a("v_mov_b32 v%d, v%d" % (52 + 2 * t, O + 10)); a("v_mov_b32 v%d, v%d" % (53 + 2 * t, O + 10))
    a("s_nop 1")
    a("v_permlane32_swap_b32 v52, v53"); a("v_permlane32_swap_b32 v54, v55")
    a("s_nop 1")
    a("v_rcp_f32 v52, v52"); a("v_rcp_f32 v54, v54")
    a("s_lshl_b32 s55, s45, 6")
    a("v_add_u32 v3, s55, v4"); a("v_mul_u32_u24 v3, 36, v3"); a("v_lshl_add_u32 v3, v5, 3, v3"); a("v_add_u32 v3, 32768, v3")
    a("v_cmp_eq_u32 vcc, 0, v5")
    for t, O in enumerate((R["OA"], R["OB"])):
        rc = 52 + 2 * t
        for r in range(10): a("v_mul_f32 v%d, v%d, v%d" % (O + r, O + r, rc))
        for c in range(5): a("v_cvt_pk_bf16_f32 v%d, v%d, v%d" % (56 + 5 * t + c, O + 2 * c, O + 2 * c + 1))
    for t in range(2):
        off = t * 32 * 36; b = 56 + 5 * t
        a("ds_write_b32 v3, v%d offset:%d" % (b, off + 0)); a("ds_write_b32 v3, v%d offset:%d" % (b + 1, off + 4))
        a("ds_write_b32 v3, v%d offset:%d" % (b + 2, off + 16)); a("ds_write_b32 v3, v%d offset:%d" % (b + 3, off + 20))
    a("s_and_saveexec_b64 s[56:57], vcc")
    a("ds_write_b32 v3, v60 offset:32"); a("ds_write_b32 v3, v65 offset:%d" % (32 * 36 + 32))
    a("s_mov_b64 exec, s[56:57]")
    a("s_waitcnt lgkmcnt(0)")
    a("s_barrier")
    a("s_lshl_b32 s55, s42, 10")
    a("v_lshlrev_b32 v1, 4, v2"); a("v_add_u32 v1, s55, v1")
    a("v_add_u32 v3, 32768, v1")
    a("ds_read_b128 v[8:11], v3"); a("ds_read_b128 v[12:15], v3 offset:4096")
    a("s_mul_i32 s57, s40, %d" % O_HEAD); a("s_mul_i32 s58, s41, 9216"); a("s_add_u32 s57, s57, s58"); a("s_add_u32 s57, s57, 0x%x" % OFF_O)
    a("v_add_u32 v6, 4096, v1")
    a("s_cmp_lg_u32 s42, 0")
    a("s_cbranch_scc1 L2_o1")
    a("ds_read_b128 v[16:19], v3 offset:8192")
    a("s_waitcnt lgkmcnt(0)")
    a("v_add_u32 v7, 8192, v1")
    a("buffer_store_dwordx4 v[16:19], v7, s[36:39], s57 offen sc1")
    a.label("L2_o1")
    a("s_waitcnt lgkmcnt(0)")
    a("buffer_store_dwordx4 v[8:11], v1, s[36:39], s57 offen sc1")
    a("buffer_store_dwordx4 v[12:15], v6, s[36:39], s57 offen sc1")
    stamp(a, 8)
    a("s_waitcnt vmcnt(0)")
    lds_arrive(a, SBH, 1, 3)
    a.label("L2_p3")
    stamp(a, 13)
    a("s_setprio 0")
    phase3(a)
    a("s_branch L_fin")

    a.label("L2_conv")
    conv(a)

def loader(a):
    a("s_and_b32 s40, s2, 31"); a("s_mul_i32 s43, s40, %d" % KV_HEAD); a("v_lshlrev_b32 v3, 4, v2")
    a("s_setprio 3")
    lds_spin(a, SB3, 8, 1, 4)
    a("v_and_b32 v5, 1, v2"); a("v_add_u32 v5, 1, v5"); a("v_lshlrev_b32 v5, 5, v5"); a("v_add_u32 v5, s40, v5")
    a("v_mul_u32_u24 v5, 0x2aab, v5"); a("v_lshrrev_b32 v5, 16, v5"); a("v_lshlrev_b32 v5, 10, v5")
    a("v_add_u32 v5, 0x%x, v5" % (OFF_CNT + 128 * C1 + 128)); a("v_mov_b32 v6, 2")
    a("s_add_u32 s43, s43, 18432"); a("v_add_u32 v4, 18432, v3")
    a("s_mov_b32 s44, 1")
    a.label("L2_ldstage")
    poll_global(a, 5, 6, vt=7)
    for q in range(18):
        a("buffer_load_dwordx4 %s, v3, s[36:39], s43 offen offset:%d sc1" % (v(8 + 4 * q, 4), (q % 4) * 1024))
        if q % 4 == 3 or q == 17: a("s_add_u32 s43, s43, %d" % (4096 if q % 4 == 3 else 2048))
    for q in range(18):
        a("s_waitcnt vmcnt(%d)" % (17 - q))
        a("ds_write_b128 v4, %s offset:%d" % (v(8 + 4 * q, 4), 1024 * q))
    a("v_add_u32 v4, 18432, v4"); a("v_add_u32 v5, 128, v5")
    a("s_add_u32 s44, s44, 1")
    a("s_waitcnt lgkmcnt(0)")
    a("v_mov_b32 v1, %d" % FB); a("v_mov_b32 v7, s44"); a("ds_write_b32 v1, v7")
    a("s_cmp_lt_u32 s44, 8"); a("s_cbranch_scc1 L2_ldstage")
    a("s_waitcnt lgkmcnt(0)")

def conv(a):
    a("s_sub_u32 s43, s42, 8")
    a("s_lshl_b32 s44, s43, 8"); a("s_add_u32 s44, s44, s2")
    a("s_cmp_eq_u32 s43, 2"); a("s_cbranch_scc0 %s" % (lbl := a.uid("Lch")))
    a("s_add_u32 s44, s2, 320"); a("s_cmp_lt_u32 s2, 192"); a("s_cselect_b32 s44, 0xffff, s44")
    a.label(lbl)
    a("s_cmp_ge_u32 s44, 576")
    a("s_cbranch_scc1 L_fin")
    a("s_load_dwordx2 s[10:11], s[0:1], 64")
    a("s_mul_hi_u32 s45, s44, 0x%x" % ((1 << 32) // 48 + 1)); a("s_add_u32 s45, s45, %d" % C2); a("s_lshl_b32 s45, s45, 7"); a("s_add_u32 s45, s45, 0x%x" % OFF_CNT)
    a("v_mov_b32 v5, s45"); a("v_mov_b32 v6, 16")
    poll_global(a, 5, 6, vt=7, slp=6)
    stamp(a, 6)
    a("v_lshlrev_b32 v3, 4, v2")
    a("s_lshl_b32 s46, s44, 12"); a("s_add_u32 s46, s46, 0x%x" % OFF_URT)
    a("s_mul_i32 s47, s43, 4608"); a("s_add_u32 s47, s47, %d" % LDS_UR)
    for q in range(4): a("buffer_load_dwordx4 %s, v3, s[36:39], s46 offen offset:%d sc1" % (v(8 + 4 * q, 4), 1024 * q))
    a("s_mul_i32 s48, s44, %d" % (2 * HP_ROW)); a("s_add_u32 s48, s48, 0x%x" % OFF_HP)
    a("v_and_b32 v4, 15, v2"); a("v_lshrrev_b32 v5, 4, v2")
    a("v_and_b32 v6, 7, v4"); a("v_lshlrev_b32 v6, 1, v6")
    a("v_lshrrev_b32 v7, 3, v4")
    a("v_lshl_add_u32 v6, v7, 1, v6"); a("v_lshl_add_u32 v6, v5, 3, v6"); a("v_lshlrev_b32 v6, 1, v6")
    a("v_mov_b32 v24, %d" % HP_ROW); a("v_cmp_eq_u32 vcc, 0, v7"); a("v_mov_b32 v25, 0"); a("s_nop 0")
    a("v_cndmask_b32 v24, v25, v24, vcc"); a("v_add_u32 v6, v6, v24")
    a("v_lshlrev_b32 v7, 5, v4"); a("v_lshlrev_b32 v24, 4, v5"); a("v_sub_u32 v7, v24, v7")
    a("v_add_u32 v7, s47, v7"); a("v_add_u32 v7, 4064, v7")
    AF, AG, BF, Y = 16, 112, 48, 80
    for mu in range(8): a("buffer_load_dwordx4 %s, v6, s[36:39], s48 offen offset:%d" % (v(AG + 4 * mu, 4), 512 * mu))
    a("v_add_u32 v26, s47, v3")
    for q in range(4):
        a("s_waitcnt vmcnt(%d)" % (8 + 3 - q))
        a("ds_write_b128 v26, %s offset:%d" % (v(8 + 4 * q, 4), 1024 * q))
    for r in range(4): a("v_mov_b32 v%d, 0" % (28 + r))
    a("s_mov_b32 exec_hi, 0")
    a("ds_write_b128 v26, v[28:31] offset:4096")
    a("s_mov_b64 exec, -1")
    for r in range(32): a("v_mov_b32 v%d, 0" % (Y + r))
    a("s_waitcnt lgkmcnt(0)")
    stamp(a, 8)
    a("s_setprio %d" % (2 if "conv2" in EXP else (0 if ("conv0" in EXP or "convmix" in EXP) else 1)))
    a("s_mov_b32 s51, 0")
    if "noconvloop" in EXP: a("s_branch L2c_skip")
    a.label("L2c_rho")
    for half, (cur, nxt) in enumerate(((AG, AF), (AF, AG))):
        if "convmix" in EXP and half == 0:
            a("s_cmp_ge_u32 s51, 4"); a("s_cbranch_scc0 L2c_lp"); a("s_setprio 1"); a.label("L2c_lp")
        a("s_add_u32 s52, s51, %d" % half); a("s_lshl_b32 s52, s52, 6")
        a("v_add_u32 v8, s52, v7"); a("v_subrev_u32 v8, %d, v8" % (512 * 7))
        for sg in range(8): a("ds_read_b128 %s, v8 offset:%d" % (v(BF + 4 * sg, 4), 512 * (7 - sg)))
        a("s_add_u32 s53, s52, 64"); a("s_and_b32 s53, s53, 0x1ff"); a("s_add_u32 s53, s53, s48")
        for mu in range(8): a("buffer_load_dwordx4 %s, v6, s[36:39], s53 offen offset:%d" % (v(nxt + 4 * mu, 4), 512 * mu))
        a("s_waitcnt lgkmcnt(0)")
        for mu in range(8):
            a("s_waitcnt vmcnt(%d)" % (8 + 7 - mu))
            for sg in range(8 - mu):
                t = mu + sg
                a("v_mfma_f32_16x16x32_bf16 %s, %s, %s, %s" % (v(Y + 4 * t, 4), v(cur + 4 * mu, 4), v(BF + 4 * sg, 4), v(Y + 4 * t, 4)))
    a("s_add_u32 s51, s51, 2"); a("s_cmp_lt_u32 s51, 8"); a("s_cbranch_scc1 L2c_rho")
    a.label("L2c_skip")
    stamp(a, 9)
    a("s_setprio 3")
    a("s_waitcnt vmcnt(0)")
    a("s_lshl_b32 s52, s44, 1"); a("s_and_b32 s53, s52, 0xfffffffc")
    a("s_add_u32 s54, s10, s53"); a("s_addc_u32 s55, s11, 0")
    a("s_load_dword s56, s[54:55], 0")
    a("s_waitcnt lgkmcnt(0)")
    a("s_and_b32 s57, s52, 2"); a("s_lshl_b32 s57, s57, 3"); a("s_lshr_b32 s56, s56, s57"); a("s_lshl_b32 s56, s56, 16")
    a("v_and_b32 v8, 1, v5"); a("v_lshrrev_b32 v9, 1, v5")
    a("v_lshlrev_b32 v10, 4, v4"); a("v_lshl_add_u32 v10, v8, 3, v10"); a("v_lshl_add_u32 v10, v9, 2, v10")
    a("v_lshlrev_b32 v11, 1, v10")
    a("v_sub_u32 v12, 0, v11"); a("v_add_u32 v12, s47, v12"); a("v_add_u32 v12, %d, v12" % (2 * 2044 - 512 * 7))
    for t in range(8): a("ds_read_b64 %s, v12 offset:%d" % (v(AF + 2 * t, 2), 512 * (7 - t)))
    a("s_lshl_b32 s52, s44, 12"); a("s_add_u32 s52, s52, 0x%x" % OFF_YT)
    a("s_nop 7")
    for t in range(8):
        y = Y + 4 * t
        a("v_permlane32_swap_b32 v%d, v%d" % (y, y + 2)); a("v_permlane32_swap_b32 v%d, v%d" % (y + 1, y + 3))
    a("s_waitcnt lgkmcnt(0)")
    for t in range(8):
        y = Y + 4 * t; u0, u1 = AF + 2 * t, AF + 2 * t + 1
        a("v_and_b32 v40, 0xffff0000, v%d" % u1); a("v_fma_f32 v%d, v40, s56, v%d" % (y, y))
        a("v_lshlrev_b32 v41, 16, v%d" % u1);     a("v_fma_f32 v%d, v41, s56, v%d" % (y + 2, y + 2))
        a("v_and_b32 v42, 0xffff0000, v%d" % u0); a("v_fma_f32 v%d, v42, s56, v%d" % (y + 1, y + 1))
        a("v_lshlrev_b32 v43, 16, v%d" % u0);     a("v_fma_f32 v%d, v43, s56, v%d" % (y + 3, y + 3))
        a("v_cvt_pk_bf16_f32 v%d, v%d, v%d" % (112 + 2 * t, y, y + 2))
        a("v_cvt_pk_bf16_f32 v%d, v%d, v%d" % (113 + 2 * t, y + 1, y + 3))
        a("buffer_store_dwordx2 %s, v11, s[36:39], s52 offen offset:%d sc1" % (v(112 + 2 * t, 2), 512 * t))
    a("s_waitcnt vmcnt(0)")
    a("s_mul_hi_u32 s45, s44, 0x%x" % ((1 << 32) // 144 + 1)); a("s_add_u32 s45, s45, %d" % C3)
    atomic_inc(a, 45)
    if "wbl2" in EXP:
        a("s_cmp_lg_u32 s42, 8"); a("s_cbranch_scc1 L_fin"); a("buffer_wbl2 sc1"); a("s_waitcnt vmcnt(0)")
    stamp(a, 7)
    a("s_branch L_fin")

P3_OB, P3_YB, P3_UB, P3_W8, P3_XB = 49152, 90112, 102400, 112640, 131072
P3_WA, P3_ST, P3_NPF, P3_OA = 20, 92, 20, 128
def p3_setup(a):
    a("s_load_dwordx2 s[4:5], s[0:1], 0"); a("s_load_dwordx2 s[6:7], s[0:1], 80")
    a("s_and_b32 s43, s40, 7"); a("s_lshl_b32 s43, s43, 5"); a("s_lshl_b32 s44, s41, 8"); a("s_add_u32 s43, s43, s44")
    a("s_lshr_b32 s44, s40, 3")
    a("v_and_b32 v3, 15, v2"); a("v_lshrrev_b32 v4, 4, v2"); a("v_lshlrev_b32 v5, 4, v2")
    lds_spin(a, GO2A, 2, 1, 6)
    srd(a, 16, 4, 2048 * 1152); srd(a, 20, 6, 2048 * 1152)
    a("s_mul_i32 s45, s44, 9"); a("s_mul_i32 s47, s44, 288")
def p3_prefetch(a):
    WA = P3_WA
    a("s_mul_i32 s45, s44, 9"); a("s_add_u32 s46, s45, s42"); a("s_mul_i32 s46, s46, 18*1024"); a("s_add_u32 s46, s46, 0x%x" % OFF_WOF)
    for ks in range(18):
        a("buffer_load_dwordx4 %s, v5, s[36:39], s46 offen offset:%d sc1" % (v(WA + 4 * ks, 4), (ks % 4) * 1024))
        if ks % 4 == 3: a("s_add_u32 s46, s46, 4096")
    a("v_add_u32 v6, s43, v3")
    a("v_lshlrev_b32 v14, 2, v6"); a("s_mov_b32 s51, 0x%x" % OFF_G)
    a("buffer_load_dword v16, v14, s[36:39], s51 offen sc1"); a("buffer_load_dword v17, v14, s[36:39], s51 offen offset:64 sc1")
def p3_sender_issue(a):
    ST, W8, YB = P3_ST, P3_W8, P3_YB
    p3_setup(a)
    a("s_cmp_lt_u32 s42, 6"); a("s_cbranch_scc1 L3_rY")
    a("s_add_u32 s46, s45, 8"); a("s_mul_i32 s46, s46, 18*1024"); a("s_add_u32 s46, s46, 0x%x" % OFF_WOF)
    a("s_sub_u32 s52, s42, 6"); a("s_mul_i32 s52, s52, 9216"); a("s_add_u32 s46, s46, s52")
    for i in range(9):
        a("buffer_load_dwordx4 %s, v5, s[36:39], s46 offen offset:%d sc1" % (v(ST + 4 * i, 4), (i % 4) * 1024))
        if i % 4 == 3: a("s_add_u32 s46, s46, 4096")
    a("s_add_u32 s52, s52, %d" % W8); a("v_add_u32 v12, s52, v5")
    a("s_branch L3_pf")
    a.label("L3_rY")
    a("v_lshrrev_b32 v14, 2, v2"); a("v_and_b32 v15, 3, v2")
    a("s_sub_u32 s52, s42, 4"); a("s_mul_i32 s52, s52, 80")
    a("s_mul_i32 s53, s44, 144"); a("s_add_u32 s53, s53, s52")
    a("v_add_u32 v14, s53, v14"); a("v_lshlrev_b32 v14, 12, v14"); a("v_lshl_add_u32 v14, v15, 4, v14")
    a("s_lshl_b32 s53, s43, 1"); a("s_add_u32 s53, s53, 0x%x" % OFF_YT)
    for i in range(5):
        a("buffer_load_dwordx4 %s, v14, s[36:39], s53 offen sc1" % v(ST + 4 * i, 4))
        a("s_add_u32 s53, s53, 16*4096")
    a("s_lshl_b32 s52, s52, 6"); a("s_add_u32 s52, s52, %d" % YB)
    a("v_add_u32 v12, s52, v5")
    a.label("L3_pf")
    lds_spin(a, ARR, 1, 1, 6)
    p3_prefetch(a)
def phase3(a):
    OB, YB, UB, W8, XB = P3_OB, P3_YB, P3_UB, P3_W8, P3_XB
    WA, ST, NPF, OA_ = P3_WA, P3_ST, P3_NPF, P3_OA
    def prefetch(): p3_prefetch(a)
    a("s_cmp_ge_u32 s42, 4"); a("s_cbranch_scc1 L3_calc")
    a("s_cmp_lg_u32 s42, 0")
    a("s_cbranch_scc1 L3_noarr")
    lds_spin(a, SBH, 4, 1, 3)
    a("s_add_u32 s52, s41, %d" % C5)
    atomic_inc(a, 52, 14, 15)
    lds_set(a, ARR, 1, 3)
    a.label("L3_noarr")
    p3_setup(a)
    a("s_cmp_eq_u32 s42, 0"); a("s_cbranch_scc1 L3_calc")
    a("s_movk_i32 s52, 3641"); a("s_sub_u32 s53, s42, 1"); a("s_mul_i32 s53, s53, 192")
    for i in range(3):
        a("v_add_u32 v8, s53, v2"); a("v_add_u32 v8, %d, v8" % (64 * i))
        a("v_mul_u32_u24 v9, s52, v8"); a("v_lshrrev_b32 v9, 16, v9")
        a("v_mul_u32_u24 v10, 18, v9"); a("v_sub_u32 v10, v8, v10")
        a("v_mul_u32_u24 v11, 304, v9"); a("v_lshl_add_u32 v%d, v10, 4, v11" % (160 + i)); a("v_add_u32 v%d, %d, v%d" % (160 + i, XB, 160 + i))
        a("v_add_u32 v9, s43, v9"); a("v_mul_u32_u24 v9, 1152, v9"); a("v_lshl_add_u32 v9, v10, 4, v9")
        a("buffer_load_dwordx4 %s, v9, s[16:19], s47 offen" % v(ST + 4 * i, 4))
    lds_spin(a, ARR, 1, 1, 6)
    prefetch()
    a.label("L3_calc")
    a("s_movk_i32 s52, 7282"); a("s_mul_i32 s54, s42, 36")
    for part in range(2):
        for j in range(4):
            a("v_lshlrev_b32 v14, 2, v2"); a("v_add_u32 v14, %d, v14" % (256 * part + j))
            a("v_mul_u32_u24 v15, s52, v14"); a("v_lshrrev_b32 v15, 16, v15")
            a("v_mul_u32_u24 v18, 9, v15"); a("v_sub_u32 v14, v14, v18")
            a("v_add_u32 v14, s54, v14")
            a("v_bfe_u32 v18, v15, 1, 3")
            a("v_mul_u32_u24 v15, 1152, v15"); a("v_add_u32 v15, %d, v15" % OB)
            for hh in range(4):
                r = OA_ + 8 * hh + 4 * part + j
                if hh: a("v_add_u32 v14, 9, v14")
                a("v_lshrrev_b32 v164, 2, v14"); a("v_xor_b32 v164, v164, v18"); a("v_lshl_add_u32 v164, v164, 4, v15")
                a("v_and_b32 v165, 3, v14"); a("v_lshl_add_u32 v%d, v165, 2, v164" % r)
    assert all((q * 7282 >> 16) == q // 9 for q in range(288))
    a("s_lshl_b32 s52, s42, 2"); a("s_mul_i32 s53, s52, %d" % O_HEAD); a("s_mul_i32 s54, s43, 36"); a("s_add_u32 s53, s53, s54"); a("s_add_u32 s53, s53, 0x%x" % OFF_O)
    a("v_add_u32 v14, 1024, v5"); a("v_mov_b32 v15, 0x%x" % OOB); a("v_cmp_gt_u32 vcc, 8, v2"); a("s_nop 1"); a("v_cndmask_b32 v19, v15, v14, vcc")
    a("s_cmp_eq_u32 s42, 0"); a("s_cbranch_scc1 L3_prepdone")
    a("s_cmp_lt_u32 s42, 4"); a("s_cbranch_scc0 L3_s47")
    for i in range(3):
        a("s_waitcnt vmcnt(%d)" % (NPF + 2 - i))
        a("ds_write_b128 v%d, %s" % (160 + i, v(ST + 4 * i, 4)))
    a("s_branch L3_prepdone")
    a.label("L3_s47")
    a("s_cmp_lt_u32 s42, 6"); a("s_cbranch_scc1 L3_sY")
    for i in range(9):
        a("s_waitcnt vmcnt(%d)" % (NPF + 8 - i))
        a("ds_write_b128 v12, %s offset:%d" % (v(ST + 4 * i, 4), 1024 * i))
    a("s_branch L3_prepdone")
    a.label("L3_sY")
    for i in range(5):
        a("s_waitcnt vmcnt(%d)" % (NPF + 4 - i))
        a("ds_write_b128 v12, %s offset:%d" % (v(ST + 4 * i, 4), 1024 * i))
    a.label("L3_prepdone")
    stamp(a, 2)
    stamp(a, 3)
    a("s_cmp_lg_u32 s42, 0")
    a("s_cbranch_scc1 L3_waitgo")
    a("s_add_u32 s52, s41, %d" % C5); a("s_lshl_b32 s52, s52, 7"); a("s_add_u32 s52, s52, 0x%x" % OFF_CNT)
    a("v_mov_b32 v14, s52"); a("v_mov_b32 v15, 32")
    poll_global(a, 14, 15, vt=18, slp=4)
    lds_set(a, GO2B, 1, 18)
    a("s_branch L3_go")
    a.label("L3_waitgo")
    lds_spin(a, GO2B, 1, 1, 18)
    a.label("L3_go")
    stamp(a, 9)
    for hh in range(4):
        a("buffer_load_dwordx4 %s, v5, s[36:39], s53 offen sc1" % v(ST + 8 * hh, 4))
        a("buffer_load_dwordx4 %s, v19, s[36:39], s53 offen sc1" % v(ST + 8 * hh + 4, 4))
        a("s_add_u32 s53, s53, %d" % O_HEAD)
    def scatter(extra):
        for hh in range(4):
            a("s_waitcnt vmcnt(%d)" % (extra + 7 - 2 * hh))
            for j in range(4): a("ds_write_b32 v%d, v%d" % (OA_ + 8 * hh + j, ST + 8 * hh + j))
            a("s_waitcnt vmcnt(%d)" % (extra + 6 - 2 * hh))
            a("s_mov_b64 exec, 0xff")
            for j in range(4): a("ds_write_b32 v%d, v%d" % (OA_ + 8 * hh + 4 + j, ST + 8 * hh + 4 + j))
            a("s_mov_b64 exec, -1")
    a("s_cmp_lg_u32 s42, 0")
    a("s_cbranch_scc1 L3_w17")
    prefetch()
    scatter(NPF)
    a("s_branch L3_noO")
    a.label("L3_w17")
    scatter(0)
    a.label("L3_noO")
    a("s_waitcnt vmcnt(0) lgkmcnt(0)")
    a("s_barrier")
    stamp(a, 10)
    a("v_lshrrev_b32 v7, 1, v3"); a("v_xor_b32 v7, v7, v4"); a("v_mul_u32_u24 v6, 1152, v3"); a("v_lshl_add_u32 v6, v7, 4, v6"); a("v_add_u32 v6, %d, v6" % OB)
    a("v_xor_b32 v162, 64, v6")
    a("s_and_b32 s52, s42, 1"); a("s_mul_i32 s52, s52, 16*1152"); a("v_add_u32 v7, s52, v6"); a("v_add_u32 v163, s52, v162")
    a("v_add_u32 v14, %d, v5" % W8)
    AC = [92, 96, 100]; BFR = [104, 116]; A2 = [128, 132]
    TM, YR = 136, 148
    a("v_lshrrev_b32 v154, 2, v2"); a("v_and_b32 v154, 3, v154"); a("v_lshl_add_u32 v154, v4, 2, v154"); a("v_lshlrev_b32 v154, 6, v154")
    a("v_and_b32 v155, 3, v2"); a("v_lshl_add_u32 v154, v155, 3, v154"); a("v_add_u32 v154, %d, v154" % YB)
    a("s_lshl_b32 s56, s42, 10"); a("v_add_u32 v155, s56, v154")
    a("ds_read_b64_tr_b16 %s, v155" % v(YR, 2)); a("ds_read_b64_tr_b16 %s, v155 offset:32" % v(YR + 2, 2))
    a("s_and_b32 s59, s42, 1"); a("s_lshl_b32 s56, s59, 5"); a("s_add_u32 s56, s56, 8*1024"); a("v_add_u32 v155, s56, v154")
    a("ds_read_b64_tr_b16 %s, v155" % v(YR + 4, 2))
    a("v_mul_u32_u24 v8, 304, v3"); a("v_lshl_add_u32 v8, v4, 3, v8"); a("v_add_u32 v15, %d, v8" % XB)
    a("s_lshl_b32 s56, s42, 5"); a("v_add_u32 v19, s56, v15")
    a("ds_read_b64 v[8:9], v19"); a("ds_read_b64 v[10:11], v19 offset:%d" % (16 * 304))
    a("s_mul_i32 s56, s59, 16*304"); a("s_add_u32 s56, s56, 256"); a("v_add_u32 v19, s56, v15")
    a("ds_read_b64 v[12:13], v19")
    a("s_cmp_eq_u32 s59, 0"); a("s_cselect_b64 vcc, -1, 0"); a("v_cndmask_b32 v18, v17, v16, vcc")
    GR = [16, 17, 18]; XR = [8, 10, 12]
    terms = []
    for t in range(3):
        terms.append("v_sub_f32 v%d, 1.0, v%d" % (164 + t, GR[t]))
        for r in range(4):
            x_, y_ = XR[t] + r // 2, YR + 2 * t + r // 2
            if r % 2 == 0:
                terms += ["v_lshlrev_b32 v%d, 16, v%d" % (TM + 4 * t + r, x_), "v_lshlrev_b32 v167, 16, v%d" % y_]
            else:
                terms += ["v_and_b32 v%d, 0xffff0000, v%d" % (TM + 4 * t + r, x_), "v_and_b32 v167, 0xffff0000, v%d" % y_]
            terms += ["v_mul_f32 v%d, v%d, v167" % (TM + 4 * t + r, TM + 4 * t + r), "v_mul_f32 v%d, v%d, v%d" % (TM + 4 * t + r, TM + 4 * t + r, 164 + t)]
    def kloop(three):
        NBUF = 3 if not three else 2
        BB = [104, 112, 120] if not three else BFR
        tl = list(terms)
        def rd(ks):
            b = BB[ks % NBUF]
            r0, r1 = (6, 7) if ks % 2 == 0 else (162, 163)
            o = 128 * (ks >> 1)
            out = ["ds_read_b128 %s, v%d offset:%d" % (v(b, 4), r0, o), "ds_read_b128 %s, v%d offset:%d" % (v(b + 4, 4), r0, o + 16 * 1152)]
            if three:
                out += ["ds_read_b128 %s, v%d offset:%d" % (v(b + 8, 4), r1, o), "ds_read_b128 %s, v14 offset:%d" % (v(A2[ks & 1], 4), 1024 * ks)]
            return out
        n = 4 if three else 2
        D = NBUF - 1
        for k in range(D):
            for x in rd(k): a(x)
        for ks in range(18):
            if ks + D < 18:
                for x in rd(ks + D): a(x)
            rem = min(D, 17 - ks)
            a("s_waitcnt lgkmcnt(%d)" % (n * rem))
            b = BB[ks % NBUF]
            for t in range(2):
                c = "0" if ks == 0 else v(AC[t], 4)
                a("v_mfma_f32_16x16x32_bf16 %s, %s, %s, %s" % (v(AC[t], 4), v(WA + 4 * ks, 4), v(b + 4 * t, 4), c))
            if three:
                c = "0" if ks == 0 else v(AC[2], 4)
                a("v_mfma_f32_16x16x32_bf16 %s, %s, %s, %s" % (v(AC[2], 4), v(A2[ks & 1], 4), v(b + 8, 4), c))
            for x in tl[:4]: a(x)
            tl = tl[4:]
        for x in tl: a(x)
    def epi(t, moff, noff):
        for r in range(4): a("v_fma_f32 v%d, v%d, v%d, v%d" % (AC[t] + r, AC[t] + r, GR[t], TM + 4 * t + r))
        a("v_cvt_pk_bf16_f32 v%d, v%d, v%d" % (104 + 2 * t, AC[t], AC[t] + 1)); a("v_cvt_pk_bf16_f32 v%d, v%d, v%d" % (105 + 2 * t, AC[t] + 2, AC[t] + 3))
    a("s_cmp_ge_u32 s42, 6")
    a("s_cbranch_scc1 L3_k3")
    kloop(False)
    a("s_branch L3_kdone")
    a.label("L3_k3")
    kloop(True)
    a.label("L3_kdone")
    stamp(a, 11)
    a("v_mul_u32_u24 v154, 304, v3"); a("v_lshl_add_u32 v154, v4, 3, v154"); a("v_add_u32 v154, %d, v154" % UB)
    a("s_lshl_b32 s56, s42, 5"); a("v_add_u32 v155, s56, v154")
    a("s_nop 2")
    epi(0, 0, 0); epi(1, 0, 0)
    a("ds_write_b64 v155, v[104:105]"); a("ds_write_b64 v155, v[106:107] offset:%d" % (16 * 304))
    a("s_cmp_lt_u32 s42, 6")
    a("s_cbranch_scc1 L3_edone")
    epi(2, 0, 0)
    a("s_mul_i32 s56, s59, 16*304"); a("s_add_u32 s56, s56, 256"); a("v_add_u32 v155, s56, v154")
    a("ds_write_b64 v155, v[108:109]")
    a.label("L3_edone")
    a("s_waitcnt lgkmcnt(0)")
    a("s_barrier")
    a("s_movk_i32 s56, 3641")
    for rep in range(2):
        if rep == 1:
            a("s_cmp_lg_u32 s42, 0"); a("s_cbranch_scc1 L_fin")
        a("s_lshl_b32 s57, s42, 6"); a("v_add_u32 v6, s57, v2")
        if rep == 1: a("v_add_u32 v6, 512, v6")
        a("v_mul_u32_u24 v7, s56, v6"); a("v_lshrrev_b32 v7, 16, v7")
        a("v_mul_u32_u24 v8, 18, v7"); a("v_sub_u32 v8, v6, v8")
        a("v_mul_u32_u24 v9, 304, v7"); a("v_lshl_add_u32 v9, v8, 4, v9"); a("v_add_u32 v9, %d, v9" % UB)
        a("ds_read_b128 v[24:27], v9")
        a("v_add_u32 v7, s43, v7"); a("v_mul_u32_u24 v7, 1152, v7"); a("v_lshl_add_u32 v7, v8, 4, v7")
        a("s_waitcnt lgkmcnt(0)")
        a("buffer_store_dwordx4 v[24:27], v7, s[20:23], s47 offen")
    assert all((x * 3641 >> 16) == x // 18 for x in range(576))

def descriptor(name, nvgpr, nsgpr=100):
    return """.p2align 6
.amdhsa_kernel %s
  .amdhsa_next_free_vgpr %d
  .amdhsa_next_free_sgpr %d
  .amdhsa_accum_offset %d
  .amdhsa_group_segment_fixed_size 0
  .amdhsa_kernarg_size 104
  .amdhsa_user_sgpr_count 2
  .amdhsa_user_sgpr_kernarg_segment_ptr 1
  .amdhsa_system_sgpr_workgroup_id_x 1
  .amdhsa_float_denorm_mode_32 3
.end_amdhsa_kernel
""" % (name, nvgpr, nsgpr, nvgpr)

def main():
    global DIAG
    global RT
    RT = "--rt" in sys.argv
    DIAG = "--diag" in sys.argv or RT
    for x in sys.argv:
        if x.startswith("--exp="): EXP.update(x[6:].split(","))
    args = [x for x in sys.argv[1:] if not x.startswith("--")]
    a = Asm()
    hdr = open("gated_mix__mha_block__ssm_conv_h3__prompt.s.ref").read().split("\n")
    head = [l for l in hdr if l.startswith(";") and "@launch" not in l and "Override" not in l and "grid=ceil" not in l]
    a.raw("\n".join(head))
    a.raw("; @launch grid=(256,1,1) block=(768,1,1) lds=%d" % LDS_TOTAL)
    a.raw('.amdgcn_target "amdgcn-amd-amdhsa--gfx950"')
    a.raw(".text")
    a.raw(".globl %s" % NAME); a.raw(".p2align 8"); a.raw(".type %s,@function" % NAME); a.label(NAME)
    a("s_cmp_ge_u32 s2, 256")
    a("s_cbranch_scc1 L_end")
    phase1(a)
    phase2(a)
    a.label("L_fin")
    stamp(a, 12)
    stamp_store(a)
    a.label("L_end")
    a("s_endpgm")
    a.raw('.section .rodata,"a"')
    a.raw(descriptor(NAME, 168))
    if "plainld" in EXP:
        out_l = []
        for k, l in enumerate(a.lines):
            if "buffer_load" in l and " sc1" in l and "sc0" not in l:
                nxt = a.lines[k + 1] if k + 1 < len(a.lines) else ""
                is_poll = ("buffer_load_dword v" in l and ", 0 offen sc1" in l and "offset" not in l and "s_waitcnt vmcnt(0)" in nxt)
                if not is_poll: l = l.replace(" sc1", "")
            out_l.append(l)
        a.lines = out_l
    if "nosc1" in EXP:
        a.lines = [l.replace(" sc1", "") if ("buffer_store" in l and "sc0" not in l) else l for l in a.lines]
    if "nosideload" in EXP:
        out_l = []; inside = False
        for l in a.lines:
            if "L1_side:" in l: inside = True
            if "L1_out:" in l: inside = False
            if inside and ("buffer_load_dword" in l or "buffer_load_ushort" in l) and "s[20:23]" not in l: continue
            out_l.append(l)
        a.lines = out_l
    if "nosidestore" in EXP:
        out_l = []; inside = False
        for l in a.lines:
            if "L1_side:" in l: inside = True
            if "L1_out:" in l: inside = False
            if inside and "buffer_store" in l and "s[20:23]" not in l and "v1, s[36:39], 0 offen sc1" not in l: continue
            out_l.append(l)
        a.lines = out_l
    if "hpsc1" in EXP:
        a.lines = [l + " sc1" if ("buffer_store_dwordx4" in l and "v118" in l and "sc1" not in l) else l for l in a.lines]
    if "hpplain" not in EXP and "hpsc1" not in EXP:
        a.lines = [l + " nt" if ("buffer_store_dwordx4" in l and "v118" in l and "sc1" not in l) else l for l in a.lines]
    if "outsc1" in EXP:
        a.lines = [l + " sc1" if ("buffer_store_dwordx4 v[24:27], v7, s[20:23]" in l) else l for l in a.lines]
    if "outplain" not in EXP and "outsc1" not in EXP:
        a.lines = [l + " nt" if ("buffer_store_dwordx4 v[24:27], v7, s[20:23]" in l) else l for l in a.lines]
    out = args[0] if args else "fused3.s"
    open(out, "w").write(a.text())
    probs = check_seq(a.lines, "all")
    for p in probs: print("HAZARD", p)
    print("wrote", out, len(a.lines), "lines")

if __name__ == "__main__":
    main()
```

```python
import sys, struct
from asmlib import *

NAME = "gated_mix__mha_block__ssm_conv_h3__prompt_kernel"
KV_HEAD = 147456
Q_HEAD  = 73728
OFF_KV  = 0
OFF_Q   = OFF_KV + 32 * KV_HEAD
URT_ROW = 4096
OFF_URT = OFF_Q + 32 * Q_HEAD
HP_ROW  = 5120
OFF_HP  = OFF_URT + 576 * URT_ROW
OFF_YT  = OFF_HP + 576 * 2 * HP_ROW
O_HEAD  = 2048 * 36
OFF_O   = OFF_YT + 576 * 4096
OFF_G   = OFF_O + 32 * O_HEAD
OFF_WOF = OFF_G + 2048 * 4
OFF_MX  = OFF_WOF + 648 * 1024
OFF_CNT = OFF_MX + 256 * 8 * 512
WS_USED = OFF_CNT + 256 * 128
WS_SRD_SIZE = 0x2000000
assert WS_USED <= WS_SRD_SIZE and OFF_CNT % 128 == 0
C1, C2, C3, C4, C5 = 0, 128, 140, 144, 145
QSCALE = 1.4426950408889634 / (18.0 ** 0.5)
def f32bits(x): return struct.unpack("<I", struct.pack("<f", x))[0]
OOB = 0x80000000
LDS_KV = 147456
LDS_UR = LDS_KV
LDS_FLAG = LDS_UR + 3 * 4608
FA, FB, FBAD, GO1, CNT, GO2A, GO2B = LDS_FLAG, LDS_FLAG + 4, LDS_FLAG + 8, LDS_FLAG + 12, LDS_FLAG + 16, LDS_FLAG + 32, LDS_FLAG + 36
SB1, SB2, SB3, SB4, SB5 = LDS_FLAG + 40, LDS_FLAG + 44, LDS_FLAG + 48, LDS_FLAG + 52, LDS_FLAG + 56
SBG = LDS_FLAG + 60
INITOK = LDS_FLAG + 64
SBH = LDS_FLAG + 68
ARR = LDS_FLAG + 72
LDS_TOTAL = LDS_FLAG + 128
VMASK = 0x0003FFFF
SPIN_MAX = 200000
TB_ = 32768
NPRE = 8

DIAG = False
USE_NEG = False
EXP = set()
NST = 16
RT = False
def stamp(a, i):
    if not DIAG: return
    a("%s s[76:77]" % ("s_memrealtime" if RT else "s_memtime")); a("s_waitcnt lgkmcnt(0)"); a("s_mov_b32 s%d, s76" % (80 + i))
def rstamp(a, i):
    if not DIAG or RT: return
    a("s_memrealtime s[76:77]"); a("s_waitcnt lgkmcnt(0)"); a("s_mov_b32 s%d, s76" % (80 + i))
def stamp_init(a):
    if not DIAG: return
    for i in range(NST): a("s_mov_b32 s%d, 0" % (80 + i))
def stamp_store(a):
    if not DIAG: return
    a("s_waitcnt vmcnt(0)")
    a("s_mov_b32 s38, 0x4000000")
    a("v_lshrrev_b32 v1, 6, v0"); a("s_lshl_b32 s78, s2, 4"); a("v_add_u32 v1, s78, v1")
    a("v_lshlrev_b32 v1, 6, v1"); a("v_add_u32 v1, 0x3000000, v1")
    for i in range(NST):
        a("v_mov_b32 v2, s%d" % (80 + i))
        a("buffer_store_dword v2, v1, s[36:39], 0 offen offset:%d" % (4 * i))

def srd(a, dst, ptr, size):
    a("s_mov_b32 s%d, s%d" % (dst, ptr))
    a("s_and_b32 s%d, s%d, 0xffff" % (dst + 1, ptr + 1))
    a("s_mov_b32 s%d, 0x%x" % (dst + 2, size))
    a("s_mov_b32 s%d, 0x20000" % (dst + 3))

def lds_arrive(a, addr, va=1, vb=3):
    a("v_mov_b32 v%d, %d" % (va, addr)); a("v_mov_b32 v%d, 1" % vb)
    a("s_mov_b64 exec, 1"); a("ds_add_u32 v%d, v%d" % (va, vb)); a("s_mov_b64 exec, -1")
def lds_set(a, addr, va=1, vb=3):
    a("v_mov_b32 v%d, %d" % (va, addr)); a("v_mov_b32 v%d, 1" % vb)
    a("ds_write_b32 v%d, v%d" % (va, vb)); a("s_waitcnt lgkmcnt(0)")
def lds_spin(a, addr, target, va=1, vb=3, st=56, sleep=True, slp=1):
    l = a.uid("Lspin")
    a("v_mov_b32 v%d, %d" % (va, addr))
    a.label(l)
    a("ds_read_b32 v%d, v%d" % (vb, va)); a("s_waitcnt lgkmcnt(0)")
    a("v_readfirstlane_b32 s%d, v%d" % (st, vb))
    a("s_cmp_ge_u32 s%d, %d" % (st, target))
    a("s_cbranch_scc1 %s_x" % l)
    a("s_sleep %d" % slp)
    a("s_branch %s" % l)
    a.label(l + "_x")
def soft_barrier(a, addr, n, va=1, vb=3):
    lds_arrive(a, addr, va, vb)
    lds_spin(a, addr, n, va, vb, sleep=False)
def poll_global(a, voff, vtgt, vt=3, sb=57, slp=None):
    if slp is None: slp = 2 if 'slp2' in EXP else (4 if 'slp4' in EXP else (16 if 'slp16' in EXP else 3))
    l = a.uid("Lpoll")
    a("s_mov_b32 s%d, %d" % (sb, SPIN_MAX))
    a.label(l)
    a("buffer_load_dword v%d, v%d, s[36:39], 0 offen sc1" % (vt, voff))
    a("s_waitcnt vmcnt(0)")
    a("v_cmp_lt_u32 vcc, v%d, v%d" % (vt, vtgt))
    a("s_nop 3")
    a("s_cmp_eq_u64 vcc, 0")
    a("s_cbranch_scc1 %s_x" % l)
    a("s_sleep %d" % slp)
    a("s_sub_u32 s%d, s%d, 1" % (sb, sb))
    a("s_cmp_lg_u32 s%d, 0" % sb)
    a("s_cbranch_scc1 %s" % l)
    a.label(l + "_x")
def atomic_inc(a, sidx, va=1, vb=3):
    a("s_lshl_b32 s57, s%d, 7" % sidx); a("s_add_u32 s57, s57, 0x%x" % OFF_CNT)
    a("v_mov_b32 v%d, s57" % va); a("v_mov_b32 v%d, 1" % vb)
    a("s_mov_b64 exec, 1")
    a("buffer_atomic_add v%d, v%d, s[36:39], 0 offen sc1" % (vb, va))
    a("s_mov_b64 exec, -1")

def hloads(a):
    l = a.uid("Lh")
    a("s_lshl_b32 s61, s43, 8"); a("s_add_u32 s61, s61, s2")
    a("s_cmp_eq_u32 s43, 2"); a("s_cbranch_scc0 %s" % (lbl := a.uid("Lch")))
    a("s_add_u32 s61, s2, 320"); a("s_cmp_lt_u32 s2, 192"); a("s_cselect_b32 s61, 0xffff, s61")
    a.label(lbl)
    a("s_cmp_ge_u32 s61, 576"); a("s_cselect_b32 s58, 1, 0"); a("s_cmp_eq_u32 s42, 11"); a("s_cselect_b32 s58, 1, s58")
    a("s_load_dwordx2 s[62:63], s[0:1], 56")
    a("v_lshlrev_b32 v118, 4, v2"); a("v_subrev_u32 v119, 32, v118")
    a("s_waitcnt lgkmcnt(0)")
    a("s_min_u32 s61, s61, 575")
    a("s_lshl_b32 s56, s61, 12")
    a("s_add_u32 s64, s62, s56"); a("s_addc_u32 s65, s63, 0"); a("s_and_b32 s65, s65, 0xffff")
    a("s_mov_b32 s66, 4096"); a("s_mov_b32 s67, 0x20000")
    a("s_cmp_eq_u32 s58, 1"); a("s_cbranch_scc1 %s" % l)
    for it in range(5):
        if it == 0:
            a("buffer_load_dwordx4 v[120:123], v119, s[64:67], 0 offen")
            a("v_add_u32 v117, 16, v119")
            a("buffer_load_dword v124, v117, s[64:67], 0 offen")
        else:
            a("v_add_u32 v117, %d, v119" % (1024 * it))
            a("buffer_load_dwordx4 %s, v117, s[64:67], 0 offen" % v(120 + 8 * it, 4))
            a("buffer_load_dword v%d, v117, s[64:67], 0 offen offset:16" % (124 + 8 * it))
    a.label(l)
def hstores(a):
    l = a.uid("Lhs")
    a("s_cmp_eq_u32 s58, 1"); a("s_cbranch_scc1 %s" % l)
    a("s_mul_i32 s62, s61, %d" % (2 * HP_ROW)); a("s_add_u32 s62, s62, 0x%x" % OFF_HP); a("s_add_u32 s63, s62, %d" % HP_ROW)
    for it in range(5):
        b = 120 + 8 * it; t = 160 + 4 * (it & 1)
        for k in range(4): a("v_alignbit_b32 v%d, v%d, v%d, 16" % (t + k, b + k + 1, b + k))
        if it < 4:
            a("buffer_store_dwordx4 %s, v118, s[36:39], s62 offen offset:%d" % (v(b, 4), 1024 * it))
            a("buffer_store_dwordx4 %s, v118, s[36:39], s63 offen offset:%d" % (v(t, 4), 1024 * it))
        else:
            a("s_add_u32 s56, s62, 4096"); a("buffer_store_dwordx4 %s, v118, s[36:39], s56 offen" % v(b, 4))
            a("s_add_u32 s56, s63, 4096"); a("buffer_store_dwordx4 %s, v118, s[36:39], s56 offen" % v(t, 4))
        a("s_nop 1")
    a.label(l)

def phase1(a):
    a("s_load_dwordx4 s[4:7], s[0:1], 0")
    a("s_load_dwordx4 s[8:11], s[0:1], 32")
    a("s_load_dwordx2 s[12:13], s[0:1], 48")
    a("s_load_dwordx2 s[14:15], s[0:1], 96")
    a("s_and_b32 s40, s2, 1"); a("s_lshl_b32 s40, s40, 3")
    a("s_lshr_b32 s43, s2, 3"); a("s_and_b32 s43, s43, 7")
    a("s_add_u32 s40, s40, s43")
    a("s_lshr_b32 s41, s2, 1"); a("s_and_b32 s41, s41, 3"); a("s_lshl_b32 s41, s41, 2")
    a("s_lshr_b32 s43, s2, 6"); a("s_add_u32 s41, s41, s43")
    a("v_lshrrev_b32 v1, 6, v0")
    a("v_and_b32 v2, 63, v0")
    a("v_readfirstlane_b32 s42, v1")
    a("v_and_b32 v3, 15, v2")
    a("v_lshrrev_b32 v4, 4, v2")
    a("s_cmp_ge_u32 s42, 8")
    a("s_cbranch_scc0 L1_gemm")
    a("s_waitcnt lgkmcnt(0)")
    srd(a, 36, 14, WS_SRD_SIZE)
    stamp_init(a); stamp(a, 0)
    a("s_branch L1_side")
    a.label("L1_gemm")
    a("v_lshrrev_b32 v5, 3, v2"); a("v_and_b32 v6, 7, v2")
    a("s_lshl_b32 s43, s41, 7"); a("s_lshl_b32 s44, s42, 4"); a("s_add_u32 s43, s43, s44")
    a("v_add_u32 v5, s43, v5")
    a("s_movk_i32 s44, 1152")
    a("v_mul_lo_u32 v5, v5, s44")
    a("v_xor_b32 v7, v6, v4")
    a("v_lshl_add_u32 v8, v7, 4, v5")
    a("v_xor_b32 v7, 4, v7")
    a("v_lshl_add_u32 v9, v7, 4, v5")
    a("v_add_u32 v9, 9216, v9")
    a("s_and_b32 s44, s42, 1"); a("s_lshl_b32 s44, s44, 3")
    a("v_lshlrev_b32 v5, 1, v4"); a("v_add_u32 v5, s44, v5"); a("v_xor_b32 v5, v5, v3")
    a("v_min_u32 v5, 13, v5")
    a("s_movk_i32 s44, 3456")
    a("v_mul_lo_u32 v6, v4, s44")
    a("v_lshl_add_u32 v10, v5, 4, v6")
    a("s_mul_i32 s45, s40, 216"); a("s_mul_i32 s46, s42, 8*3456"); a("s_add_u32 s46, s46, s45")
    a("s_mov_b32 s47, 0")
    a("s_lshl_b32 s48, s42, 11")
    a("s_waitcnt lgkmcnt(0)")
    srd(a, 16, 4, 2048 * 1152)
    srd(a, 20, 6, 576 * 3456)
    srd(a, 36, 14, WS_SRD_SIZE)
    stamp_init(a); stamp(a, 0)
    def dma_groups():
        g0 = ["s_mov_b32 m0, s48", "s_add_u32 s49, s48, 1024", "buffer_load_dwordx4 v8, s[16:19], s47 offen lds"]
        g1 = ["s_mov_b32 m0, s49", "s_add_u32 s49, s48, 16384", "buffer_load_dwordx4 v9, s[16:19], s47 offen lds"]
        g2 = ["s_mov_b32 m0, s49", "s_add_u32 s49, s48, 17408", "buffer_load_dwordx4 v10, s[20:23], s46 offen lds"]
        g3 = ["s_mov_b32 m0, s49", "s_add_u32 s50, s46, 4*3456", "buffer_load_dwordx4 v10, s[20:23], s50 offen lds",
              "s_add_u32 s46, s46, 64*3456", "s_add_u32 s47, s47, 128", "s_add_u32 s48, s48, 32768", "s_and_b32 s48, s48, 0x1ffff"]
        return [g0, g1, g2, g3]
    def dma_stage():
        for g in dma_groups():
            for x in g: a(x)
    dma_stage()
    a("s_and_b32 s51, s42, 3"); a("s_lshr_b32 s52, s42, 2")
    a("s_lshl_b32 s44, s51, 5")
    a("v_add_u32 v5, s44, v3"); a("v_lshlrev_b32 v5, 7, v5")
    a("v_lshrrev_b32 v6, 1, v3"); a("v_xor_b32 v6, v6, v4")
    a("v_lshl_add_u32 v11, v6, 4, v5")
    a("v_xor_b32 v12, 64, v11")
    a("v_add_u32 v13, 0x10000, v11"); a("v_add_u32 v14, 0x10000, v12")
    AW = 16
    a("v_lshrrev_b32 v6, 2, v2"); a("v_and_b32 v6, 3, v6"); a("v_and_b32 v7, 3, v2")
    a("v_lshl_add_u32 v1, v4, 3, v6"); a("v_lshlrev_b32 v1, 8, v1")
    a("v_and_b32 v5, 1, v7"); a("v_lshl_add_u32 v1, v5, 3, v1")
    a("v_lshrrev_b32 v7, 1, v7"); a("v_lshl_add_u32 v1, v7, 4, v1")
    a("v_add_u32 v1, 16384, v1")
    a("v_and_b32 v5, 1, v4"); a("v_lshlrev_b32 v5, 3, v5"); a("v_lshl_add_u32 v5, v6, 1, v5")
    a("s_lshl_b32 s44, s52, 3")
    for i in range(4):
        a("s_add_u32 s45, s44, %d" % (2 * i))
        a("v_xor_b32 v6, s45, v5")
        a("v_lshl_add_u32 v%d, v6, 4, v1" % (AW + i))
        a("v_add_u32 v%d, 0x10000, v%d" % (AW + 4 + i, AW + i))
    dma_stage()
    ACC, AF, BF = 32, 64, 96
    TA_, TS_ = 112, 120
    a("s_lshl_b32 s44, s51, 5")
    a("v_add_u32 v5, s44, v3")
    a("s_movk_i32 s44, 304")
    a("v_mul_lo_u32 v5, v5, s44")
    a("s_mul_i32 s44, s40, 6"); a("s_sub_i32 s44, 32, s44"); a("s_max_i32 s44, s44, 0"); a("s_min_i32 s44, s44, 6")
    a("s_mul_i32 s54, s44, 18")
    a("s_lshl_b32 s55, s52, 6")
    a("v_lshl_add_u32 v6, v4, 2, s55")
    a("s_movk_i32 s56, 3641")
    a("v_mov_b32 v24, 1.0")
    a("v_mov_b32 v25, 0x%x" % f32bits(QSCALE))
    for i in range(4):
        for p in range(2):
            k = 2 * i + p
            a("v_add_u32 v26, %d, v6" % (16 * i + 2 * p))
            a("v_min_u32 v26, 110, v26")
            a("v_mul_u32_u24 v27, s56, v26")
            a("v_cmp_gt_u32 vcc, s54, v26")
            a("v_lshrrev_b32 v27, 16, v27")
            a("v_mul_u32_u24 v27, 12, v27")
            a("v_cndmask_b32 v%d, v24, v25, vcc" % (TS_ + k))
            a("v_lshl_add_u32 v27, v26, 1, v27")
            a("v_add_u32 v%d, v27, v5" % (TA_ + k))
            a("v_add_u32 v%d, %d, v%d" % (TA_ + k, TB_, TA_ + k))
    dma_stage()
    def reads(u):
        st, kk = divmod(u, 2)
        slot = st & 3; hi = slot >> 1; off = (slot & 1) * 32768; buf = u & 1
        out = []
        bb = (13 if hi else 11) + kk
        out.append("ds_read_b128 %s, v%d offset:%d" % (v(BF + 8 * buf, 4), bb, off))
        out.append("ds_read_b128 %s, v%d offset:%d" % (v(BF + 8 * buf + 4, 4), bb, off + 2048))
        for i in range(4):
            ar = AW + 4 * hi + i
            out.append("ds_read_b64_tr_b16 %s, v%d offset:%d" % (v(AF + 16 * buf + 4 * i, 2), ar, off + kk * 8192))
            out.append("ds_read_b64_tr_b16 %s, v%d offset:%d" % (v(AF + 16 * buf + 4 * i + 2, 2), ar, off + kk * 8192 + 1024))
        if "p1halfA" in EXP: out = [x if (k < 2 or k % 2 == 0) else "ds_read_b32 v31, v28" for k, x in enumerate(out)]
        if "p1noA" in EXP: out = [x if k < 2 else "ds_read_b32 v31, v28" for k, x in enumerate(out)]
        return out
    def mf(u, j):
        buf = u & 1; i, n = j >> 1, j & 1
        c = "0" if u == 0 else v(ACC + 8 * i + 4 * n, 4)
        if "p1nomfma" in EXP and j >= 2: return
        a("v_mfma_f32_16x16x32_bf16 %s, %s, %s, %s" % (v(ACC + 8 * i + 4 * n, 4), v(AF + 16 * buf + 4 * i, 4), v(BF + 8 * buf + 4 * n, 4), c))
    stamp(a, 1)
    a("s_barrier")
    GA, GO_, GP = 28, 29, 30
    a("v_mov_b32 v%d, %d" % (GA, SBG)); a("v_mov_b32 v%d, 1" % GO_)
    def arrive():
        a("s_mov_b64 exec, 1"); a("ds_add_u32 v%d, v%d" % (GA, GO_)); a("s_mov_b64 exec, -1")
    def check(target, tag):
        a("v_readfirstlane_b32 s53, v%d" % GP)
        a("s_cmp_ge_u32 s53, %d" % target); a("s_cbranch_scc1 L1_ok%s" % tag)
        a.label("L1_sp%s" % tag)
        a("ds_read_b32 v%d, v%d" % (GP, GA)); a("s_waitcnt lgkmcnt(0)")
        a("v_readfirstlane_b32 s53, v%d" % GP)
        a("s_cmp_ge_u32 s53, %d" % target); a("s_cbranch_scc1 L1_ok%s" % tag)
        a("s_sleep 1"); a("s_branch L1_sp%s" % tag)
        a.label("L1_ok%s" % tag)
    a("s_waitcnt vmcnt(8)")
    arrive()
    a("ds_read_b32 v%d, v%d" % (GP, GA)); a("s_waitcnt lgkmcnt(0)")
    check(8, "0")
    if RT: stamp(a, 14)
    for x in reads(0): a(x)
    NU = 18
    for u in range(NU):
        st, kk = divmod(u, 2)
        last = (u == NU - 1)
        dg = []
        extra = 0
        if kk == 0 and st < 8:
            a("s_waitcnt vmcnt(%d)" % (4 if st <= 6 else 0))
            arrive(); extra = 1
        if kk == 1:
            a("s_waitcnt lgkmcnt(0)")
            if not last:
                check(8 * (st + 2), str(st + 1))
                if RT and st == 3: stamp(a, 15)
                if st + 3 <= 8: dg = dma_groups()
        nr = [] if last else reads(u + 1)
        if kk == 0: waits = {0: 6 + extra, 2: 8 + extra, 4: 10 + extra, 6: 10 + 2 * extra}
        else: waits = {}
        for j in range(8):
            if j in waits: a("s_waitcnt lgkmcnt(%d)" % waits[j])
            mf(u, j)
            if j < 5 and nr:
                a(nr[2 * j]); a(nr[2 * j + 1])
                if j == 4 and kk == 0 and st < 8: a("ds_read_b32 v%d, v%d" % (GP, GA))
            if dg and j >= 4:
                for x in dg[j - 4]: a(x)
    stamp(a, 2)
    lds_arrive(a, SB1, 1, 5)
    for i in range(4):
        for p in range(2):
            k = 2 * i + p
            for n in range(2):
                r0 = ACC + 8 * i + 4 * n + 2 * p
                a("v_mul_f32 v%d, v%d, v%d" % (r0, TS_ + k, r0))
                a("v_mul_f32 v%d, v%d, v%d" % (r0 + 1, TS_ + k, r0 + 1))
    for i in range(4):
        for p in range(2):
            for n in range(2):
                r0 = ACC + 8 * i + 4 * n + 2 * p
                a("v_cvt_pk_bf16_f32 v%d, v%d, v%d" % (r0, r0, r0 + 1))
    for i in range(4):
        for p in range(2):
            k = 2 * i + p
            for n in range(2):
                r0 = ACC + 8 * i + 4 * n + 2 * p
                a("ds_write_b32 v%d, v%d offset:%d" % (TA_ + k, r0, n * 16 * 304))
    a("s_waitcnt lgkmcnt(0)")
    a("s_branch L1_out")

    a.label("L1_side")
    a("s_sub_u32 s43, s42, 8")
    a("s_cmp_lg_u32 s42, 8")
    a("s_cbranch_scc1 L1_noflag")
    a("v_lshlrev_b32 v1, 2, v2"); a("v_add_u32 v1, %d, v1" % LDS_FLAG)
    a("v_mov_b32 v5, 0"); a("v_mov_b32 v6, 2")
    a("v_cmp_le_u32 vcc, 4, v2"); a("s_nop 1"); a("v_cndmask_b32 v5, v5, v6, vcc")
    a("v_cmp_le_u32 vcc, 8, v2"); a("v_mov_b32 v6, 0"); a("s_nop 0"); a("v_cndmask_b32 v5, v5, v6, vcc")
    a("s_mov_b32 exec_hi, 0")
    a("ds_write_b32 v1, v5")
    a("s_mov_b64 exec, -1")
    a.label("L1_noflag")
    a("s_waitcnt lgkmcnt(0)")
    a("s_barrier")
    a("s_cmp_eq_u32 s42, 11")
    a("s_cbranch_scc0 L1_kv")
    a("s_load_dwordx2 s[16:17], s[0:1], 88")
    a("s_waitcnt lgkmcnt(0)")
    srd(a, 20, 16, 256)
    a("s_cmp_lg_u32 s2, 0")
    a("s_cbranch_scc1 L1_noinit")
    a("v_lshlrev_b32 v1, 7, v2"); a("v_add_u32 v1, 0x%x, v1" % OFF_CNT); a("v_mov_b32 v5, 0")
    for q in range(4):
        a("buffer_store_dword v5, v1, s[36:39], 0 offen sc1")
        a("v_add_u32 v1, 8192, v1")
    a("s_waitcnt vmcnt(0)")
    a("v_mov_b32 v1, 0"); a("v_mov_b32 v5, 1")
    a("s_mov_b64 exec, 1")
    a("buffer_store_dword v5, v1, s[20:23], 0 offen sc1")
    a("s_mov_b64 exec, -1")
    a.label("L1_noinit")
    a("v_mov_b32 v28, 0"); a("s_mov_b32 s57, %d" % SPIN_MAX)
    a.label("L1_ip")
    a("buffer_load_dword v7, v28, s[20:23], 0 offen sc1"); a("s_waitcnt vmcnt(0)"); a("v_readfirstlane_b32 s56, v7")
    a("s_cmp_eq_u32 s56, 1"); a("s_cbranch_scc1 L1_ipx")
    a("s_sleep 8"); a("s_sub_u32 s57, s57, 1"); a("s_cmp_lg_u32 s57, 0"); a("s_cbranch_scc1 L1_ip")
    a.label("L1_ipx")
    lds_set(a, INITOK, 1, 7)
    loader(a)
    stamp(a, 6)
    a("s_setprio 1")
    a("s_load_dwordx2 s[4:5], s[0:1], 0"); a("s_load_dwordx2 s[16:17], s[0:1], 16"); a("s_load_dwordx2 s[18:19], s[0:1], 72")
    a("s_waitcnt lgkmcnt(0)")
    srd(a, 24, 4, 2048 * 1152); srd(a, 28, 18, 1152); srd(a, 32, 16, 576 * 1152)
    a("v_and_b32 v3, 15, v2"); a("v_lshrrev_b32 v4, 4, v2")
    a("v_lshrrev_b32 v5, 3, v2"); a("v_and_b32 v6, 7, v2")
    a("s_lshl_b32 s45, s2, 3"); a("v_add_u32 v9, s45, v5")
    a("v_mul_u32_u24 v7, 1152, v9"); a("v_lshlrev_b32 v8, 4, v6"); a("v_add_u32 v7, v7, v8")
    a("v_mul_u32_u24 v120, 8*1152, v4"); a("v_lshl_add_u32 v120, v3, 1, v120"); a("v_add_u32 v121, 4608, v120"); a("v_lshlrev_b32 v122, 4, v2")
    for c in range(9):
        a("buffer_load_dwordx4 %s, v7, s[24:27], 0 offen offset:%d" % (v(12 + 4 * c, 4), 128 * c))
        a("buffer_load_dwordx4 %s, v8, s[28:31], 0 offen offset:%d" % (v(48 + 4 * c, 4), 128 * c))
    for r in range(3):
        a("s_add_u32 s45, s2, %d" % (256 * r))
        a("s_mul_hi_u32 s46, s45, 0x%x" % ((1 << 32) // 18 + 1))
        a("s_mul_i32 s47, s46, 18"); a("s_sub_u32 s47, s45, s47")
        a("s_mul_i32 s47, s47, 32*1152"); a("s_lshl_b32 s46, s46, 5"); a("s_add_u32 s47, s47, s46")
        a("s_cmp_lt_u32 s45, 648"); a("s_cselect_b32 s47, s47, 0")
        for j in range(8):
            a("buffer_load_ushort v%d, v%d, s[32:35], s47 offen offset:%d" % (92 + 8 * r + j, 120 if j < 4 else 121, 1152 * (j % 4)))
    a("s_waitcnt vmcnt(0)")
    a("v_mov_b32 v84, 0")
    for r in range(36): a("v_dot2_f32_bf16 v84, v%d, v%d, v84" % (12 + r, 48 + r))
    a("s_nop 3")
    for d in (1, 2, 4):
        a("s_nop 1")
        if d == 1: a("v_mov_b32_dpp v85, v84 quad_perm:[1,0,3,2] row_mask:0xf bank_mask:0xf")
        elif d == 2: a("v_mov_b32_dpp v85, v84 quad_perm:[2,3,0,1] row_mask:0xf bank_mask:0xf")
        else: a("v_mov_b32_dpp v85, v84 row_half_mirror row_mask:0xf bank_mask:0xf")
        a("s_nop 1")
        a("v_add_f32 v84, v84, v85")
    a("v_mul_f32 v84, 0xbfb8aa3b, v84"); a("v_exp_f32 v84, v84"); a("s_nop 0")
    a("v_add_f32 v84, 1.0, v84"); a("v_rcp_f32 v84, v84")
    a("v_lshlrev_b32 v85, 2, v9"); a("v_mov_b32 v86, 0x%x" % OOB)
    a("v_cmp_eq_u32 vcc, 0, v6"); a("s_mov_b32 s46, 0x%x" % OFF_G); a("s_nop 0")
    a("v_cndmask_b32 v85, v86, v85, vcc")
    a("buffer_store_dword v84, v85, s[36:39], s46 offen sc1")
    for r in range(3):
        for j in range(4): a("v_lshl_or_b32 v%d, v%d, 16, v%d" % (124 + 4 * r + j, 93 + 8 * r + 2 * j, 92 + 8 * r + 2 * j))
        a("s_add_u32 s45, s2, %d" % (256 * r))
        a("s_lshl_b32 s46, s45, 10"); a("s_add_u32 s46, s46, 0x%x" % OFF_WOF)
        a("s_cmp_lt_u32 s45, 648"); a("s_cbranch_scc0 L1_nw%d" % r)
        a("buffer_store_dwordx4 %s, v122, s[36:39], s46 offen sc1" % v(124 + 4 * r, 4))
        a.label("L1_nw%d" % r)
    a("s_waitcnt vmcnt(0)")
    a("s_mov_b32 s45, %d" % C4)
    atomic_inc(a, 45, 1, 4)
    a("s_branch L_fin")
    a.label("L1_kv")
    if "kv0" in EXP: pass
    elif "atFA" in EXP: lds_spin(a, FA, 8, 1, 7)
    elif "early" in EXP: lds_spin(a, INITOK, 1, 1, 7)
    elif "atG1" in EXP: lds_spin(a, SB3, 8, 1, 7)
    elif "atGO1" in EXP: lds_spin(a, GO1, 1, 1, 7)
    elif "atB6" in EXP: lds_spin(a, SBG, 8 * 7, 1, 7)
    else: lds_spin(a, FA, 8, 1, 7, slp=6)
    a("s_setprio %d" % (1 if "kv0" in EXP else 3))
    srd(a, 24, 8, 2048 * 1152); srd(a, 28, 10, 2048 * 1152); srd(a, 32, 12, 576 * 8)
    a("s_mul_hi_u32 s44, s2, 0x%x" % ((1 << 32) // 12 + 1))
    a("s_mul_i32 s45, s44, 12"); a("s_sub_u32 s45, s2, s45")
    a("s_lshl_b32 s46, s43, 6"); a("v_add_u32 v8, s46, v2")
    a("s_movk_i32 s46, 5462"); a("v_mul_u32_u24 v9, s46, v8"); a("v_lshrrev_b32 v9, 16, v9")
    a("v_mul_u32_u24 v10, 12, v9"); a("v_sub_u32 v10, v8, v10")
    a("s_lshl_b32 s46, s44, 7"); a("v_lshl_add_u32 v11, v9, 3, s46")
    a("s_mul_i32 s46, s45, 96"); a("v_lshl_add_u32 v12, v10, 3, s46")
    a("s_movk_i32 s46, 1152")
    a("v_mul_lo_u32 v13, v11, s46"); a("v_add_u32 v13, v13, v12")
    a("v_subrev_u32 v14, 3456, v13")
    a("v_mov_b32 v15, 0x%x" % OOB)
    a("v_cmp_eq_u32 vcc, 0, v11")
    a("s_mul_i32 s46, s45, 384"); a("v_lshl_add_u32 v16, v10, 5, s46")
    a("v_cndmask_b32 v14, v14, v15, vcc")
    a("s_mul_i32 s46, s45, 48"); a("v_lshl_add_u32 v17, v10, 2, s46"); a("v_lshlrev_b32 v17, 12, v17")
    a("v_sub_u32 v18, 15, v9"); a("v_lshl_add_u32 v17, v18, 4, v17")
    a("s_lshl_b32 s47, s44, 8"); a("s_sub_u32 s47, 3840, s47"); a("s_add_u32 s47, s47, 0x%x" % OFF_URT)
    a("s_cmp_lt_u32 s2, 192"); a("s_cbranch_scc1 L1_kvact")
    a("v_mov_b32 v13, v15"); a("v_mov_b32 v14, v15"); a("v_mov_b32 v16, v15"); a("v_mov_b32 v17, v15"); a("s_mov_b32 s47, 0")
    a.label("L1_kvact")
    KR, VR, WR = 32, 54, 70
    a("s_movk_i32 s48, 4608")
    for i in range(3): a("buffer_load_dwordx2 %s, v14, s[24:27], 0 offen offset:%d" % (v(KR + 2 * i, 2), 1152 * i))
    for i in range(8): a("buffer_load_dwordx2 %s, v13, s[24:27], %s offen offset:%d" % (v(KR + 6 + 2 * i, 2), "0" if i < 4 else "s48", 1152 * (i % 4)))
    a("buffer_load_dwordx4 %s, v16, s[32:35], 0 offen" % v(WR, 4)); a("buffer_load_dwordx4 %s, v16, s[32:35], 0 offen offset:16" % v(WR + 4, 4))
    for i in range(8): a("buffer_load_dwordx2 %s, v13, s[28:31], %s offen offset:%d" % (v(VR + 2 * i, 2), "0" if i < 4 else "s48", 1152 * (i % 4)))
    stamp(a, 1)
    if "kv0" not in EXP: hloads(a)
    a("s_waitcnt vmcnt(0)")
    stamp(a, 2)
    if "stFA" in EXP: lds_spin(a, FA, 8, 1, 7)
    WF, KF, PK = 80, 96, 140
    if "kv0" not in EXP: hstores(a)
    for c in range(4):
        for p in range(2):
            src = WR + 2 * c + p
            a("v_lshlrev_b32 v%d, 16, v%d" % (WF + 4 * c + 2 * p, src))
            a("v_and_b32 v%d, 0xffff0000, v%d" % (WF + 4 * c + 2 * p + 1, src))
    for c in range(4):
        for i in range(11 if "nokvcomp" not in EXP else 0):
            src = KR + 2 * i + (c >> 1)
            if c & 1: a("v_and_b32 v%d, 0xffff0000, v%d" % (KF + i, src))
            else: a("v_lshlrev_b32 v%d, 16, v%d" % (KF + i, src))
        R_ = 108
        for i in range(8 if "nokvcomp" not in EXP else 0): a("v_mul_f32 v%d, v%d, v%d" % (R_ + i, KF + i, WF + 4 * c + 3))
        for t in ((2, 1, 0) if "nokvcomp" not in EXP else ()):
            for i in range(8): a("v_fmac_f32 v%d, v%d, v%d" % (R_ + i, KF + i + 3 - t, WF + 4 * c + t))
        for i in range(8):
            src = VR + 2 * i + (c >> 1)
            if c & 1: a("v_and_b32 v%d, 0xffff0000, v%d" % (KF + i, src))
            else: a("v_lshlrev_b32 v%d, 16, v%d" % (KF + i, src))
        for i in range(8): a("v_mul_f32 v%d, v%d, v%d" % (R_ + i, R_ + i, KF + i))
        for e in range(4): a("v_cvt_pk_bf16_f32 v%d, v%d, v%d" % (PK + 4 * c + e, R_ + 7 - 2 * e, R_ + 6 - 2 * e))
        a("s_add_u32 s46, s47, %d" % (4096 * c))
        a("buffer_store_dwordx4 %s, v17, s[36:39], s46 offen sc1" % v(PK + 4 * c, 4))
    stamp(a, 3)
    a("s_waitcnt vmcnt(0)")
    stamp(a, 4)
    lds_arrive(a, SB4, 1, 4)
    a("s_cmp_lg_u32 s42, 8"); a("s_cbranch_scc1 L1_kvd")
    a("s_cmp_lt_u32 s2, 192"); a("s_cbranch_scc0 L1_kvd")
    lds_spin(a, SB4, 3, 1, 4)
    lds_spin(a, INITOK, 1, 1, 4)
    a("s_add_u32 s45, s45, %d" % C2)
    atomic_inc(a, 45, 1, 4)
    a.label("L1_kvd")
    if "kv0" in EXP:
        if "hG1" in EXP: lds_spin(a, SB3, 8, 1, 4)
        else: lds_spin(a, SB1, 8, 1, 4)
        hloads(a)
        a("s_waitcnt vmcnt(0)")
        hstores(a)
        a("s_waitcnt vmcnt(0)")
    a("s_branch L2_conv")
    a.label("L1_out")
    soft_barrier(a, SB2, 8, 1, 5)
    stamp(a, 3)
    a("s_cmp_ge_u32 s42, 6")
    a("s_cbranch_scc1 L1_fin")
    a("s_mul_i32 s53, s40, 6"); a("s_add_u32 s53, s53, s42")
    a("s_lshr_b32 s54, s53, 5"); a("s_and_b32 s56, s53, 31")
    a("s_mul_i32 s57, s42, 48"); a("s_add_u32 s57, s57, %d" % TB_)
    a("s_lshr_b32 s50, s41, 1"); a("s_mul_i32 s50, s50, 18432")
    a("s_mul_i32 s51, s56, %d" % KV_HEAD); a("s_add_u32 s50, s50, s51")
    a("s_and_b32 s52, s41, 1")
    a("s_movk_i32 s61, 304")
    a("s_cmp_eq_u32 s54, 2")
    a("s_cbranch_scc1 L1_vout")
    a("s_cmp_eq_u32 s54, 0")
    a("s_cbranch_scc0 L1_kdest")
    a("s_mul_i32 s58, s56, %d" % Q_HEAD); a("s_add_u32 s58, s58, 0x%x" % OFF_Q)
    a("s_lshl_b32 s60, s41, 9"); a("s_add_u32 s59, s58, s60"); a("s_add_u32 s59, s59, 65536")
    a("s_lshl_b32 s60, s41, 12"); a("s_add_u32 s58, s58, s60")
    a("s_branch L1_destdone")
    a.label("L1_kdest")
    a("s_lshl_b32 s60, s52, 9"); a("s_add_u32 s59, s50, s60"); a("s_add_u32 s59, s59, 8192")
    a("s_lshl_b32 s60, s52, 12"); a("s_add_u32 s58, s50, s60")
    a.label("L1_destdone")
    a("v_and_b32 v5, 31, v2"); a("v_lshrrev_b32 v6, 5, v2")
    a("v_mul_lo_u32 v7, v5, s61"); a("v_lshl_add_u32 v7, v6, 4, v7"); a("v_add_u32 v7, s57, v7")
    for i in range(4): a("ds_read_b128 %s, v7 offset:%d" % (v(24 + 4 * i, 4), i * 32 * 304))
    a("v_lshlrev_b32 v8, 2, v5"); a("v_mul_lo_u32 v8, v8, s61"); a("v_add_u32 v8, s57, v8")
    for j in range(4): a("ds_read_b32 v%d, v8 offset:%d" % (40 + j, 32 + 304 * j))
    a("v_lshlrev_b32 v11, 4, v2")
    a("v_mov_b32 v12, 0x%x" % OOB); a("v_cmp_gt_u32 vcc, 32, v2"); a("s_nop 1"); a("v_cndmask_b32 v12, v12, v11, vcc")
    for i in range(4):
        a("s_waitcnt lgkmcnt(%d)" % (7 - i))
        a("buffer_store_dwordx4 %s, v11, s[36:39], s58 offen offset:%d sc1" % (v(24 + 4 * i, 4), 1024 * i))
    a("s_waitcnt lgkmcnt(0)")
    a("buffer_store_dwordx4 v[40:43], v12, s[36:39], s59 offen sc1")
    a("s_branch L1_fin")
    a.label("L1_vout")
    a("v_lshrrev_b32 v9, 2, v2"); a("v_and_b32 v9, 3, v9")
    a("v_and_b32 v10, 1, v4")
    a("v_lshl_add_u32 v9, v10, 2, v9")
    a("v_mul_lo_u32 v9, v9, s61")
    a("v_and_b32 v13, 3, v2"); a("v_lshl_add_u32 v9, v13, 3, v9")
    a("v_lshrrev_b32 v13, 1, v4"); a("v_lshl_add_u32 v9, v13, 5, v9")
    a("v_add_u32 v9, s57, v9")
    a("s_mul_i32 s60, s52, 8*576"); a("s_add_u32 s63, s50, s60"); a("s_add_u32 s63, s63, 9216")
    a("v_lshl_add_u32 v14, v13, 4, v3")
    a("v_mul_u32_u24 v13, 288, v10"); a("v_lshl_add_u32 v13, v14, 4, v13")
    a("v_mov_b32 v15, 0x%x" % OOB); a("v_cmp_le_u32 vcc, 18, v14"); a("s_nop 1"); a("v_cndmask_b32 v13, v13, v15, vcc")
    for half in range(2):
        for b in range(4):
            beta = 4 * half + b
            a("ds_read_b64_tr_b16 %s, v9 offset:%d" % (v(24 + 16 * half + 4 * b, 2), beta * 16 * 304))
            a("ds_read_b64_tr_b16 %s, v9 offset:%d" % (v(26 + 16 * half + 4 * b, 2), beta * 16 * 304 + 8 * 304))
        for b in range(4):
            beta = 4 * half + b
            a("s_waitcnt lgkmcnt(%d)" % (6 - 2 * b))
            a("buffer_store_dwordx4 %s, v13, s[36:39], s63 offen offset:%d sc1" % (v(24 + 16 * half + 4 * b, 4), beta * 576))
    a.label("L1_fin")
    a("s_waitcnt vmcnt(0) lgkmcnt(0)")
    stamp(a, 4)
    soft_barrier(a, SB3, 8, 1, 5)
    a("s_cmp_lg_u32 s42, 0")
    a("s_cbranch_scc1 L2_entry")
    lds_spin(a, INITOK, 1, 1, 5)
    a("s_lshl_b32 s44, s40, 3"); a("s_lshr_b32 s45, s41, 1"); a("s_add_u32 s44, s44, s45")
    atomic_inc(a, 44)
    a.label("L2_entry")

def attn_regs():
    R = {}
    R["QA1"], R["QA2"], R["QB1"], R["QB2"] = 8, 12, 14, 18
    R["SA"], R["SB"] = 20, 36
    R["PA"], R["PB"] = 52, 60
    R["OA"], R["OB"] = 68, 84
    R["K1"] = [100, 104]; R["K2"] = [108, 110]; R["V"] = [112, 120]
    R["NA"], R["NB"] = 128, 144
    return R

def phase2(a):
    R = attn_regs()
    a("s_and_b32 s40, s2, 31"); a("s_lshr_b32 s41, s2, 5")
    a("v_lshlrev_b32 v3, 4, v2")
    a("s_mul_i32 s43, s40, %d" % KV_HEAD)
    a("s_cmp_lg_u32 s42, 0")
    a("s_cbranch_scc1 L2_waitgo")
    a("v_min_u32 v5, 2, v2")
    a("v_add_u32 v6, 1, v5"); a("v_lshrrev_b32 v6, 1, v6")
    a("v_and_b32 v7, 1, v5"); a("v_sub_u32 v7, 2, v7"); a("v_cmp_eq_u32 vcc, 0, v5"); a("v_mov_b32 v8, 0"); a("s_nop 0")
    a("v_cndmask_b32 v7, v7, v8, vcc")
    a("v_lshlrev_b32 v7, 5, v7"); a("v_add_u32 v7, s40, v7"); a("v_mul_u32_u24 v7, 0x2aab, v7"); a("v_lshrrev_b32 v7, 16, v7")
    a("v_subrev_u32 v6, 1, v6"); a("v_mov_b32 v8, s41"); a("v_cndmask_b32 v6, v6, v8, vcc")
    a("v_lshl_add_u32 v5, v7, 3, v6")
    a("v_lshlrev_b32 v5, 7, v5"); a("v_add_u32 v5, 0x%x, v5" % (OFF_CNT + 128 * C1))
    a("v_mov_b32 v6, 2")
    poll_global(a, 5, 6, vt=7)
    lds_set(a, GO1, 1, 7)
    a("s_branch L2_go")
    a.label("L2_waitgo")
    lds_spin(a, GO1, 1, 1, 7)
    a.label("L2_go")
    stamp(a, 5)
    if "prioA" in EXP: a("s_setprio 2")
    elif "prioB" in EXP: pass
    elif "prioC" in EXP:
        a("s_setprio 1"); a("s_cmp_lt_u32 s42, 4"); a("s_cbranch_scc0 L2_young"); a("s_setprio 3"); a.label("L2_young")
    elif "y1" in EXP:
        a("s_setprio 1"); a("s_cmp_lt_u32 s42, 4"); a("s_cbranch_scc0 L2_young"); a("s_setprio 2"); a.label("L2_young")
    else:
        a("s_cmp_lt_u32 s42, 4"); a("s_cbranch_scc0 L2_young"); a("s_setprio 2"); a.label("L2_young")
    a("s_lshr_b32 s46, s42, 2")
    if "samesimd" in EXP: a("s_and_b32 s45, s42, 3")
    else:
        a("s_mul_i32 s45, s46, 3"); a("s_add_u32 s45, s45, s42"); a("s_and_b32 s45, s45, 3")
    a("s_lshl_b32 s44, s42, 10"); a("s_add_u32 s43, s43, s44")
    a("v_mov_b32 v9, 0x%x" % OOB)
    a("s_cmp_lt_u32 s42, 2"); a("s_cselect_b64 vcc, -1, 0"); a("v_cndmask_b32 v9, v9, v3, vcc")
    for q in range(3):
        a("buffer_load_dwordx4 %s, v%d, s[36:39], s43 offen sc1" % (v(20 + 4 * q, 4), 3 if q < 2 else 9))
        if q < 2: a("s_add_u32 s43, s43, 8192")
    a("s_lshl_b32 s47, s41, 3"); a("s_lshl_b32 s48, s45, 1"); a("s_add_u32 s47, s47, s48")
    a("s_mul_i32 s48, s40, %d" % Q_HEAD); a("s_add_u32 s48, s48, 0x%x" % OFF_Q)
    a("s_lshl_b32 s49, s47, 10"); a("s_add_u32 s49, s49, s48")
    a("s_lshl_b32 s50, s47, 7"); a("s_add_u32 s50, s50, s48"); a("s_add_u32 s50, s50, 65536")
    a("v_and_b32 v4, 31, v2"); a("v_lshrrev_b32 v5, 5, v2"); a("v_lshlrev_b32 v6, 2, v4")
    a("v_mov_b32 v7, 0x%x" % OOB)
    a("v_cmp_eq_u32 vcc, 0, v5")
    a("buffer_load_dwordx4 %s, v3, s[36:39], s49 offen sc1" % v(R["QA1"], 4))
    a("buffer_load_dwordx4 %s, v3, s[36:39], s49 offen offset:1024 sc1" % v(R["QB1"], 4))
    a("v_cndmask_b32 v7, v7, v6, vcc")
    a("buffer_load_dword v%d, v7, s[36:39], s50 offen sc1" % R["QA2"])
    a("buffer_load_dword v%d, v7, s[36:39], s50 offen offset:128 sc1" % R["QB2"])
    a("v_mov_b32 v%d, 0" % (R["QA2"] + 1)); a("v_mov_b32 v%d, 0" % (R["QB2"] + 1))
    a("v_mov_b32 v%d, 0" % (R["K2"][0] + 1)); a("v_mov_b32 v%d, 0" % (R["K2"][1] + 1))
    a("v_mov_b32 v1, 0x3f803f80"); a("v_cmp_eq_u32 vcc, 18, v4"); a("v_mov_b32 v7, 0"); a("s_nop 0")
    a("v_cndmask_b32 v1, v7, v1, vcc")
    for b in range(2):
        for r in range(8): a("v_mov_b32 v%d, v1" % (R["V"][b] + r))
    LK1, LK2, LV = 160, 161, 162
    AK1, AK2, AV = 163, 164, 165
    CA, CO, NX = 166, 167, 7
    a("v_lshlrev_b32 v%d, 4, v2" % LK1)
    a("v_add_u32 v%d, 8192, v6" % LK2)
    a("v_mul_u32_u24 v%d, 288, v5" % LV); a("v_lshl_add_u32 v%d, v4, 4, v%d" % (LV, LV)); a("v_add_u32 v%d, 9216, v%d" % (LV, LV))
    a("s_mov_b32 s52, 0x%x" % VMASK); a("s_mov_b32 s53, 0x%x" % VMASK)
    a("s_mov_b32 s60, 0"); a("s_mov_b32 s61, 1")
    a("s_lshl_b32 s62, s45, 2"); a("s_add_u32 s62, s62, %d" % CNT)
    a("v_mov_b32 v%d, s62" % CA); a("v_mov_b32 v%d, 1" % CO)
    a("v_add_u32 v3, s44, v3")
    for q in range(3):
        a("s_waitcnt vmcnt(%d)" % (4 + 2 - q))
        if q == 2:
            a("s_cmp_ge_u32 s42, 2"); a("s_cbranch_scc1 L2_no5")
        a("ds_write_b128 v3, %s offset:%d" % (v(20 + 4 * q, 4), 8192 * q))
    a.label("L2_no5")
    a("s_waitcnt vmcnt(0) lgkmcnt(0)")
    lds_arrive(a, FA, 1, 3)
    lds_spin(a, FA, 8, 1, 3, sleep=False)
    stamp(a, 6)
    rstamp(a, 14)

    def mS1(S, kb, Q1, N): return "v_mfma_f32_32x32x16_bf16 %s, %s, %s, %s" % (v(S, 16), v(R["K1"][kb], 4), v(Q1, 4), v(N, 16) if USE_NEG else "0")
    def mS2(S, kb, Q2): return "v_mfma_f32_32x32x8_bf16 %s, %s, %s, %s" % (v(S, 16), v(R["K2"][kb], 2), v(Q2, 2), v(S, 16))
    def mP(O, vb, h, P): return "v_mfma_f32_32x32x16_bf16 %s, %s, %s, %s" % (v(O, 16), v(R["V"][vb] + 4 * h, 4), v(P + 4 * h, 4), v(O, 16))
    def phase(S, P, Sn, Q1, Q2, Nn, kb, On, Pn, vb, loads):
        ex = ["v_exp_f32 v%d, v%d" % (S + i, S + i) for i in range(16)]
        cv = ["v_cvt_pk_bf16_f32 v%d, v%d, v%d" % (P + i, S + 2 * i, S + 2 * i + 1) for i in range(8)]
        l0, l1 = loads
        return ([mS1(Sn, kb, Q1, Nn)] + l0 + ex[0:4] + [mP(On, vb, 0, Pn)] + ex[4:6] + cv[0:1] + ex[6:8] + cv[1:2] + l1 + ex[8:9] +
                [mS2(Sn, kb, Q2)] + ex[9:10] + cv[2:3] + ex[10:12] + cv[3:4] + [mP(On, vb, 1, Pn)] + ex[12:14] + cv[4:5] + ex[14:16] + cv[5:8])
    def mainloop(tag, neg):
        global USE_NEG
        USE_NEG = neg
        for r in range(16):
            a("v_mov_b32 v%d, 0" % (R["OA"] + r)); a("v_mov_b32 v%d, 0" % (R["OB"] + r))
        for r in range(8): a("v_mov_b32 v%d, 0" % (R["PB"] + r))
        NT = 4
        def item_bases(q, dk1, dk2, dv):
            a("s_lshr_b32 s56, s%d, 1" % q); a("s_mul_i32 s56, s56, 18432"); a("s_and_b32 s59, s%d, 1" % q)
            a("s_lshl_b32 s%d, s59, 12" % dk1); a("s_add_u32 s%d, s%d, s56" % (dk1, dk1))
            a("s_lshl_b32 s%d, s59, 9" % dk2); a("s_add_u32 s%d, s%d, s56" % (dk2, dk2))
            a("s_mul_i32 s%d, s59, 4608" % dv); a("s_add_u32 s%d, s%d, s56" % (dv, dv))
        a("s_mov_b32 s54, s46")
        item_bases(54, 57, 58, 63)
        a("v_add_u32 v%d, s57, v%d" % (AK1, LK1)); a("v_add_u32 v%d, s58, v%d" % (AK2, LK2)); a("v_add_u32 v%d, s63, v%d" % (AV, LV))
        a("ds_read_b128 %s, v%d" % (v(R["K1"][0], 4), AK1))
        a("ds_read_b32 v%d, v%d" % (R["K2"][0], AK2))
        a("s_waitcnt lgkmcnt(0)")
        a(mS1(R["SA"], 0, R["QA1"], R["NA"]))
        a(mS2(R["SA"], 0, R["QA2"]))
        a("s_nop 7"); a("s_nop 3")
        a.label("L2_stage" + tag)
        body = []
        for i in range(NT):
            kb = i & 1; kn = kb ^ 1; vb = i & 1; vp = vb ^ 1
            off = (i + 1) if i < NT - 1 else 0
            lk = ["ds_read_b128 %s, v%d offset:%d" % (v(R["K1"][kn], 4), AK1, off * 1024),
                  "ds_read_b32 v%d, v%d offset:%d" % (R["K2"][kn], AK2, off * 128)]
            lv = ["s_mov_b64 exec, s[52:53]",
                  "ds_read_b128 %s, v%d offset:%d" % (v(R["V"][vb], 4), AV, (2 * i) * 576),
                  "ds_read_b128 %s, v%d offset:%d" % (v(R["V"][vb] + 4, 4), AV, (2 * i + 1) * 576),
                  "s_mov_b64 exec, -1"]
            if i == NT - 2:
                lv = lv[:-1] + ["s_mov_b64 exec, 1", "ds_add_rtn_u32 v%d, v%d, v%d" % (NX, CA, CO), "s_mov_b64 exec, -1"]
            body += phase(R["SA"], R["PA"], R["SB"], R["QB1"], R["QB2"], R["NB"], kb, R["OB"], R["PB"], vp, (lv, lk))
            body.append("s_waitcnt lgkmcnt(0)")
            if i == NT - 2: body.append("NEXT")
            body += phase(R["SB"], R["PB"], R["SA"], R["QA1"], R["QA2"], R["NA"], kn, R["OA"], R["PA"], vb, ([], []))
        for x in body:
            if x == "NEXT":
                a("v_readfirstlane_b32 s55, v%d" % NX)
                a("s_cmp_lt_u32 s55, 16")
                a("s_cselect_b32 s64, s55, s54")
                a("s_cbranch_scc1 L2_more" + tag); a("s_setprio 3"); a.label("L2_more" + tag)
                item_bases(64, 57, 58, 63)
                a("s_lshr_b32 s64, s64, 1")
                a("s_cmp_lt_u32 s64, s61"); a("s_cbranch_scc1 L2_landed" + tag)
                a("v_mov_b32 v1, %d" % FB)
                a.label("L2_spinL" + tag)
                a("ds_read_b32 v3, v1"); a("s_waitcnt lgkmcnt(0)")
                a("v_readfirstlane_b32 s61, v3")
                a("s_cmp_lt_u32 s64, s61"); a("s_cbranch_scc1 L2_landed" + tag)
                a("s_sleep 1"); a("s_branch L2_spinL" + tag)
                a.label("L2_landed" + tag)
                a("v_add_u32 v%d, s57, v%d" % (AK1, LK1)); a("v_add_u32 v%d, s58, v%d" % (AK2, LK2))
            else:
                a(x)
        a("v_add_u32 v%d, s63, v%d" % (AV, LV))
        a("s_mov_b32 s54, s55")
        a("s_cmp_lt_u32 s54, 16")
        a("s_cbranch_scc1 L2_stage" + tag)
        a(mP(R["OB"], 1, 0, R["PB"])); a(mP(R["OB"], 1, 1, R["PB"]))
    mainloop("0", False)
    stamp(a, 7)
    rstamp(a, 15)
    a("s_nop 7"); a("s_nop 3")
    a("v_mov_b32 v1, 0x21800000"); a("v_mov_b32 v3, 0x5d800000")
    a("v_cmp_le_f32 s[56:57], v1, v%d" % (R["OA"] + 10)); a("v_cmp_ge_f32 s[58:59], v3, v%d" % (R["OA"] + 10))
    a("s_and_b64 s[56:57], s[56:57], s[58:59]")
    a("v_cmp_le_f32 s[58:59], v1, v%d" % (R["OB"] + 10)); a("s_and_b64 s[56:57], s[56:57], s[58:59]")
    a("v_cmp_ge_f32 s[58:59], v3, v%d" % (R["OB"] + 10)); a("s_and_b64 s[56:57], s[56:57], s[58:59]")
    a("s_cmp_eq_u32 s56, -1")
    a("s_cbranch_scc1 L2_ok")
    lds_set(a, FBAD, 1, 3)
    a.label("L2_ok")
    a("s_barrier")
    a("v_mov_b32 v1, %d" % FBAD); a("ds_read_b32 v3, v1"); a("s_waitcnt lgkmcnt(0)")
    a("v_readfirstlane_b32 s56, v3")
    a("s_cmp_eq_u32 s56, 0")
    a("s_cbranch_scc1 L2_exch")
    a("s_mov_b32 s60, 1")
    MA, MB = 166, 167
    a("v_mov_b32 v%d, 0xff800000" % MA); a("v_mov_b32 v%d, 0xff800000" % MB)
    a("s_lshl_b32 s54, s46, 2"); a("s_add_u32 s58, s54, 4")
    a.label("L2_maxstage")
    a("s_mul_i32 s55, s54, 18432")
    a("v_add_u32 v1, s55, v%d" % LK1); a("v_add_u32 v3, s55, v%d" % LK2)
    a("s_mov_b32 s55, 0")
    a.label("L2_maxtile")
    a("ds_read_b128 %s, v1" % v(R["K1"][0], 4)); a("ds_read_b32 v%d, v3" % R["K2"][0])
    a("s_waitcnt lgkmcnt(0)")
    a("v_mfma_f32_32x32x16_bf16 %s, %s, %s, 0" % (v(R["SA"], 16), v(R["K1"][0], 4), v(R["QA1"], 4)))
    a("v_mfma_f32_32x32x16_bf16 %s, %s, %s, 0" % (v(R["SB"], 16), v(R["K1"][0], 4), v(R["QB1"], 4)))
    a(mS2(R["SA"], 0, R["QA2"])); a(mS2(R["SB"], 0, R["QB2"]))
    a("s_nop 7"); a("s_nop 7")
    for r in range(16):
        a("v_max_f32 v%d, v%d, v%d" % (MA, MA, R["SA"] + r)); a("v_max_f32 v%d, v%d, v%d" % (MB, MB, R["SB"] + r))
    a("v_add_u32 v1, 1024, v1"); a("v_add_u32 v3, 128, v3")
    a("s_add_u32 s55, s55, 1"); a("s_cmp_lt_u32 s55, 8"); a("s_cbranch_scc1 L2_maxtile")
    a("s_add_u32 s54, s54, 1"); a("s_cmp_lt_u32 s54, s58"); a("s_cbranch_scc1 L2_maxstage")
    a("v_xor_b32 v1, 32, v2"); a("v_lshlrev_b32 v1, 2, v1")
    a("ds_bpermute_b32 v3, v1, v%d" % MA); a("s_waitcnt lgkmcnt(0)"); a("v_max_f32 v%d, v%d, v3" % (MA, MA))
    a("ds_bpermute_b32 v3, v1, v%d" % MB); a("s_waitcnt lgkmcnt(0)"); a("v_max_f32 v%d, v%d, v3" % (MB, MB))
    a("s_lshl_b32 s55, s2, 2"); a("s_add_u32 s55, s55, s45"); a("s_lshl_b32 s55, s55, 1"); a("s_add_u32 s55, s55, s46"); a("s_lshl_b32 s55, s55, 9"); a("s_add_u32 s55, s55, 0x%x" % OFF_MX)
    a("v_lshlrev_b32 v1, 3, v2")
    a("buffer_store_dwordx2 v[%d:%d], v1, s[36:39], s55 offen sc0 sc1" % (MA, MB))
    a("v_mov_b32 v3, s62"); a("v_mov_b32 v6, 2"); a("ds_write_b32 v3, v6")
    a("s_waitcnt vmcnt(0) lgkmcnt(0)")
    a("s_barrier")
    a("s_xor_b32 s56, s55, 512")
    a("buffer_load_dwordx2 v[6:7], v1, s[36:39], s56 offen sc0 sc1")
    a("s_waitcnt vmcnt(0)")
    a("v_max_f32 v%d, v%d, v6" % (MA, MA)); a("v_max_f32 v%d, v%d, v7" % (MB, MB))
    for r in range(16):
        a("v_sub_f32 v%d, 0, v%d" % (R["NA"] + r, MA)); a("v_sub_f32 v%d, 0, v%d" % (R["NB"] + r, MB))
    a("v_mov_b32 v%d, s62" % CA); a("v_mov_b32 v%d, 1" % CO)
    mainloop("1", True)
    a("s_nop 7"); a("s_nop 3")
    a.label("L2_combine")
    a("s_barrier")
    a.label("L2_exch")
    a("s_mul_i32 s55, s45, 6144")
    a("v_lshlrev_b32 v1, 4, v2"); a("v_add_u32 v1, s55, v1")
    a("s_cmp_eq_u32 s46, 0")
    a("s_cbranch_scc1 L2_recv")
    for t, O in enumerate((R["OA"], R["OB"])):
        for c in range(3): a("ds_write_b128 v1, %s offset:%d" % (v(O + 4 * c, 4), (3 * t + c) * 1024))
    a("s_waitcnt lgkmcnt(0)")
    a("s_barrier")
    a("s_cmp_gt_u32 s42, 5"); a("s_cbranch_scc1 L2_noC4")
    a("s_lshr_b32 s55, s40, 3"); a("s_add_u32 s55, s55, %d" % C3)
    a("s_cmp_eq_u32 s42, 4"); a("s_cselect_b32 s55, %d, s55" % C4); a("s_movk_i32 s56, 144"); a("s_cselect_b32 s56, 256, s56")
    a("s_lshl_b32 s55, s55, 7"); a("s_add_u32 s55, s55, 0x%x" % OFF_CNT)
    a("v_mov_b32 v8, s55"); a("v_mov_b32 v9, s56")
    poll_global(a, 8, 9, vt=10, slp=4)
    lds_arrive(a, GO2A, 8, 9)
    a("s_waitcnt lgkmcnt(0)")
    a.label("L2_noC4")
    a("s_barrier")
    p3_sender_issue(a)
    a("s_branch L2_p3")
    a.label("L2_recv")
    a("s_barrier")
    for t in range(2):
        for c in range(3): a("ds_read_b128 %s, v1 offset:%d" % (v(R["SA"] + 12 * t + 4 * c, 4), (3 * t + c) * 1024))
    a("s_waitcnt lgkmcnt(0)")
    for t, O in enumerate((R["OA"], R["OB"])):
        for r in range(12): a("v_add_f32 v%d, v%d, v%d" % (O + r, O + r, R["SA"] + 12 * t + r))
    for t, O in enumerate((R["OA"], R["OB"])):
        a("v_mov_b32 v%d, v%d" % (52 + 2 * t, O + 10)); a("v_mov_b32 v%d, v%d" % (53 + 2 * t, O + 10))
    a("s_nop 1")
    a("v_permlane32_swap_b32 v52, v53"); a("v_permlane32_swap_b32 v54, v55")
    a("s_nop 1")
    a("v_rcp_f32 v52, v52"); a("v_rcp_f32 v54, v54")
    a("s_lshl_b32 s55, s45, 6")
    a("v_add_u32 v3, s55, v4"); a("v_mul_u32_u24 v3, 36, v3"); a("v_lshl_add_u32 v3, v5, 3, v3"); a("v_add_u32 v3, 32768, v3")
    a("v_cmp_eq_u32 vcc, 0, v5")
    for t, O in enumerate((R["OA"], R["OB"])):
        rc = 52 + 2 * t
        for r in range(10): a("v_mul_f32 v%d, v%d, v%d" % (O + r, O + r, rc))
        for c in range(5): a("v_cvt_pk_bf16_f32 v%d, v%d, v%d" % (56 + 5 * t + c, O + 2 * c, O + 2 * c + 1))
    for t in range(2):
        off = t * 32 * 36; b = 56 + 5 * t
        a("ds_write_b32 v3, v%d offset:%d" % (b, off + 0)); a("ds_write_b32 v3, v%d offset:%d" % (b + 1, off + 4))
        a("ds_write_b32 v3, v%d offset:%d" % (b + 2, off + 16)); a("ds_write_b32 v3, v%d offset:%d" % (b + 3, off + 20))
    a("s_and_saveexec_b64 s[56:57], vcc")
    a("ds_write_b32 v3, v60 offset:32"); a("ds_write_b32 v3, v65 offset:%d" % (32 * 36 + 32))
    a("s_mov_b64 exec, s[56:57]")
    a("s_waitcnt lgkmcnt(0)")
    a("s_barrier")
    a("s_lshl_b32 s55, s42, 10")
    a("v_lshlrev_b32 v1, 4, v2"); a("v_add_u32 v1, s55, v1")
    a("v_add_u32 v3, 32768, v1")
    a("ds_read_b128 v[8:11], v3"); a("ds_read_b128 v[12:15], v3 offset:4096")
    a("s_mul_i32 s57, s40, %d" % O_HEAD); a("s_mul_i32 s58, s41, 9216"); a("s_add_u32 s57, s57, s58"); a("s_add_u32 s57, s57, 0x%x" % OFF_O)
    a("v_add_u32 v6, 4096, v1")
    a("s_cmp_lg_u32 s42, 0")
    a("s_cbranch_scc1 L2_o1")
    a("ds_read_b128 v[16:19], v3 offset:8192")
    a("s_waitcnt lgkmcnt(0)")
    a("v_add_u32 v7, 8192, v1")
    a("buffer_store_dwordx4 v[16:19], v7, s[36:39], s57 offen sc1")
    a.label("L2_o1")
    a("s_waitcnt lgkmcnt(0)")
    a("buffer_store_dwordx4 v[8:11], v1, s[36:39], s57 offen sc1")
    a("buffer_store_dwordx4 v[12:15], v6, s[36:39], s57 offen sc1")
    stamp(a, 8)
    a("s_waitcnt vmcnt(0)")
    lds_arrive(a, SBH, 1, 3)
    a.label("L2_p3")
    stamp(a, 13)
    a("s_setprio 0")
    phase3(a)
    a("s_branch L_fin")

    a.label("L2_conv")
    conv(a)

def loader(a):
    a("s_and_b32 s40, s2, 31"); a("s_mul_i32 s43, s40, %d" % KV_HEAD); a("v_lshlrev_b32 v3, 4, v2")
    a("s_setprio 3")
    lds_spin(a, SB3, 8, 1, 4, slp=3)
    a("v_and_b32 v5, 1, v2"); a("v_add_u32 v5, 1, v5"); a("v_lshlrev_b32 v5, 5, v5"); a("v_add_u32 v5, s40, v5")
    a("v_mul_u32_u24 v5, 0x2aab, v5"); a("v_lshrrev_b32 v5, 16, v5"); a("v_lshlrev_b32 v5, 10, v5")
    a("v_add_u32 v5, 0x%x, v5" % (OFF_CNT + 128 * C1 + 128)); a("v_mov_b32 v6, 2")
    a("s_add_u32 s43, s43, 18432"); a("v_add_u32 v4, 18432, v3")
    a("s_mov_b32 s44, 1")
    a.label("L2_ldstage")
    poll_global(a, 5, 6, vt=7)
    for q in range(18):
        a("buffer_load_dwordx4 %s, v3, s[36:39], s43 offen offset:%d sc1" % (v(8 + 4 * q, 4), (q % 4) * 1024))
        if q % 4 == 3 or q == 17: a("s_add_u32 s43, s43, %d" % (4096 if q % 4 == 3 else 2048))
    for q in range(18):
        a("s_waitcnt vmcnt(%d)" % (17 - q))
        a("ds_write_b128 v4, %s offset:%d" % (v(8 + 4 * q, 4), 1024 * q))
    a("v_add_u32 v4, 18432, v4"); a("v_add_u32 v5, 128, v5")
    a("s_add_u32 s44, s44, 1")
    a("s_waitcnt lgkmcnt(0)")
    a("v_mov_b32 v1, %d" % FB); a("v_mov_b32 v7, s44"); a("ds_write_b32 v1, v7")
    a("s_cmp_lt_u32 s44, 8"); a("s_cbranch_scc1 L2_ldstage")
    a("s_waitcnt lgkmcnt(0)")

def conv(a):
    a("s_sub_u32 s43, s42, 8")
    a("s_lshl_b32 s44, s43, 8"); a("s_add_u32 s44, s44, s2")
    a("s_cmp_eq_u32 s43, 2"); a("s_cbranch_scc0 %s" % (lbl := a.uid("Lch")))
    a("s_add_u32 s44, s2, 320"); a("s_cmp_lt_u32 s2, 192"); a("s_cselect_b32 s44, 0xffff, s44")
    a.label(lbl)
    a("s_cmp_ge_u32 s44, 576")
    a("s_cbranch_scc1 L_fin")
    a("s_load_dwordx2 s[10:11], s[0:1], 64")
    a("s_mul_hi_u32 s45, s44, 0x%x" % ((1 << 32) // 48 + 1)); a("s_add_u32 s45, s45, %d" % C2); a("s_lshl_b32 s45, s45, 7"); a("s_add_u32 s45, s45, 0x%x" % OFF_CNT)
    a("v_mov_b32 v5, s45"); a("v_mov_b32 v6, 16")
    poll_global(a, 5, 6, vt=7, slp=6)
    stamp(a, 6)
    a("v_lshlrev_b32 v3, 4, v2")
    a("s_lshl_b32 s46, s44, 12"); a("s_add_u32 s46, s46, 0x%x" % OFF_URT)
    a("s_mul_i32 s47, s43, 4608"); a("s_add_u32 s47, s47, %d" % LDS_UR)
    for q in range(4): a("buffer_load_dwordx4 %s, v3, s[36:39], s46 offen offset:%d sc1" % (v(8 + 4 * q, 4), 1024 * q))
    a("s_mul_i32 s48, s44, %d" % (2 * HP_ROW)); a("s_add_u32 s48, s48, 0x%x" % OFF_HP)
    a("v_and_b32 v4, 15, v2"); a("v_lshrrev_b32 v5, 4, v2")
    a("v_and_b32 v6, 7, v4"); a("v_lshlrev_b32 v6, 1, v6")
    a("v_lshrrev_b32 v7, 3, v4")
    a("v_lshl_add_u32 v6, v7, 1, v6"); a("v_lshl_add_u32 v6, v5, 3, v6"); a("v_lshlrev_b32 v6, 1, v6")
    a("v_mov_b32 v24, %d" % HP_ROW); a("v_cmp_eq_u32 vcc, 0, v7"); a("v_mov_b32 v25, 0"); a("s_nop 0")
    a("v_cndmask_b32 v24, v25, v24, vcc"); a("v_add_u32 v6, v6, v24")
    a("v_lshlrev_b32 v7, 5, v4"); a("v_lshlrev_b32 v24, 4, v5"); a("v_sub_u32 v7, v24, v7")
    a("v_add_u32 v7, s47, v7"); a("v_add_u32 v7, 4064, v7")
    AF, AG, BF, Y = 16, 112, 48, 80
    for mu in range(8): a("buffer_load_dwordx4 %s, v6, s[36:39], s48 offen offset:%d" % (v(AG + 4 * mu, 4), 512 * mu))
    a("v_add_u32 v26, s47, v3")
    for q in range(4):
        a("s_waitcnt vmcnt(%d)" % (8 + 3 - q))
        a("ds_write_b128 v26, %s offset:%d" % (v(8 + 4 * q, 4), 1024 * q))
    for r in range(4): a("v_mov_b32 v%d, 0" % (28 + r))
    a("s_mov_b32 exec_hi, 0")
    a("ds_write_b128 v26, v[28:31] offset:4096")
    a("s_mov_b64 exec, -1")
    for r in range(32): a("v_mov_b32 v%d, 0" % (Y + r))
    a("s_waitcnt lgkmcnt(0)")
    stamp(a, 8)
    a("s_setprio %d" % (2 if "conv2" in EXP else (0 if ("conv0" in EXP or "convmix" in EXP) else 1)))
    a("s_mov_b32 s51, 0")
    if "noconvloop" in EXP: a("s_branch L2c_skip")
    a.label("L2c_rho")
    for half, (cur, nxt) in enumerate(((AG, AF), (AF, AG))):
        if "convmix" in EXP and half == 0:
            a("s_cmp_ge_u32 s51, 4"); a("s_cbranch_scc0 L2c_lp"); a("s_setprio 1"); a.label("L2c_lp")
        a("s_add_u32 s52, s51, %d" % half); a("s_lshl_b32 s52, s52, 6")
        a("v_add_u32 v8, s52, v7"); a("v_subrev_u32 v8, %d, v8" % (512 * 7))
        for sg in range(8): a("ds_read_b128 %s, v8 offset:%d" % (v(BF + 4 * sg, 4), 512 * (7 - sg)))
        a("s_add_u32 s53, s52, 64"); a("s_and_b32 s53, s53, 0x1ff"); a("s_add_u32 s53, s53, s48")
        for mu in range(8): a("buffer_load_dwordx4 %s, v6, s[36:39], s53 offen offset:%d" % (v(nxt + 4 * mu, 4), 512 * mu))
        a("s_waitcnt lgkmcnt(0)")
        for mu in range(8):
            a("s_waitcnt vmcnt(%d)" % (8 + 7 - mu))
            for sg in range(8 - mu):
                t = mu + sg
                if "convnomfma" in EXP: continue
                if "convhalf" in EXP and (mu + sg) % 2 == 1: continue
                a("v_mfma_f32_16x16x32_bf16 %s, %s, %s, %s" % (v(Y + 4 * t, 4), v(cur + 4 * mu, 4), v(BF + 4 * sg, 4), v(Y + 4 * t, 4)))
    a("s_add_u32 s51, s51, 2"); a("s_cmp_lt_u32 s51, 8"); a("s_cbranch_scc1 L2c_rho")
    a.label("L2c_skip")
    stamp(a, 9)
    a("s_setprio 3")
    a("s_waitcnt vmcnt(0)")
    a("s_lshl_b32 s52, s44, 1"); a("s_and_b32 s53, s52, 0xfffffffc")
    a("s_add_u32 s54, s10, s53"); a("s_addc_u32 s55, s11, 0")
    a("s_load_dword s56, s[54:55], 0")
    a("s_waitcnt lgkmcnt(0)")
    a("s_and_b32 s57, s52, 2"); a("s_lshl_b32 s57, s57, 3"); a("s_lshr_b32 s56, s56, s57"); a("s_lshl_b32 s56, s56, 16")
    a("v_and_b32 v8, 1, v5"); a("v_lshrrev_b32 v9, 1, v5")
    a("v_lshlrev_b32 v10, 4, v4"); a("v_lshl_add_u32 v10, v8, 3, v10"); a("v_lshl_add_u32 v10, v9, 2, v10")
    a("v_lshlrev_b32 v11, 1, v10")
    a("v_sub_u32 v12, 0, v11"); a("v_add_u32 v12, s47, v12"); a("v_add_u32 v12, %d, v12" % (2 * 2044 - 512 * 7))
    for t in range(8): a("ds_read_b64 %s, v12 offset:%d" % (v(AF + 2 * t, 2), 512 * (7 - t)))
    a("s_lshl_b32 s52, s44, 12"); a("s_add_u32 s52, s52, 0x%x" % OFF_YT)
    a("s_nop 7")
    for t in range(8):
        y = Y + 4 * t
        a("v_permlane32_swap_b32 v%d, v%d" % (y, y + 2)); a("v_permlane32_swap_b32 v%d, v%d" % (y + 1, y + 3))
    a("s_waitcnt lgkmcnt(0)")
    for t in range(8):
        y = Y + 4 * t; u0, u1 = AF + 2 * t, AF + 2 * t + 1
        a("v_and_b32 v40, 0xffff0000, v%d" % u1); a("v_fma_f32 v%d, v40, s56, v%d" % (y, y))
        a("v_lshlrev_b32 v41, 16, v%d" % u1);     a("v_fma_f32 v%d, v41, s56, v%d" % (y + 2, y + 2))
        a("v_and_b32 v42, 0xffff0000, v%d" % u0); a("v_fma_f32 v%d, v42, s56, v%d" % (y + 1, y + 1))
        a("v_lshlrev_b32 v43, 16, v%d" % u0);     a("v_fma_f32 v%d, v43, s56, v%d" % (y + 3, y + 3))
        a("v_cvt_pk_bf16_f32 v%d, v%d, v%d" % (112 + 2 * t, y, y + 2))
        a("v_cvt_pk_bf16_f32 v%d, v%d, v%d" % (113 + 2 * t, y + 1, y + 3))
        a("buffer_store_dwordx2 %s, v11, s[36:39], s52 offen offset:%d sc1" % (v(112 + 2 * t, 2), 512 * t))
    a("s_waitcnt vmcnt(0)")
    a("s_mul_hi_u32 s45, s44, 0x%x" % ((1 << 32) // 144 + 1)); a("s_add_u32 s45, s45, %d" % C3)
    atomic_inc(a, 45)
    if "wbl2" in EXP:
        a("s_cmp_lg_u32 s42, 8"); a("s_cbranch_scc1 L_fin"); a("buffer_wbl2 sc1"); a("s_waitcnt vmcnt(0)")
    stamp(a, 7)
    a("s_branch L_fin")

P3_OB, P3_YB, P3_UB, P3_W8, P3_XB = 49152, 90112, 102400, 112640, 131072
P3_WA, P3_ST, P3_NPF, P3_OA = 20, 92, 20, 128
def p3_setup(a):
    a("s_load_dwordx2 s[4:5], s[0:1], 0"); a("s_load_dwordx2 s[6:7], s[0:1], 80")
    a("s_and_b32 s43, s40, 7"); a("s_lshl_b32 s43, s43, 5"); a("s_lshl_b32 s44, s41, 8"); a("s_add_u32 s43, s43, s44")
    a("s_lshr_b32 s44, s40, 3")
    a("v_and_b32 v3, 15, v2"); a("v_lshrrev_b32 v4, 4, v2"); a("v_lshlrev_b32 v5, 4, v2")
    lds_spin(a, GO2A, 2, 1, 6)
    srd(a, 16, 4, 2048 * 1152); srd(a, 20, 6, 2048 * 1152)
    a("s_mul_i32 s45, s44, 9"); a("s_mul_i32 s47, s44, 288")
def p3_prefetch(a):
    WA = P3_WA
    a("s_mul_i32 s45, s44, 9"); a("s_add_u32 s46, s45, s42"); a("s_mul_i32 s46, s46, 18*1024"); a("s_add_u32 s46, s46, 0x%x" % OFF_WOF)
    for ks in range(18):
        a("buffer_load_dwordx4 %s, v5, s[36:39], s46 offen offset:%d sc1" % (v(WA + 4 * ks, 4), (ks % 4) * 1024))
        if ks % 4 == 3: a("s_add_u32 s46, s46, 4096")
    a("v_add_u32 v6, s43, v3")
    a("v_lshlrev_b32 v14, 2, v6"); a("s_mov_b32 s51, 0x%x" % OFF_G)
    a("buffer_load_dword v16, v14, s[36:39], s51 offen sc1"); a("buffer_load_dword v17, v14, s[36:39], s51 offen offset:64 sc1")
def p3_sender_issue(a):
    ST, W8, YB = P3_ST, P3_W8, P3_YB
    p3_setup(a)
    a("s_cmp_lt_u32 s42, 6"); a("s_cbranch_scc1 L3_rY")
    a("s_add_u32 s46, s45, 8"); a("s_mul_i32 s46, s46, 18*1024"); a("s_add_u32 s46, s46, 0x%x" % OFF_WOF)
    a("s_sub_u32 s52, s42, 6"); a("s_mul_i32 s52, s52, 9216"); a("s_add_u32 s46, s46, s52")
    for i in range(9):
        a("buffer_load_dwordx4 %s, v5, s[36:39], s46 offen offset:%d sc1" % (v(ST + 4 * i, 4), (i % 4) * 1024))
        if i % 4 == 3: a("s_add_u32 s46, s46, 4096")
    a("s_add_u32 s52, s52, %d" % W8); a("v_add_u32 v12, s52, v5")
    a("s_branch L3_pf")
    a.label("L3_rY")
    a("v_lshrrev_b32 v14, 2, v2"); a("v_and_b32 v15, 3, v2")
    a("s_sub_u32 s52, s42, 4"); a("s_mul_i32 s52, s52, 80")
    a("s_mul_i32 s53, s44, 144"); a("s_add_u32 s53, s53, s52")
    a("v_add_u32 v14, s53, v14"); a("v_lshlrev_b32 v14, 12, v14"); a("v_lshl_add_u32 v14, v15, 4, v14")
    a("s_lshl_b32 s53, s43, 1"); a("s_add_u32 s53, s53, 0x%x" % OFF_YT)
    for i in range(5):
        a("buffer_load_dwordx4 %s, v14, s[36:39], s53 offen sc1" % v(ST + 4 * i, 4))
        a("s_add_u32 s53, s53, 16*4096")
    a("s_lshl_b32 s52, s52, 6"); a("s_add_u32 s52, s52, %d" % YB)
    a("v_add_u32 v12, s52, v5")
    a.label("L3_pf")
    lds_spin(a, ARR, 1, 1, 6)
    p3_prefetch(a)
def phase3(a):
    OB, YB, UB, W8, XB = P3_OB, P3_YB, P3_UB, P3_W8, P3_XB
    WA, ST, NPF, OA_ = P3_WA, P3_ST, P3_NPF, P3_OA
    def prefetch(): p3_prefetch(a)
    a("s_cmp_ge_u32 s42, 4"); a("s_cbranch_scc1 L3_calc")
    a("s_cmp_lg_u32 s42, 0")
    a("s_cbranch_scc1 L3_noarr")
    lds_spin(a, SBH, 4, 1, 3)
    a("s_add_u32 s52, s41, %d" % C5)
    atomic_inc(a, 52, 14, 15)
    lds_set(a, ARR, 1, 3)
    a.label("L3_noarr")
    p3_setup(a)
    a("s_cmp_eq_u32 s42, 0"); a("s_cbranch_scc1 L3_calc")
    a("s_movk_i32 s52, 3641"); a("s_sub_u32 s53, s42, 1"); a("s_mul_i32 s53, s53, 192")
    for i in range(3):
        a("v_add_u32 v8, s53, v2"); a("v_add_u32 v8, %d, v8" % (64 * i))
        a("v_mul_u32_u24 v9, s52, v8"); a("v_lshrrev_b32 v9, 16, v9")
        a("v_mul_u32_u24 v10, 18, v9"); a("v_sub_u32 v10, v8, v10")
        a("v_mul_u32_u24 v11, 304, v9"); a("v_lshl_add_u32 v%d, v10, 4, v11" % (160 + i)); a("v_add_u32 v%d, %d, v%d" % (160 + i, XB, 160 + i))
        a("v_add_u32 v9, s43, v9"); a("v_mul_u32_u24 v9, 1152, v9"); a("v_lshl_add_u32 v9, v10, 4, v9")
        a("buffer_load_dwordx4 %s, v9, s[16:19], s47 offen" % v(ST + 4 * i, 4))
    lds_spin(a, ARR, 1, 1, 6)
    prefetch()
    a.label("L3_calc")
    a("s_movk_i32 s52, 7282"); a("s_mul_i32 s54, s42, 36")
    for part in range(2):
        for j in range(4):
            a("v_lshlrev_b32 v14, 2, v2"); a("v_add_u32 v14, %d, v14" % (256 * part + j))
            a("v_mul_u32_u24 v15, s52, v14"); a("v_lshrrev_b32 v15, 16, v15")
            a("v_mul_u32_u24 v18, 9, v15"); a("v_sub_u32 v14, v14, v18")
            a("v_add_u32 v14, s54, v14")
            a("v_bfe_u32 v18, v15, 1, 3")
            a("v_mul_u32_u24 v15, 1152, v15"); a("v_add_u32 v15, %d, v15" % OB)
            for hh in range(4):
                r = OA_ + 8 * hh + 4 * part + j
                if hh: a("v_add_u32 v14, 9, v14")
                a("v_lshrrev_b32 v164, 2, v14"); a("v_xor_b32 v164, v164, v18"); a("v_lshl_add_u32 v164, v164, 4, v15")
                a("v_and_b32 v165, 3, v14"); a("v_lshl_add_u32 v%d, v165, 2, v164" % r)
    assert all((q * 7282 >> 16) == q // 9 for q in range(288))
    a("s_lshl_b32 s52, s42, 2"); a("s_mul_i32 s53, s52, %d" % O_HEAD); a("s_mul_i32 s54, s43, 36"); a("s_add_u32 s53, s53, s54"); a("s_add_u32 s53, s53, 0x%x" % OFF_O)
    a("v_add_u32 v14, 1024, v5"); a("v_mov_b32 v15, 0x%x" % OOB); a("v_cmp_gt_u32 vcc, 8, v2"); a("s_nop 1"); a("v_cndmask_b32 v19, v15, v14, vcc")
    a("s_cmp_eq_u32 s42, 0"); a("s_cbranch_scc1 L3_prepdone")
    a("s_cmp_lt_u32 s42, 4"); a("s_cbranch_scc0 L3_s47")
    for i in range(3):
        a("s_waitcnt vmcnt(%d)" % (NPF + 2 - i))
        a("ds_write_b128 v%d, %s" % (160 + i, v(ST + 4 * i, 4)))
    a("s_branch L3_prepdone")
    a.label("L3_s47")
    a("s_cmp_lt_u32 s42, 6"); a("s_cbranch_scc1 L3_sY")
    for i in range(9):
        a("s_waitcnt vmcnt(%d)" % (NPF + 8 - i))
        a("ds_write_b128 v12, %s offset:%d" % (v(ST + 4 * i, 4), 1024 * i))
    a("s_branch L3_prepdone")
    a.label("L3_sY")
    for i in range(5):
        a("s_waitcnt vmcnt(%d)" % (NPF + 4 - i))
        a("ds_write_b128 v12, %s offset:%d" % (v(ST + 4 * i, 4), 1024 * i))
    a.label("L3_prepdone")
    stamp(a, 2)
    stamp(a, 3)
    a("s_cmp_lg_u32 s42, 0")
    a("s_cbranch_scc1 L3_waitgo")
    a("s_add_u32 s52, s41, %d" % C5); a("s_lshl_b32 s52, s52, 7"); a("s_add_u32 s52, s52, 0x%x" % OFF_CNT)
    a("v_mov_b32 v14, s52"); a("v_mov_b32 v15, 32")
    poll_global(a, 14, 15, vt=18, slp=4)
    lds_set(a, GO2B, 1, 18)
    a("s_branch L3_go")
    a.label("L3_waitgo")
    lds_spin(a, GO2B, 1, 1, 18)
    a.label("L3_go")
    stamp(a, 9)
    for hh in range(4):
        a("buffer_load_dwordx4 %s, v5, s[36:39], s53 offen sc1" % v(ST + 8 * hh, 4))
        a("buffer_load_dwordx4 %s, v19, s[36:39], s53 offen sc1" % v(ST + 8 * hh + 4, 4))
        a("s_add_u32 s53, s53, %d" % O_HEAD)
    def scatter(extra):
        for hh in range(4):
            a("s_waitcnt vmcnt(%d)" % (extra + 7 - 2 * hh))
            for j in range(4): a("ds_write_b32 v%d, v%d" % (OA_ + 8 * hh + j, ST + 8 * hh + j))
            a("s_waitcnt vmcnt(%d)" % (extra + 6 - 2 * hh))
            a("s_mov_b64 exec, 0xff")
            for j in range(4): a("ds_write_b32 v%d, v%d" % (OA_ + 8 * hh + 4 + j, ST + 8 * hh + 4 + j))
            a("s_mov_b64 exec, -1")
    a("s_cmp_lg_u32 s42, 0")
    a("s_cbranch_scc1 L3_w17")
    prefetch()
    scatter(NPF)
    a("s_branch L3_noO")
    a.label("L3_w17")
    scatter(0)
    a.label("L3_noO")
    a("s_waitcnt vmcnt(0) lgkmcnt(0)")
    a("s_barrier")
    stamp(a, 10)
    a("v_lshrrev_b32 v7, 1, v3"); a("v_xor_b32 v7, v7, v4"); a("v_mul_u32_u24 v6, 1152, v3"); a("v_lshl_add_u32 v6, v7, 4, v6"); a("v_add_u32 v6, %d, v6" % OB)
    a("v_xor_b32 v162, 64, v6")
    a("s_and_b32 s52, s42, 1"); a("s_mul_i32 s52, s52, 16*1152"); a("v_add_u32 v7, s52, v6"); a("v_add_u32 v163, s52, v162")
    a("v_add_u32 v14, %d, v5" % W8)
    AC = [92, 96, 100]; BFR = [104, 116]; A2 = [128, 132]
    TM, YR = 136, 148
    a("v_lshrrev_b32 v154, 2, v2"); a("v_and_b32 v154, 3, v154"); a("v_lshl_add_u32 v154, v4, 2, v154"); a("v_lshlrev_b32 v154, 6, v154")
    a("v_and_b32 v155, 3, v2"); a("v_lshl_add_u32 v154, v155, 3, v154"); a("v_add_u32 v154, %d, v154" % YB)
    a("s_lshl_b32 s56, s42, 10"); a("v_add_u32 v155, s56, v154")
    a("ds_read_b64_tr_b16 %s, v155" % v(YR, 2)); a("ds_read_b64_tr_b16 %s, v155 offset:32" % v(YR + 2, 2))
    a("s_and_b32 s59, s42, 1"); a("s_lshl_b32 s56, s59, 5"); a("s_add_u32 s56, s56, 8*1024"); a("v_add_u32 v155, s56, v154")
    a("ds_read_b64_tr_b16 %s, v155" % v(YR + 4, 2))
    a("v_mul_u32_u24 v8, 304, v3"); a("v_lshl_add_u32 v8, v4, 3, v8"); a("v_add_u32 v15, %d, v8" % XB)
    a("s_lshl_b32 s56, s42, 5"); a("v_add_u32 v19, s56, v15")
    a("ds_read_b64 v[8:9], v19"); a("ds_read_b64 v[10:11], v19 offset:%d" % (16 * 304))
    a("s_mul_i32 s56, s59, 16*304"); a("s_add_u32 s56, s56, 256"); a("v_add_u32 v19, s56, v15")
    a("ds_read_b64 v[12:13], v19")
    a("s_cmp_eq_u32 s59, 0"); a("s_cselect_b64 vcc, -1, 0"); a("v_cndmask_b32 v18, v17, v16, vcc")
    GR = [16, 17, 18]; XR = [8, 10, 12]
    terms = []
    for t in range(3):
        terms.append("v_sub_f32 v%d, 1.0, v%d" % (164 + t, GR[t]))
        for r in range(4):
            x_, y_ = XR[t] + r // 2, YR + 2 * t + r // 2
            if r % 2 == 0:
                terms += ["v_lshlrev_b32 v%d, 16, v%d" % (TM + 4 * t + r, x_), "v_lshlrev_b32 v167, 16, v%d" % y_]
            else:
                terms += ["v_and_b32 v%d, 0xffff0000, v%d" % (TM + 4 * t + r, x_), "v_and_b32 v167, 0xffff0000, v%d" % y_]
            terms += ["v_mul_f32 v%d, v%d, v167" % (TM + 4 * t + r, TM + 4 * t + r), "v_mul_f32 v%d, v%d, v%d" % (TM + 4 * t + r, TM + 4 * t + r, 164 + t)]
    def kloop(three):
        NBUF = 3 if not three else 2
        BB = [104, 112, 120] if not three else BFR
        tl = list(terms)
        def rd(ks):
            b = BB[ks % NBUF]
            r0, r1 = (6, 7) if ks % 2 == 0 else (162, 163)
            o = 128 * (ks >> 1)
            out = ["ds_read_b128 %s, v%d offset:%d" % (v(b, 4), r0, o), "ds_read_b128 %s, v%d offset:%d" % (v(b + 4, 4), r0, o + 16 * 1152)]
            if three:
                out += ["ds_read_b128 %s, v%d offset:%d" % (v(b + 8, 4), r1, o), "ds_read_b128 %s, v14 offset:%d" % (v(A2[ks & 1], 4), 1024 * ks)]
            return out
        n = 4 if three else 2
        D = NBUF - 1
        for k in range(D):
            for x in rd(k): a(x)
        for ks in range(18):
            if ks + D < 18:
                for x in rd(ks + D): a(x)
            rem = min(D, 17 - ks)
            a("s_waitcnt lgkmcnt(%d)" % (n * rem))
            b = BB[ks % NBUF]
            for t in range(2):
                c = "0" if ks == 0 else v(AC[t], 4)
                a("v_mfma_f32_16x16x32_bf16 %s, %s, %s, %s" % (v(AC[t], 4), v(WA + 4 * ks, 4), v(b + 4 * t, 4), c))
            if three:
                c = "0" if ks == 0 else v(AC[2], 4)
                a("v_mfma_f32_16x16x32_bf16 %s, %s, %s, %s" % (v(AC[2], 4), v(A2[ks & 1], 4), v(b + 8, 4), c))
            for x in tl[:4]: a(x)
            tl = tl[4:]
        for x in tl: a(x)
    def epi(t, moff, noff):
        for r in range(4): a("v_fma_f32 v%d, v%d, v%d, v%d" % (AC[t] + r, AC[t] + r, GR[t], TM + 4 * t + r))
        a("v_cvt_pk_bf16_f32 v%d, v%d, v%d" % (104 + 2 * t, AC[t], AC[t] + 1)); a("v_cvt_pk_bf16_f32 v%d, v%d, v%d" % (105 + 2 * t, AC[t] + 2, AC[t] + 3))
    a("s_cmp_ge_u32 s42, 6")
    a("s_cbranch_scc1 L3_k3")
    kloop(False)
    a("s_branch L3_kdone")
    a.label("L3_k3")
    kloop(True)
    a.label("L3_kdone")
    stamp(a, 11)
    a("v_mul_u32_u24 v154, 304, v3"); a("v_lshl_add_u32 v154, v4, 3, v154"); a("v_add_u32 v154, %d, v154" % UB)
    a("s_lshl_b32 s56, s42, 5"); a("v_add_u32 v155, s56, v154")
    a("s_nop 2")
    epi(0, 0, 0); epi(1, 0, 0)
    a("ds_write_b64 v155, v[104:105]"); a("ds_write_b64 v155, v[106:107] offset:%d" % (16 * 304))
    a("s_cmp_lt_u32 s42, 6")
    a("s_cbranch_scc1 L3_edone")
    epi(2, 0, 0)
    a("s_mul_i32 s56, s59, 16*304"); a("s_add_u32 s56, s56, 256"); a("v_add_u32 v155, s56, v154")
    a("ds_write_b64 v155, v[108:109]")
    a.label("L3_edone")
    a("s_waitcnt lgkmcnt(0)")
    a("s_barrier")
    a("s_movk_i32 s56, 3641")
    for rep in range(2):
        if rep == 1:
            a("s_cmp_lg_u32 s42, 0"); a("s_cbranch_scc1 L_fin")
        a("s_lshl_b32 s57, s42, 6"); a("v_add_u32 v6, s57, v2")
        if rep == 1: a("v_add_u32 v6, 512, v6")
        a("v_mul_u32_u24 v7, s56, v6"); a("v_lshrrev_b32 v7, 16, v7")
        a("v_mul_u32_u24 v8, 18, v7"); a("v_sub_u32 v8, v6, v8")
        a("v_mul_u32_u24 v9, 304, v7"); a("v_lshl_add_u32 v9, v8, 4, v9"); a("v_add_u32 v9, %d, v9" % UB)
        a("ds_read_b128 v[24:27], v9")
        a("v_add_u32 v7, s43, v7"); a("v_mul_u32_u24 v7, 1152, v7"); a("v_lshl_add_u32 v7, v8, 4, v7")
        a("s_waitcnt lgkmcnt(0)")
        a("buffer_store_dwordx4 v[24:27], v7, s[20:23], s47 offen")
    assert all((x * 3641 >> 16) == x // 18 for x in range(576))

def descriptor(name, nvgpr, nsgpr=100):
    return """.p2align 6
.amdhsa_kernel %s
  .amdhsa_next_free_vgpr %d
  .amdhsa_next_free_sgpr %d
  .amdhsa_accum_offset %d
  .amdhsa_group_segment_fixed_size 0
  .amdhsa_kernarg_size 104
  .amdhsa_user_sgpr_count 2
  .amdhsa_user_sgpr_kernarg_segment_ptr 1
  .amdhsa_system_sgpr_workgroup_id_x 1
  .amdhsa_float_denorm_mode_32 3
.end_amdhsa_kernel
""" % (name, nvgpr, nsgpr, nvgpr)

def main():
    global DIAG
    global RT
    RT = "--rt" in sys.argv
    DIAG = "--diag" in sys.argv or RT
    for x in sys.argv:
        if x.startswith("--exp="): EXP.update(x[6:].split(","))
    args = [x for x in sys.argv[1:] if not x.startswith("--")]
    a = Asm()
    hdr = open("gated_mix__mha_block__ssm_conv_h3__prompt.s.ref").read().split("\n")
    head = [l for l in hdr if l.startswith(";") and "@launch" not in l and "Override" not in l and "grid=ceil" not in l]
    a.raw("\n".join(head))
    a.raw("; @launch grid=(256,1,1) block=(768,1,1) lds=%d" % LDS_TOTAL)
    a.raw("""; One persistent launch, 256 workgroups (one per CU, all co-resident), 12 waves each.  Generated by a hand-written script.
; Hand-offs between workgroups: sc1 stores, drained, then an agent-scope counter add; sc1 polls and sc1 loads on the other side.
; The counters live in d_ws and are zeroed by workgroup 0 at the start of every launch (published through d_debug[0]).""")
    a.raw('.amdgcn_target "amdgcn-amd-amdhsa--gfx950"')
    a.raw(".text")
    a.raw(".globl %s" % NAME); a.raw(".p2align 8"); a.raw(".type %s,@function" % NAME); a.label(NAME)
    a("s_cmp_ge_u32 s2, 256")
    a("s_cbranch_scc1 L_end")
    phase1(a)
    phase2(a)
    a.label("L_fin")
    stamp(a, 12)
    stamp_store(a)
    a.label("L_end")
    a("s_endpgm")
    a.raw('.section .rodata,"a"')
    a.raw(descriptor(NAME, 168))
    if "plainld" in EXP:
        out_l = []
        for k, l in enumerate(a.lines):
            if "buffer_load" in l and " sc1" in l and "sc0" not in l:
                nxt = a.lines[k + 1] if k + 1 < len(a.lines) else ""
                is_poll = ("buffer_load_dword v" in l and ", 0 offen sc1" in l and "offset" not in l and "s_waitcnt vmcnt(0)" in nxt)
                if not is_poll: l = l.replace(" sc1", "")
            out_l.append(l)
        a.lines = out_l
    if "nosc1" in EXP:
        a.lines = [l.replace(" sc1", "") if ("buffer_store" in l and "sc0" not in l) else l for l in a.lines]
    if "nosideload" in EXP:
        out_l = []; inside = False
        for l in a.lines:
            if "L1_side:" in l: inside = True
            if "L1_out:" in l: inside = False
            if inside and ("buffer_load_dword" in l or "buffer_load_ushort" in l) and "s[20:23]" not in l: continue
            out_l.append(l)
        a.lines = out_l
    if "nosidestore" in EXP:
        out_l = []; inside = False
        for l in a.lines:
            if "L1_side:" in l: inside = True
            if "L1_out:" in l: inside = False
            if inside and "buffer_store" in l and "s[20:23]" not in l and "v1, s[36:39], 0 offen sc1" not in l: continue
            out_l.append(l)
        a.lines = out_l
    if "hpsc1" in EXP:
        a.lines = [l + " sc1" if ("buffer_store_dwordx4" in l and "v118" in l and "sc1" not in l) else l for l in a.lines]
    if "hpplain" not in EXP and "hpsc1" not in EXP:
        a.lines = [l + " nt" if ("buffer_store_dwordx4" in l and "v118" in l and "sc1" not in l) else l for l in a.lines]
    if "outsc1" in EXP:
        a.lines = [l + " sc1" if ("buffer_store_dwordx4 v[24:27], v7, s[20:23]" in l) else l for l in a.lines]
    if "outplain" not in EXP and "outsc1" not in EXP:
        a.lines = [l + " nt" if ("buffer_store_dwordx4 v[24:27], v7, s[20:23]" in l) else l for l in a.lines]
    out = args[0] if args else "fused3.s"
    open(out, "w").write(a.text())
    probs = check_seq(a.lines, "all")
    for p in probs: print("HAZARD", p)
    print("wrote", out, len(a.lines), "lines")

if __name__ == "__main__":
    main()
```
